```python
import torch

def _softmax(x, axis=-1):
    return torch.softmax(x, dim=axis)

def _gelu(x):
    return torch.nn.functional.gelu(x, approximate='tanh')

def _silu(x):
    return torch.nn.functional.silu(x)

def _sigmoid(x):
    return torch.sigmoid(x)

def _layernorm(x, axis=-1, eps=1e-05):
    m = x.mean(dim=axis, keepdim=True)
    v = x.var(dim=axis, keepdim=True, unbiased=False)
    return (x - m) / torch.sqrt(v + eps)

def _scatter_add(tgt, idx, src, axis=0):
    return tgt.clone().index_add_(axis, idx, src)

def _segment_sum(src, seg, n):
    out = torch.zeros((n,) + src.shape[1:], dtype=src.dtype)
    return out.index_add_(0, seg, src)

def _pad(x, pw):
    flat = tuple((v for pair in reversed(pw) for v in pair))
    return torch.nn.functional.pad(x, flat)
kernel_name = 'sequential_preLN__memory_aug_recurrent_mem_tr__glu_gated_reglu__prompt'

def setup_inputs():

    _w = lambda a: (lambda t: t.to(torch.bfloat16) if t.is_floating_point() else t)(torch.as_tensor(a))

    def _A_setup():
        B, S, Dm = (1, 2048, 640)
        H, Dh = (32, 128)
        M, seg = (8, 32)
        seg = min(seg, S)
        S = S // seg * seg
        return {'x': _w((lambda *s: torch.randn(*s, dtype=torch.bfloat16) * 0.05)(B, S, Dm)), 'mem0': _w((lambda *s: torch.randn(*s, dtype=torch.bfloat16) * 0.2)(B, M, Dm)), 'Wq': _w((lambda *s: torch.randn(*s, dtype=torch.bfloat16) * 1.6)(Dm, H, Dh) * Dm ** (-0.5)), 'Wk': _w((lambda *s: torch.randn(*s, dtype=torch.bfloat16) * 1.6)(Dm, H, Dh) * Dm ** (-0.5)), 'Wv': _w((lambda *s: torch.randn(*s, dtype=torch.bfloat16) * 0.2)(Dm, H, Dh) * Dm ** (-0.5)), 'Wo': _w((lambda *s: torch.randn(*s, dtype=torch.bfloat16) * 0.2)(H, Dh, Dm) * (H * Dh) ** (-0.5)), 'seg_len': seg}
    _A_in = _A_setup()

    def _B_setup():
        B, S, D, F = (1, 2048, 640, 1728)
        return {'x': _w((lambda *s: torch.randn(*s, dtype=torch.bfloat16) * 0.05)(B, S, D)), 'W_gate': _w((lambda *s: torch.randn(*s, dtype=torch.bfloat16) * 0.2)(D, F) * (2.0 / D) ** 0.5), 'W_up': _w((lambda *s: torch.randn(*s, dtype=torch.bfloat16) * 0.2)(D, F) * (2.0 / D) ** 0.5), 'W_down': _w((lambda *s: torch.randn(*s, dtype=torch.bfloat16) * 0.2)(F, D) * (1.0 / F) ** 0.5)}
    _B_in = _B_setup()
    return {'A_x': _A_in['x'], 'A_mem0': _A_in['mem0'], 'A_Wq': _A_in['Wq'], 'A_Wk': _A_in['Wk'], 'A_Wv': _A_in['Wv'], 'A_Wo': _A_in['Wo'], 'A_seg_len': _A_in['seg_len'], 'B_x': _B_in['x'], 'B_W_gate': _B_in['W_gate'], 'B_W_up': _B_in['W_up'], 'B_W_down': _B_in['W_down']}

def reference(A_x, A_mem0, A_Wq, A_Wk, A_Wv, A_Wo, A_seg_len, B_x, B_W_gate, B_W_up, B_W_down):

    def _A_ref(x, mem0, Wq, Wk, Wv, Wo, seg_len):
        B, S, Dm = x.shape
        H, Dh = (Wq.shape[1], Wq.shape[2])
        M = mem0.shape[1]
        scale = Dh ** (-0.5)
        n_seg = S // seg_len
        L = M + seg_len
        idx = torch.arange(L)
        mask = (idx[:, None] < M) | (idx[:, None] >= idx[None, :])
        mem = mem0
        outs = []
        for s in range(n_seg):
            xs = x[:, s * seg_len:(s + 1) * seg_len, :].clone()
            h = torch.concatenate([mem, xs], axis=1)
            q = torch.einsum('btd,dhe->bhte', h, Wq)
            k = torch.einsum('btd,dhe->bhte', h, Wk)
            v = torch.einsum('btd,dhe->bhte', h, Wv)
            scores = torch.einsum('bhqe,bhke->bhqk', q, k) * scale
            scores = torch.where(mask[None, None], scores, -1000000000.0)
            p = _softmax(scores, axis=-1)
            o = torch.einsum('bhqk,bhke->bhqe', p, v)
            o = torch.einsum('bhte,hed->btd', o, Wo)
            mem = o[:, :M, :].clone()
            outs.append(o[:, M:, :])
        return torch.concatenate(outs, axis=1)

    def _B_ref(x, W_gate, W_up, W_down):
        gate = torch.einsum('bsd,df->bsf', x, W_gate)
        up = torch.einsum('bsd,df->bsf', x, W_up)
        gate = gate * (lambda x, dt: x.to(dt))(gate > 0, gate.dtype)
        h = gate * up
        return torch.einsum('bsf,fd->bsd', h, W_down)
    x = A_x
    h = x + _A_ref(_layernorm(x, axis=-1), A_mem0, A_Wq, A_Wk, A_Wv, A_Wo, A_seg_len)
    h2 = h + _B_ref(_layernorm(h, axis=-1), B_W_gate, B_W_up, B_W_down)
    return h2
```

```python
KNAME = "sequential_preLN__memory_aug_recurrent_mem_tr__glu_gated_reglu__prompt"
S, D, H, E, F, M, SEG, NSEG = 2048, 640, 32, 128, 1728, 8, 32, 64
XN_F   = 0x0000000
WQKV_F = 0x0280000
WO_F   = 0x1180000
WGU_F  = 0x1680000
WD_F   = 0x1AC0000
Q_F    = 0x2000000
K_F    = 0x3000000
V_F    = 0x4000000
O_F    = 0x5000000
KM_F   = 0x6000000
VM_F   = 0x6800000
H_RM   = 0x7000000
HN_F   = 0x7400000
ACT_F  = 0x7800000
P_OFF  = 0x8000000
MEM_F  = 0x8200000
P_BYTES = 2*160*32*128
MEM_BYTES = 65*10240
```

```python
from common import *
from gen import A, kd, khead

L_WV   = 0
L_WO   = 81920
L_MEM  = 102400
L_SC   = 122880
L_O    = 135168
L_END  = 139264

class LK:
    def __init__(s, a): s.a = a; s.n = 0; s.done = 0
    def op(s, txt): s.a("  " + txt); s.n += 1; return s.n
    def wait(s, idn):
        if idn <= s.done: return
        c = s.n - idn
        s.a(f"  s_waitcnt lgkmcnt({min(c,15)})")
        s.done = idn if c <= 15 else s.n - 15
    def waitall(s):
        s.a("  s_waitcnt lgkmcnt(0)"); s.done = s.n

def wreg(n):
    return f"a[{4*n}:{4*n+3}]" if n < 64 else f"v[{112+4*(n-64)}:{112+4*(n-64)+3}]"

def gen_chain(a, RS=10, CS=40, CS2=2, LIMIT=200000):
    name = "chain_kernel"
    khead(a, name)
    a(f"""
  s_cmp_ge_u32 s2, 256
  s_cbranch_scc1 chain_done
  s_load_dwordx2 s[4:5], s[0:1], 8       ; mem0
  s_load_dwordx2 s[6:7], s[0:1], 104     ; ws
  v_lshrrev_b32 v2, 6, v0
  v_and_b32 v3, 63, v0                   ; lane
  s_nop 0
  v_readfirstlane_b32 s8, v2             ; wave
  v_lshlrev_b32 v1, 4, v3                ; lane*16
  s_lshr_b32 s9, s2, 3                   ; h
  s_and_b32 s10, s2, 7                   ; j
  v_and_b32 v4, 15, v3                   ; m
  v_lshrrev_b32 v5, 4, v3                ; g
  s_waitcnt lgkmcnt(0)
  s_lshl_b32 s11, s9, 3
  s_lshl_b32 s12, s8, 1
  s_add_u32 s11, s11, s12
  s_mul_i32 s11, s11, 20480
  s_add_u32 s11, s11, 0x{WQKV_F:x}
  s_add_u32 s14, s6, s11
  s_addc_u32 s15, s7, 0                  ; q t0
  s_add_u32 s16, s14, 20480
  s_addc_u32 s17, s15, 0                 ; q t1
  s_add_u32 s18, s14, {256*20480}
  s_addc_u32 s19, s15, 0                 ; k t0
  s_add_u32 s20, s18, 20480
  s_addc_u32 s21, s19, 0
  s_add_u32 s22, s18, {256*20480}
  s_addc_u32 s23, s19, 0                 ; v t0
  s_add_u32 s24, s22, 20480
  s_addc_u32 s25, s23, 0
  v_mov_b32 v6, v1
""")
    for kt in range(20):
        for q in range(4):
            a(f"  global_load_dwordx4 {wreg(kt*4+q)}, v6, s[{14+2*q}:{15+2*q}]")
        if kt < 10:
            for t in range(2):
                a(f"  global_load_dwordx4 {wreg(80+kt*2+t)}, v6, s[{22+2*t}:{23+2*t}]")
        else:
            for t in range(2):
                a(f"""  s_mul_i32 s26, s8, 20480
  s_add_u32 m0, s26, {L_WV + ((kt-10)*2+t)*1024}
  s_nop 0
  global_load_lds_dwordx4 v6, s[{22+2*t}:{23+2*t}]""")
        a("  v_add_u32 v6, 0x400, v6")
    a(f"""
  s_mul_i32 s11, s10, 5
  s_lshl_b32 s11, s11, 7
  s_lshl_b32 s12, s9, 2
  s_add_u32 s11, s11, s12
  s_add_u32 s11, s11, s8
  s_lshl_b32 s11, s11, 10
  s_add_u32 s11, s11, 0x{WO_F:x}
  s_add_u32 s26, s6, s11
  s_addc_u32 s27, s7, 0
  s_lshl_b32 s12, s8, 10""")
    for c in range(5):
        a(f"""  s_add_u32 m0, s12, {L_WO + c*4096}
  s_nop 0
  global_load_lds_dwordx4 v1, s[26:27]
  s_add_u32 s26, s26, {128*1024}
  s_addc_u32 s27, s27, 0""")
    a(f"""
  v_mov_b32 v16, 0
  v_mov_b32 v17, 0
  v_mov_b32 v18, 0
  v_mov_b32 v19, 0
  v_lshlrev_b32 v7, 4, v0
  v_add_u32 v7, {L_MEM}, v7""")
    for i in range(5):
        a(f"  ds_write_b128 v7, v[16:19] offset:{i*4096}")
    a(f"""
  s_mul_i32 s11, s8, 160
  v_add_u32 v8, s11, v3                  ; c0
  v_lshlrev_b32 v9, 4, v8
  v_lshrrev_b32 v10, 5, v8
  v_lshlrev_b32 v10, 10, v10
  v_bfe_u32 v11, v8, 3, 2
  v_lshl_add_u32 v10, v11, 8, v10
  v_and_b32 v11, 7, v8
  v_lshl_add_u32 v10, v11, 4, v10
  v_add_u32 v10, {L_MEM}, v10
  v_and_b32 v11, 7, v8
  v_mul_u32_u24 v11, 0x500, v11
  v_lshrrev_b32 v12, 5, v8
  v_lshl_add_u32 v11, v12, 6, v11
  v_bfe_u32 v12, v8, 3, 2
  v_lshl_add_u32 v11, v12, 4, v11
  v_lshrrev_b32 v12, 1, v5
  v_lshlrev_b32 v12, 13, v12
  v_lshrrev_b32 v13, 2, v4
  v_lshl_add_u32 v12, v13, 12, v12
  v_and_b32 v13, 3, v4
  v_lshl_add_u32 v12, v13, 5, v12
  v_and_b32 v13, 1, v5
  v_lshl_add_u32 v12, v13, 4, v12
  v_lshlrev_b32 v13, 3, v3               ; lane*8
  s_mul_i32 s11, s10, 81920
  s_lshl_b32 s12, s9, 7
  s_add_u32 s11, s11, s12
  s_lshl_b32 s12, s8, 14
  s_add_u32 s11, s11, s12
  s_add_u32 s11, s11, 0x{P_OFF:x}
  s_add_u32 s28, s6, s11
  s_addc_u32 s29, s7, 0
  s_mul_i32 s11, s9, 5
  s_add_u32 s11, s11, s10                ; r
  s_lshl_b32 s12, s11, 12
  s_add_u32 s12, s12, 0x{P_OFF:x}
  s_add_u32 s30, s6, s12
  s_addc_u32 s31, s7, 0
  s_lshl_b32 s12, s11, 6
  s_add_u32 s12, s12, 0x{MEM_F + 10240:x}
  s_add_u32 s32, s6, s12
  s_addc_u32 s33, s7, 0
  s_add_u32 s34, s6, 0x{MEM_F + 10240:x}
  s_addc_u32 s35, s7, 0
  s_cmp_lt_u32 s10, 5
  s_cselect_b32 s36, 1, 0
  s_cmp_eq_u32 s8, 3
  s_cselect_b32 s36, s36, 0
  s_lshl_b32 s11, s9, 13
  s_lshl_b32 s12, s8, 11
  s_add_u32 s11, s11, s12
  s_add_u32 s12, s11, 0x{K_F:x}
  s_add_u32 s38, s6, s12
  s_addc_u32 s39, s7, 0
  s_add_u32 s12, s11, 0x{V_F:x}
  s_add_u32 s40, s6, s12
  s_addc_u32 s41, s7, 0
  s_lshl_b32 s11, s9, 12
  s_lshl_b32 s12, s8, 10
  s_add_u32 s11, s11, s12
  s_add_u32 s12, s11, 0x{KM_F:x}
  s_add_u32 s42, s6, s12
  s_addc_u32 s43, s7, 0
  s_add_u32 s12, s11, 0x{VM_F:x}
  s_add_u32 s44, s6, s12
  s_addc_u32 s45, s7, 0
  v_add_u32 v14, {L_MEM}, v1
  s_mul_i32 s11, s8, 20480
  v_add_u32 v15, s11, v1
  s_mul_i32 s46, s8, 3072
  s_add_u32 s46, s46, {L_SC}
  s_lshl_b32 s47, s8, 10
  s_add_u32 s47, s47, {L_O}
  s_lshl_b32 s48, s8, 12
  s_add_u32 s48, s48, {L_WO}
  s_mov_b32 s49, 0                       ; step
  s_mov_b32 s50, 0
  s_mov_b32 s52, 0x3db504f3              ; scale
  s_mov_b32 s53, 0x3fb8aa3b              ; log2e
  s_mov_b32 s54, 0xffff0000
  global_load_dwordx4 v[72:75], v1, s[38:39]
  global_load_dwordx4 v[76:79], v1, s[38:39] offset:1024
  global_load_dwordx4 v[80:83], v1, s[40:41]
  global_load_dwordx4 v[84:87], v1, s[40:41] offset:1024
  v_mov_b32 v24, 0
  v_mov_b32 v25, 0
  v_mov_b32 v26, 0
  v_mov_b32 v27, 0
  global_load_dwordx4 v[16:19], v11, s[4:5]
  global_load_dwordx4 v[20:23], v11, s[4:5] offset:128
  v_cmp_gt_u32 vcc, 32, v3
  s_and_saveexec_b64 s[56:57], vcc
  global_load_dwordx4 v[24:27], v11, s[4:5] offset:256
  s_mov_b64 exec, s[56:57]
  s_waitcnt vmcnt(0) lgkmcnt(0)
  s_barrier
chain_step:
  ds_write_b128 v10, v[16:19]
  ds_write_b128 v10, v[20:23] offset:2048
  v_cmp_gt_u32 vcc, 32, v3
  s_and_saveexec_b64 s[56:57], vcc
  ds_write_b128 v10, v[24:27] offset:4096
  s_mov_b64 exec, s[56:57]
  s_waitcnt lgkmcnt(0)
  s_barrier
""")
    lk = LK(a)
    MB = lambda b: f"v[{16+4*b}:{19+4*b}]"
    QA = ["v[48:51]", "v[52:55]", "v[56:59]", "v[60:63]"]
    VA = ["v[64:67]", "v[68:71]"]
    ids = {}
    for kt in range(3): ids[kt] = lk.op(f"ds_read_b128 {MB(kt%4)}, v14 offset:{kt*1024}")
    for kt in range(20):
        if kt+3 < 20: ids[kt+3] = lk.op(f"ds_read_b128 {MB((kt+3)%4)}, v14 offset:{(kt+3)*1024}")
        lk.wait(ids[kt])
        for q in range(4):
            c = QA[q] if kt > 0 else "0"
            a(f"  v_mfma_f32_16x16x32_bf16 {QA[q]}, {wreg(kt*4+q)}, {MB(kt%4)}, {c}")
    ids2 = {}; wid = {}
    WB = lambda b, t: f"v[{32+8*b+4*t}:{35+8*b+4*t}]"
    def issue2(kt):
        if kt >= 20: return
        ids2[kt] = lk.op(f"ds_read_b128 {MB(kt%4)}, v14 offset:{kt*1024}")
        if kt >= 10:
            for t in range(2):
                wid[(kt,t)] = lk.op(f"ds_read_b128 {WB(kt%2,t)}, v15 offset:{((kt-10)*2+t)*1024}")
    state = {'k': 0}
    def vgroup(n=1):
        for _ in range(n):
            kt = state['k']
            if kt >= 20: return
            nxt = kt+2
            last = max(wid.get((kt,1), 0), ids2[kt])
            lk.wait(last)
            for t in range(2):
                c = VA[t] if kt > 0 else "0"
                w = wreg(80+kt*2+t) if kt < 10 else WB(kt%2, t)
                a(f"  v_mfma_f32_16x16x32_bf16 {VA[t]}, {MB(kt%4)}, {w}, {c}")
            issue2(nxt)
            state['k'] += 1
    issue2(0); issue2(1)
    vgroup(3)
    a("""  v_cvt_pk_bf16_f32 v88, v48, v49
  v_cvt_pk_bf16_f32 v89, v50, v51
  v_cvt_pk_bf16_f32 v90, v52, v53
  v_cvt_pk_bf16_f32 v91, v54, v55
  v_cvt_pk_bf16_f32 v92, v56, v57
  v_cvt_pk_bf16_f32 v93, v58, v59
  v_cvt_pk_bf16_f32 v94, v60, v61
  v_cvt_pk_bf16_f32 v95, v62, v63
  s_waitcnt vmcnt(0)
  s_cmp_eq_u32 s49, 63
  s_cbranch_scc1 chain_last
  v_mfma_f32_16x16x32_bf16 v[48:51], v[92:95], v[88:91], 0
  v_mfma_f32_16x16x32_bf16 v[52:55], v[72:75], v[88:91], 0
  v_mfma_f32_16x16x32_bf16 v[56:59], v[76:79], v[88:91], 0""")
    vgroup(3)
    a("  v_add_u32 v96, s46, v1")
    lk.op("ds_write_b128 v96, v[48:51]")
    lk.op("ds_write_b128 v96, v[52:55] offset:1024")
    w3 = lk.op("ds_write_b128 v96, v[56:59] offset:2048")
    vgroup(1)
    lk.waitall()
    a("  s_barrier")
    a(f"  v_add_u32 v96, {L_SC}, v1")
    r0 = [lk.op(f"ds_read_b128 v[{48+4*t}:{51+4*t}], v96 offset:{t*1024}") for t in range(3)]
    r1 = [lk.op(f"ds_read_b128 v[{100+4*t}:{103+4*t}], v96 offset:{3072+t*1024}") for t in range(3)]
    vgroup(2)
    lk.wait(r1[2])
    for i in range(12): a(f"  v_add_f32 v{48+i}, v{48+i}, v{100+i}")
    r2 = [lk.op(f"ds_read_b128 v[{100+4*t}:{103+4*t}], v96 offset:{6144+t*1024}") for t in range(3)]
    vgroup(2)
    lk.wait(r2[2])
    for i in range(12): a(f"  v_add_f32 v{48+i}, v{48+i}, v{100+i}")
    r3 = [lk.op(f"ds_read_b128 v[{100+4*t}:{103+4*t}], v96 offset:{9216+t*1024}") for t in range(3)]
    vgroup(2)
    lk.wait(r3[2])
    for i in range(12): a(f"  v_add_f32 v{48+i}, v{48+i}, v{100+i}")
    for i in range(0, 12, 2):
        a(f"""  v_cvt_pk_bf16_f32 v100, v{48+i}, v{49+i}
  v_lshlrev_b32 v{48+i}, 16, v100
  v_and_b32 v{49+i}, s54, v100
  v_mul_f32 v{48+i}, s52, v{48+i}
  v_mul_f32 v{49+i}, s52, v{49+i}
  v_cvt_pk_bf16_f32 v100, v{48+i}, v{49+i}
  v_lshlrev_b32 v{48+i}, 16, v100
  v_and_b32 v{49+i}, s54, v100""")
        if i % 4 == 2: vgroup(1)
    a("""  v_mov_b32 v101, 0xff800000
  v_cmp_lt_u32 vcc, 31, v3
  s_nop 1
  v_cndmask_b32 v48, v48, v101, vcc
  v_cndmask_b32 v49, v49, v101, vcc
  v_cndmask_b32 v50, v50, v101, vcc
  v_cndmask_b32 v51, v51, v101, vcc
  v_max3_f32 v100, v48, v49, v50
  v_max3_f32 v100, v100, v51, v52
  v_max3_f32 v100, v100, v53, v54
  v_max3_f32 v100, v100, v55, v56
  v_max3_f32 v100, v100, v57, v58
  v_max_f32 v100, v100, v59
  s_nop 1
  v_mov_b32 v101, v100
  s_nop 1
  v_permlane16_swap_b32 v100, v101
  v_max_f32 v100, v100, v101
  s_nop 1
  v_mov_b32 v101, v100
  s_nop 1
  v_permlane32_swap_b32 v100, v101
  v_max_f32 v100, v100, v101""")
    vgroup(1)
    for i in range(12):
        a(f"  v_sub_f32 v{48+i}, v{48+i}, v100\n  v_mul_f32 v{48+i}, s53, v{48+i}")
    for i in range(12):
        a(f"  v_exp_f32 v{48+i}, v{48+i}")
    vgroup(1)
    a("""  v_add_f32 v100, v48, v49
  v_add_f32 v101, v50, v51
  v_add_f32 v102, v52, v53
  v_add_f32 v103, v54, v55
  v_add_f32 v100, v100, v56
  v_add_f32 v101, v101, v57
  v_add_f32 v102, v102, v58
  v_add_f32 v103, v103, v59
  v_add_f32 v100, v100, v101
  v_add_f32 v102, v102, v103
  v_add_f32 v100, v100, v102
  s_nop 1
  v_mov_b32 v101, v100
  s_nop 1
  v_permlane16_swap_b32 v100, v101
  v_add_f32 v100, v100, v101
  s_nop 1
  v_mov_b32 v101, v100
  s_nop 1
  v_permlane32_swap_b32 v100, v101
  v_add_f32 v100, v100, v101
  v_rcp_f32 v101, v100
  s_nop 0
  v_fma_f32 v102, -v100, v101, 1.0
  v_fma_f32 v101, v102, v101, v101""")
    vgroup(20)
    for i in range(12): a(f"  v_mul_f32 v{48+i}, v{48+i}, v101")
    a("""  v_cvt_pk_bf16_f32 v100, v48, v49
  v_cvt_pk_bf16_f32 v101, v50, v51
  v_cvt_pk_bf16_f32 v104, v52, v53
  v_cvt_pk_bf16_f32 v105, v54, v55
  v_cvt_pk_bf16_f32 v106, v56, v57
  v_cvt_pk_bf16_f32 v107, v58, v59
  s_nop 3
  v_cvt_pk_bf16_f32 v96, v64, v65
  v_cvt_pk_bf16_f32 v97, v66, v67
  v_cvt_pk_bf16_f32 v98, v68, v69
  v_cvt_pk_bf16_f32 v99, v70, v71
  s_nop 1
  v_mfma_f32_16x16x16_bf16 v[48:51], v[96:97], v[100:101], 0
  v_mfma_f32_16x16x16_bf16 v[52:55], v[98:99], v[100:101], 0
  s_nop 7
  v_mfma_f32_16x16x32_bf16 v[48:51], v[80:83], v[104:107], v[48:51]
  v_mfma_f32_16x16x32_bf16 v[52:55], v[84:87], v[104:107], v[52:55]
  v_add_u32 v108, s47, v1
  v_add_u32 v109, s48, v1
  s_nop 7
  v_cvt_pk_bf16_f32 v56, v48, v49
  v_cvt_pk_bf16_f32 v57, v50, v51
  v_cvt_pk_bf16_f32 v58, v52, v53
  v_cvt_pk_bf16_f32 v59, v54, v55
  ds_write_b128 v108, v[56:59]
  ds_read_b128 v[16:19], v109
  ds_read_b128 v[20:23], v109 offset:1024
  ds_read_b128 v[24:27], v109 offset:2048
  ds_read_b128 v[28:31], v109 offset:3072
  s_waitcnt lgkmcnt(0)
  s_barrier
""")
    a(f"""  v_add_u32 v108, {L_O}, v1
  ds_read_b128 v[32:35], v108
  ds_read_b128 v[36:39], v108 offset:1024
  ds_read_b128 v[40:43], v108 offset:2048
  ds_read_b128 v[44:47], v108 offset:3072
  s_cmp_lg_u32 s8, 0
  s_cbranch_scc1 chain_wo1
  v_add_u32 v109, {L_WO + 16384}, v1
  ds_read_b128 v[48:51], v109
  ds_read_b128 v[52:55], v109 offset:1024
  ds_read_b128 v[56:59], v109 offset:2048
  ds_read_b128 v[60:63], v109 offset:3072
  s_waitcnt lgkmcnt(0)
  v_mfma_f32_16x16x32_bf16 v[104:107], v[48:51], v[32:35], 0
  v_mfma_f32_16x16x32_bf16 v[104:107], v[52:55], v[36:39], v[104:107]
  v_mfma_f32_16x16x32_bf16 v[104:107], v[56:59], v[40:43], v[104:107]
  v_mfma_f32_16x16x32_bf16 v[104:107], v[60:63], v[44:47], v[104:107]
chain_wo1:
  s_waitcnt lgkmcnt(0)
  v_mfma_f32_16x16x32_bf16 v[100:103], v[16:19], v[32:35], 0
  v_mfma_f32_16x16x32_bf16 v[100:103], v[20:23], v[36:39], v[100:103]
  v_mfma_f32_16x16x32_bf16 v[100:103], v[24:27], v[40:43], v[100:103]
  v_mfma_f32_16x16x32_bf16 v[100:103], v[28:31], v[44:47], v[100:103]
  s_add_u32 s58, s28, s50
  s_addc_u32 s59, s29, 0
  v_cmp_gt_u32 vcc, 8, v4
  s_and_saveexec_b64 s[56:57], vcc
  s_nop 7
  global_store_dwordx4 v12, v[100:103], s[58:59] sc1
  s_cmp_lg_u32 s8, 0
  s_cbranch_scc1 chain_st1
  s_add_u32 s58, s58, 65536
  s_addc_u32 s59, s59, 0
  global_store_dwordx4 v12, v[104:107], s[58:59] sc1
chain_st1:
  s_mov_b64 exec, s[56:57]
  s_cmp_lg_u32 s10, 0
  s_cbranch_scc1 chain_nokm
  global_store_dwordx4 v1, v[92:95], s[42:43]
  global_store_dwordx2 v13, v[96:97], s[44:45]
  global_store_dwordx2 v13, v[98:99], s[44:45] offset:512
chain_nokm:
  s_add_u32 s42, s42, 0x20000
  s_addc_u32 s43, s43, 0
  s_add_u32 s44, s44, 0x20000
  s_addc_u32 s45, s45, 0
  s_add_u32 s38, s38, 0x40000
  s_addc_u32 s39, s39, 0
  s_add_u32 s40, s40, 0x40000
  s_addc_u32 s41, s41, 0
  global_load_dwordx4 v[72:75], v1, s[38:39]
  global_load_dwordx4 v[76:79], v1, s[38:39] offset:1024
  global_load_dwordx4 v[80:83], v1, s[40:41]
  global_load_dwordx4 v[84:87], v1, s[40:41] offset:1024
  ; ---- reducer
  s_cmp_eq_u32 s36, 0
  s_cbranch_scc1 chain_cons
  s_add_u32 s58, s30, s50
  s_addc_u32 s59, s31, 0
  s_mov_b32 s60, 0
chain_rpoll:
  s_sleep {RS}
  global_load_dwordx4 v[16:19], v1, s[58:59] sc1
  global_load_dwordx4 v[20:23], v1, s[58:59] offset:1024 sc1
  global_load_dwordx4 v[24:27], v1, s[58:59] offset:2048 sc1
  global_load_dwordx4 v[28:31], v1, s[58:59] offset:3072 sc1
  s_waitcnt vmcnt(0)
  v_max3_u32 v32, v16, v17, v18
  v_max3_u32 v33, v19, v20, v21
  v_max3_u32 v34, v22, v23, v24
  v_max3_u32 v35, v25, v26, v27
  v_max3_u32 v32, v32, v28, v29
  v_max3_u32 v33, v33, v30, v31
  v_max3_u32 v32, v32, v34, v35
  v_max_u32 v32, v32, v33
  v_cmp_eq_u32 vcc, -1, v32
  s_add_u32 s60, s60, 1
  s_cmp_gt_u32 s60, {LIMIT}
  s_cbranch_scc1 chain_rdone
  s_cbranch_vccnz chain_rpoll
chain_rdone:
  v_add_f32 v16, v16, v20
  v_add_f32 v17, v17, v21
  v_add_f32 v18, v18, v22
  v_add_f32 v19, v19, v23
  v_add_f32 v24, v24, v28
  v_add_f32 v25, v25, v29
  v_add_f32 v26, v26, v30
  v_add_f32 v27, v27, v31
  v_add_f32 v16, v16, v24
  v_add_f32 v17, v17, v25
  v_add_f32 v18, v18, v26
  v_add_f32 v19, v19, v27
  s_nop 1
  v_add_f32_dpp v16, v16, v16 row_ror:8 row_mask:0xf bank_mask:0xf
  v_add_f32_dpp v17, v17, v17 row_ror:8 row_mask:0xf bank_mask:0xf
  v_add_f32_dpp v18, v18, v18 row_ror:8 row_mask:0xf bank_mask:0xf
  v_add_f32_dpp v19, v19, v19 row_ror:8 row_mask:0xf bank_mask:0xf
  v_mov_b32 v20, v16
  v_mov_b32 v21, v17
  v_mov_b32 v22, v18
  v_mov_b32 v23, v19
  s_nop 1
  v_permlane16_swap_b32 v16, v20
  v_permlane16_swap_b32 v17, v21
  v_permlane16_swap_b32 v18, v22
  v_permlane16_swap_b32 v19, v23
  v_add_f32 v16, v16, v20
  v_add_f32 v17, v17, v21
  v_add_f32 v18, v18, v22
  v_add_f32 v19, v19, v23
  v_mov_b32 v20, v16
  v_mov_b32 v21, v17
  v_mov_b32 v22, v18
  v_mov_b32 v23, v19
  s_nop 1
  v_permlane32_swap_b32 v16, v20
  v_permlane32_swap_b32 v17, v21
  v_permlane32_swap_b32 v18, v22
  v_permlane32_swap_b32 v19, v23
  v_add_f32 v16, v16, v20
  v_add_f32 v17, v17, v21
  v_add_f32 v18, v18, v22
  v_add_f32 v19, v19, v23
  v_cvt_pk_bf16_f32 v20, v16, v17
  v_cvt_pk_bf16_f32 v21, v18, v19
  v_cmp_gt_u32 vcc, 8, v3
  s_and_saveexec_b64 s[56:57], vcc
  global_store_dwordx2 v13, v[20:21], s[32:33] sc1
  s_mov_b64 exec, s[56:57]
  v_mov_b32 v24, -1
  v_mov_b32 v25, -1
  v_mov_b32 v26, -1
  v_mov_b32 v27, -1
  global_store_dwordx4 v1, v[24:27], s[58:59] sc1
  global_store_dwordx4 v1, v[24:27], s[58:59] offset:1024 sc1
  global_store_dwordx4 v1, v[24:27], s[58:59] offset:2048 sc1
  global_store_dwordx4 v1, v[24:27], s[58:59] offset:3072 sc1
  s_add_u32 s32, s32, 10240
  s_addc_u32 s33, s33, 0
  s_mov_b32 s60, 0
  s_branch chain_cpoll2
chain_cons:
  s_mov_b32 s60, 0
  s_sleep {CS}
chain_cpoll2:
  v_mov_b32 v24, 0
  v_mov_b32 v25, 0
  v_mov_b32 v26, 0
  v_mov_b32 v27, 0
chain_cpoll:
  s_sleep {CS2}
  global_load_dwordx4 v[16:19], v9, s[34:35] sc1
  global_load_dwordx4 v[20:23], v9, s[34:35] offset:1024 sc1
  v_cmp_gt_u32 vcc, 32, v3
  s_and_saveexec_b64 s[56:57], vcc
  global_load_dwordx4 v[24:27], v9, s[34:35] offset:2048 sc1
  s_mov_b64 exec, s[56:57]
  s_waitcnt vmcnt(0)
  v_max3_u32 v32, v16, v17, v18
  v_max3_u32 v33, v19, v20, v21
  v_max3_u32 v34, v22, v23, v24
  v_max3_u32 v32, v32, v25, v26
  v_max3_u32 v33, v33, v27, v34
  v_max_u32 v32, v32, v33
  v_cmp_eq_u32 vcc, -1, v32
  s_add_u32 s60, s60, 1
  s_cmp_gt_u32 s60, {LIMIT}
  s_cbranch_scc1 chain_cdone
  s_cbranch_vccnz chain_cpoll
chain_cdone:
  s_add_u32 s34, s34, 10240
  s_addc_u32 s35, s35, 0
  s_xor_b32 s50, s50, 655360
  s_add_u32 s49, s49, 1
  s_branch chain_step
chain_last:
""")
    lk2 = lk
    a("  s_waitcnt lgkmcnt(0)")
    for kt in range(3, 20):
        a(f"  ds_read_b128 {MB(0)}, v14 offset:{kt*1024}")
        if kt >= 10:
            for t in range(2): a(f"  ds_read_b128 {WB(0,t)}, v15 offset:{((kt-10)*2+t)*1024}")
        a("  s_waitcnt lgkmcnt(0)")
        for t in range(2):
            w = wreg(80+kt*2+t) if kt < 10 else WB(0, t)
            a(f"  v_mfma_f32_16x16x32_bf16 {VA[t]}, {MB(0)}, {w}, {VA[t]}")
        a("  s_nop 7")
    a("""  s_nop 7
  v_cvt_pk_bf16_f32 v96, v64, v65
  v_cvt_pk_bf16_f32 v97, v66, v67
  v_cvt_pk_bf16_f32 v98, v68, v69
  v_cvt_pk_bf16_f32 v99, v70, v71
  s_cmp_lg_u32 s10, 0
  s_cbranch_scc1 chain_done
  global_store_dwordx4 v1, v[92:95], s[42:43]
  global_store_dwordx2 v13, v[96:97], s[44:45]
  global_store_dwordx2 v13, v[98:99], s[44:45] offset:512
chain_done:
  s_endpgm""")
    return kd(name, 512, 72, 256)
```

```python
from common import *
from gen import A, kd, khead, Gemm, emit_ln

def gen_attn(a):
    name = "attn_kernel"
    khead(a, name)
    a(f"""
  s_cmp_ge_u32 s2, 512
  s_cbranch_scc1 attn_done
  s_load_dwordx2 s[6:7], s[0:1], 104
  v_lshrrev_b32 v2, 6, v0
  v_and_b32 v3, 63, v0
  s_nop 0
  v_readfirstlane_b32 s8, v2
  v_lshlrev_b32 v1, 4, v3
  v_lshlrev_b32 v7, 3, v3
  v_and_b32 v4, 15, v3                ; q local
  v_lshrrev_b32 v5, 4, v3             ; g
  s_lshl_b32 s9, s2, 2
  s_add_u32 s9, s9, s8
  s_waitcnt lgkmcnt(0)
  s_lshl_b32 s10, s9, 13
  s_add_u32 s11, s10, 0x{Q_F:x}
  s_add_u32 s12, s6, s11
  s_addc_u32 s13, s7, 0
  s_add_u32 s11, s10, 0x{K_F:x}
  s_add_u32 s14, s6, s11
  s_addc_u32 s15, s7, 0
  s_add_u32 s11, s10, 0x{V_F:x}
  s_add_u32 s16, s6, s11
  s_addc_u32 s17, s7, 0
  s_lshl_b32 s10, s9, 12
  s_add_u32 s11, s10, 0x{KM_F:x}
  s_add_u32 s18, s6, s11
  s_addc_u32 s19, s7, 0
  s_add_u32 s11, s10, 0x{VM_F:x}
  s_add_u32 s20, s6, s11
  s_addc_u32 s21, s7, 0
  v_add_u32 v6, 0x1000, v1
""")
    for f in range(8):
        vo = "v1" if f < 4 else "v6"
        a(f"  global_load_dwordx4 v[{16+4*f}:{19+4*f}], {vo}, s[12:13] offset:{(f%4)*1024}")
        a(f"  global_load_dwordx4 v[{48+4*f}:{51+4*f}], {vo}, s[14:15] offset:{(f%4)*1024}")
    for w in range(4):
        a(f"  global_load_dwordx4 v[{80+4*w}:{83+4*w}], v1, s[18:19] offset:{w*1024}")
    for f in range(8):
        vo = "v1" if f < 4 else "v6"
        a(f"  global_load_dwordx4 v[{96+4*f}:{99+4*f}], {vo}, s[16:17] offset:{(f%4)*1024}")
    for f in range(8):
        a(f"  global_load_dwordx2 v[{128+2*f}:{129+2*f}], v7, s[20:21] offset:{f*512}")
    a("  s_waitcnt vmcnt(16)")
    tiles = [(0,'M',144),(0,0,148),(1,'M',152),(1,0,156),(1,1,160)]
    for w in range(4):
        for (tt, kt, acc) in tiles:
            Kf = f"v[{80+4*w}:{83+4*w}]" if kt == 'M' else f"v[{48+4*(w*2+kt)}:{51+4*(w*2+kt)}]"
            Qf = f"v[{16+4*(w*2+tt)}:{19+4*(w*2+tt)}]"
            c = f"v[{acc}:{acc+3}]" if w > 0 else "0"
            a(f"  v_mfma_f32_16x16x32_bf16 v[{acc}:{acc+3}], {Kf}, {Qf}, {c}")
    a("""  s_mov_b32 s52, 0x3db504f3
  s_mov_b32 s53, 0x3fb8aa3b
  s_mov_b32 s54, 0xffff0000
  v_mov_b32 v8, 0xff800000
  v_lshlrev_b32 v9, 2, v5             ; 4g
  s_nop 4""")
    for i in range(144, 164, 2):
        a(f"""  v_cvt_pk_bf16_f32 v10, v{i}, v{i+1}
  v_lshlrev_b32 v{i}, 16, v10
  v_and_b32 v{i+1}, s54, v10
  v_mul_f32 v{i}, s52, v{i}
  v_mul_f32 v{i+1}, s52, v{i+1}
  v_cvt_pk_bf16_f32 v10, v{i}, v{i+1}
  v_lshlrev_b32 v{i}, 16, v10
  v_and_b32 v{i+1}, s54, v10""")
    a("  v_cmp_lt_u32 vcc, 31, v3\n  s_nop 1")
    for b in (144, 152):
        for r in range(4): a(f"  v_cndmask_b32 v{b+r}, v{b+r}, v8, vcc")
    for r in range(4):
        a(f"  v_add_u32 v10, {r}, v9\n  v_cmp_gt_u32 vcc, v10, v4\n  s_nop 1")
        a(f"  v_cndmask_b32 v{148+r}, v{148+r}, v8, vcc\n  v_cndmask_b32 v{160+r}, v{160+r}, v8, vcc")
    def softmax(regs, tmp):
        n = len(regs)
        a(f"  v_max3_f32 v{tmp}, v{regs[0]}, v{regs[1]}, v{regs[2]}")
        i = 3
        while i < n:
            if i+1 < n: a(f"  v_max3_f32 v{tmp}, v{tmp}, v{regs[i]}, v{regs[i+1]}"); i += 2
            else: a(f"  v_max_f32 v{tmp}, v{tmp}, v{regs[i]}"); i += 1
        for sw in ("16", "32"):
            a(f"""  s_nop 1
  v_mov_b32 v{tmp+1}, v{tmp}
  s_nop 1
  v_permlane{sw}_swap_b32 v{tmp}, v{tmp+1}
  v_max_f32 v{tmp}, v{tmp}, v{tmp+1}""")
        for r in regs: a(f"  v_sub_f32 v{r}, v{r}, v{tmp}\n  v_mul_f32 v{r}, s53, v{r}")
        for r in regs: a(f"  v_exp_f32 v{r}, v{r}")
        a(f"  s_nop 0\n  v_add_f32 v{tmp}, v{regs[0]}, v{regs[1]}")
        for r in regs[2:]: a(f"  v_add_f32 v{tmp}, v{tmp}, v{r}")
        for sw in ("16", "32"):
            a(f"""  s_nop 1
  v_mov_b32 v{tmp+1}, v{tmp}
  s_nop 1
  v_permlane{sw}_swap_b32 v{tmp}, v{tmp+1}
  v_add_f32 v{tmp}, v{tmp}, v{tmp+1}""")
        a(f"""  v_rcp_f32 v{tmp+1}, v{tmp}
  s_nop 0
  v_fma_f32 v{tmp+2}, -v{tmp}, v{tmp+1}, 1.0
  v_fma_f32 v{tmp+1}, v{tmp+2}, v{tmp+1}, v{tmp+1}""")
        for r in regs: a(f"  v_mul_f32 v{r}, v{r}, v{tmp+1}")
    softmax(list(range(144, 152)), 10)
    softmax(list(range(152, 164)), 10)
    a("""  v_cvt_pk_bf16_f32 v164, v144, v145
  v_cvt_pk_bf16_f32 v165, v146, v147
  v_cvt_pk_bf16_f32 v166, v148, v149
  v_cvt_pk_bf16_f32 v167, v150, v151
  v_mov_b32 v168, 0
  v_mov_b32 v169, 0
  v_cvt_pk_bf16_f32 v170, v152, v153
  v_cvt_pk_bf16_f32 v171, v154, v155
  v_cvt_pk_bf16_f32 v172, v156, v157
  v_cvt_pk_bf16_f32 v173, v158, v159
  v_cvt_pk_bf16_f32 v174, v160, v161
  v_cvt_pk_bf16_f32 v175, v162, v163
  s_waitcnt vmcnt(0)""")
    for tt in range(2):
        pm = "v[164:165]" if tt == 0 else "v[170:171]"
        for et in range(8):
            acc = 16+4*(tt*8+et)
            a(f"  v_mfma_f32_16x16x16_bf16 v[{acc}:{acc+3}], v[{128+2*et}:{129+2*et}], {pm}, 0")
    for tt in range(2):
        px = "v[166:169]" if tt == 0 else "v[172:175]"
        for et in range(8):
            acc = 16+4*(tt*8+et)
            a(f"  v_mfma_f32_16x16x32_bf16 v[{acc}:{acc+3}], v[{96+4*et}:{99+4*et}], {px}, v[{acc}:{acc+3}]")
    a(f"""  s_lshr_b32 s10, s9, 5
  s_and_b32 s11, s9, 31
  s_lshl_b32 s10, s10, 18             ; seg*2*128*1024
  s_lshl_b32 s11, s11, 12
  s_add_u32 s10, s10, s11
  s_add_u32 s10, s10, 0x{O_F:x}
  s_add_u32 s22, s6, s10
  s_addc_u32 s23, s7, 0
  s_add_u32 s24, s22, 0x20000
  s_addc_u32 s25, s23, 0
  s_nop 4""")
    for tt in range(2):
        for wp in range(4):
            b = 16+4*(tt*8+2*wp)
            a(f"""  v_cvt_pk_bf16_f32 v{80+4*wp}, v{b}, v{b+1}
  v_cvt_pk_bf16_f32 v{81+4*wp}, v{b+2}, v{b+3}
  v_cvt_pk_bf16_f32 v{82+4*wp}, v{b+4}, v{b+5}
  v_cvt_pk_bf16_f32 v{83+4*wp}, v{b+6}, v{b+7}
  global_store_dwordx4 v1, v[{80+4*wp}:{83+4*wp}], s[{22+2*tt}:{23+2*tt}] offset:{wp*1024}""")
        a("  s_nop 1")
    a("attn_done:\n  s_endpgm")
    return kd(name, 176, 64, 176)

def resid_epilogue(a, g, s_res, s_dst):
    a(f"""  v_and_b32 v5, 15, v0
  v_bfe_u32 v6, v0, 4, 2              ; g
  s_mul_i32 s10, s20, {g.MT}
  s_mul_i32 s11, s23, {g.mt}
  s_add_u32 s10, s10, s11
  s_lshl_b32 s10, s10, 4              ; token0
  v_add_u32 v5, s10, v5
  v_mul_u32_u24 v5, 0x500, v5
  s_mul_i32 s10, s21, {g.NT}
  s_mul_i32 s11, s24, {g.nt}
  s_add_u32 s10, s10, s11
  s_lshl_b32 s10, s10, 5
  v_lshl_add_u32 v5, v6, 3, v5
  v_add_u32 v5, s10, v5
  s_mov_b32 s54, 0xffff0000""")
    k = 0
    for i in range(g.mt):
        for j in range(g.nt):
            a(f"  global_load_dwordx2 v[{32+2*k}:{33+2*k}], v5, s[{s_res}:{s_res+1}] offset:{j*32}")
            k += 1
        if i+1 < g.mt: a(f"  v_add_u32 v5, {16*1280}, v5")
    a(f"  v_subrev_u32 v5, {16*1280*(g.mt-1)}, v5")
    k = 0; n = g.mt*g.nt
    for i in range(g.mt):
        for j in range(g.nt):
            acc = 4*(i*g.nt+j)
            for r in range(4): a(f"  v_accvgpr_read_b32 v{8+r}, a{acc+r}")
            a(f"""  v_cvt_pk_bf16_f32 v12, v8, v9
  v_cvt_pk_bf16_f32 v13, v10, v11
  v_lshlrev_b32 v8, 16, v12
  v_and_b32 v9, s54, v12
  v_lshlrev_b32 v10, 16, v13
  v_and_b32 v11, s54, v13
  s_waitcnt vmcnt({n-1-k})
  v_lshlrev_b32 v14, 16, v{32+2*k}
  v_and_b32 v15, s54, v{32+2*k}
  v_lshlrev_b32 v16, 16, v{33+2*k}
  v_and_b32 v17, s54, v{33+2*k}
  v_add_f32 v8, v8, v14
  v_add_f32 v9, v9, v15
  v_add_f32 v10, v10, v16
  v_add_f32 v11, v11, v17
  v_cvt_pk_bf16_f32 v{20+2*(k%4)}, v8, v9
  v_cvt_pk_bf16_f32 v{21+2*(k%4)}, v10, v11
  global_store_dwordx2 v5, v[{20+2*(k%4)}:{21+2*(k%4)}], s[{s_dst}:{s_dst+1}] offset:{j*32}""")
            k += 1; n += 1
        if i+1 < g.mt: a(f"  v_add_u32 v5, {16*1280}, v5")

MAP64 = """
  s_mov_b32 s12, 0x1999999a
  s_mul_hi_u32 s20, s2, s12
  s_mul_i32 s13, s20, 10
  s_sub_u32 s21, s2, s13              ; nb = wg%10
"""
def gen_wo(a):
    g = Gemm("wo_kernel", MT=4, NT=4, KT=128, NS=4, WM=2, WN=2, x_off=O_F, w_off=WO_F, nwg=320)
    khead(a, g.name); g.prologue(a, MAP64)
    g.mainloop(a, True, "")
    a(f"  s_add_u32 s14, s6, 0x{H_RM:x}\n  s_addc_u32 s15, s7, 0")
    resid_epilogue(a, g, 4, 14)
    a("wo_kernel_done:\n  s_endpgm")
    return kd(g.name, 64+16, 64, 64), g

def gen_ffn2(a):
    g = Gemm("ffn2_kernel", MT=4, NT=4, KT=54, NS=4, WM=2, WN=2, x_off=ACT_F, w_off=WD_F, nwg=320)
    khead(a, g.name); g.prologue(a, MAP64)
    g.mainloop(a, True, "")
    a(f"  s_add_u32 s14, s6, 0x{H_RM:x}\n  s_addc_u32 s15, s7, 0")
    resid_epilogue(a, g, 14, 8)
    a("ffn2_kernel_done:\n  s_endpgm")
    return kd(g.name, 64+16, 64, 64), g

def gen_ln2(a):
    name = "ln2_kernel"
    khead(a, name)
    a(f"""
  s_cmp_ge_u32 s2, 32
  s_cbranch_scc1 ln2_done
  s_load_dwordx2 s[6:7], s[0:1], 104
  v_lshrrev_b32 v1, 6, v0
  v_and_b32 v2, 63, v0
  s_nop 0
  v_readfirstlane_b32 s22, v1
  s_lshl_b32 s23, s2, 2
  s_nop 2
  s_add_u32 s23, s23, s22
  s_waitcnt lgkmcnt(0)
  s_add_u32 s4, s6, 0x{H_RM:x}
  s_addc_u32 s5, s7, 0""")
    emit_ln(a, "l", 4, 23, 6, HN_F, 2)
    a("ln2_done:\n  s_endpgm")
    return kd(name, 128, 64, 128)

def gen_ffn1(a):
    g = Gemm("ffn1_kernel", MT=8, NT=8, KT=20, NS=4, WM=2, WN=2, x_off=HN_F, w_off=WGU_F, nwg=432)
    khead(a, g.name)
    g.prologue(a, """
  s_mov_b32 s12, 0x97b425f                ; ceil(2^32/27)
  s_mul_hi_u32 s20, s2, s12
  s_mul_i32 s13, s20, 27
  s_sub_u32 s21, s2, s13              ; nb = wg%27
""")
    g.mainloop(a, True, "")
    a(f"""  s_lshl_b32 s10, s20, 3
  s_lshl_b32 s11, s23, 2
  s_add_u32 s10, s10, s11
  s_mul_i32 s10, s10, 54
  s_lshl_b32 s11, s21, 1
  s_add_u32 s10, s10, s11
  s_add_u32 s10, s10, s24
  s_lshl_b32 s10, s10, 10
  s_add_u32 s10, s10, 0x{ACT_F:x}
  s_add_u32 s14, s6, s10
  s_addc_u32 s15, s7, 0
  s_mov_b32 s54, 0xffff0000""")
    for i in range(4):
        for t in range(2):
            ag = 4*(i*4+t); au = 4*(i*4+2+t)
            for r in range(4): a(f"  v_accvgpr_read_b32 v{8+r}, a{ag+r}\n  v_accvgpr_read_b32 v{12+r}, a{au+r}")
            a(f"""  v_cvt_pk_bf16_f32 v16, v8, v9
  v_cvt_pk_bf16_f32 v17, v10, v11
  v_cvt_pk_bf16_f32 v18, v12, v13
  v_cvt_pk_bf16_f32 v19, v14, v15
  v_lshlrev_b32 v8, 16, v16
  v_and_b32 v9, s54, v16
  v_lshlrev_b32 v10, 16, v17
  v_and_b32 v11, s54, v17
  v_lshlrev_b32 v12, 16, v18
  v_and_b32 v13, s54, v18
  v_lshlrev_b32 v14, 16, v19
  v_and_b32 v15, s54, v19
  v_max_f32 v8, 0, v8
  v_max_f32 v9, 0, v9
  v_max_f32 v10, 0, v10
  v_max_f32 v11, 0, v11
  v_mul_f32 v8, v8, v12
  v_mul_f32 v9, v9, v13
  v_mul_f32 v10, v10, v14
  v_mul_f32 v11, v11, v15
  v_cvt_pk_bf16_f32 v{20+4*(i%2)+2*t}, v8, v9
  v_cvt_pk_bf16_f32 v{21+4*(i%2)+2*t}, v10, v11""")
        a(f"  global_store_dwordx4 v1, v[{20+4*(i%2)}:{23+4*(i%2)}], s[14:15]")
        a(f"  s_add_u32 s14, s14, {54*1024}\n  s_addc_u32 s15, s15, 0")
    a("ffn1_kernel_done:\n  s_endpgm")
    return kd(g.name, 64+64, 64, 64), g
```

```python
import sys
from common import *

class A:
    def __init__(s): s.l = []
    def __call__(s, t):
        for x in t.strip('\n').split('\n'): s.l.append(x)
    def text(s): return '\n'.join(s.l) + '\n'

def kd(name, vgpr, sgpr, accum):
    return f""".amdhsa_kernel {name}
  .amdhsa_next_free_vgpr {vgpr}
  .amdhsa_next_free_sgpr {sgpr}
  .amdhsa_accum_offset {accum}
  .amdhsa_group_segment_fixed_size 0
  .amdhsa_kernarg_size 112
  .amdhsa_user_sgpr_count 2
  .amdhsa_user_sgpr_kernarg_segment_ptr 1
  .amdhsa_system_sgpr_workgroup_id_x 1
.end_amdhsa_kernel
"""

def khead(a, name):
    a(f""".globl {name}
.p2align 8
.type {name},@function
{name}:""")

def emit_ln(a, tag, s_src, s_rt, s_ws, dst_off, v_lane):
    a(f"""
  v_and_b32 v4, 15, v{v_lane}          ; r
  v_lshrrev_b32 v5, 4, v{v_lane}       ; g
  s_lshl_b32 s40, s{s_rt}, 4
  v_add_u32 v4, s40, v4                ; row
  v_mul_u32_u24 v4, 0x500, v4          ; row*1280
  v_lshl_add_u32 v4, v5, 4, v4         ; + g*16
""")
    for kt in range(20):
        a(f"  global_load_dwordx4 v[{16+4*kt}:{19+4*kt}], v4, s[{s_src}:{s_src+1}] offset:{kt*64}")
    a("  v_mov_b32 v6, 0\n  v_mov_b32 v7, 0")
    a("  s_mov_b32 s41, 0xffff0000")
    for kt in range(20):
        a(f"  s_waitcnt vmcnt({19-kt})")
        for j in range(4):
            r = 16+4*kt+j
            a(f"""  v_lshlrev_b32 v8, 16, v{r}
  v_and_b32 v9, s41, v{r}
  v_add_f32 v6, v6, v8
  v_add_f32 v7, v7, v9""")
    a("""  v_add_f32 v6, v6, v7
  s_nop 1
  v_mov_b32 v7, v6
  s_nop 1
  v_permlane16_swap_b32 v6, v7
  v_add_f32 v6, v6, v7
  s_nop 1
  v_mov_b32 v7, v6
  s_nop 1
  v_permlane32_swap_b32 v6, v7
  v_add_f32 v6, v6, v7
  v_mul_f32 v6, 0x3acccccd, v6
  v_mov_b32 v10, 0
  v_mov_b32 v11, 0""")
    for kt in range(20):
        for j in range(4):
            r = 16+4*kt+j
            a(f"""  v_lshlrev_b32 v8, 16, v{r}
  v_and_b32 v9, s41, v{r}
  v_sub_f32 v8, v8, v6
  v_sub_f32 v9, v9, v6
  v_fmac_f32 v10, v8, v8
  v_fmac_f32 v11, v9, v9""")
    a("""  v_add_f32 v10, v10, v11
  s_nop 1
  v_mov_b32 v11, v10
  s_nop 1
  v_permlane16_swap_b32 v10, v11
  v_add_f32 v10, v10, v11
  s_nop 1
  v_mov_b32 v11, v10
  s_nop 1
  v_permlane32_swap_b32 v10, v11
  v_add_f32 v10, v10, v11
  v_mul_f32 v10, 0x3acccccd, v10       ; var
  v_cvt_pk_bf16_f32 v12, v6, v10
  v_lshlrev_b32 v6, 16, v12            ; mean_b
  v_and_b32 v10, s41, v12              ; var_b
  v_add_f32 v10, 0x3727c5ac, v10       ; + 1e-5
  v_cvt_pk_bf16_f32 v12, v10, v10
  v_lshlrev_b32 v10, 16, v12
  v_sqrt_f32 v10, v10
  s_nop 0
  v_cvt_pk_bf16_f32 v12, v10, v10
  v_lshlrev_b32 v10, 16, v12
  v_rcp_f32 v11, v10
  s_nop 0
  v_fma_f32 v12, -v10, v11, 1.0
  v_fma_f32 v11, v12, v11, v11         ; 1/den
""")
    a(f"""  s_mul_i32 s42, s{s_rt}, 20480
  s_add_u32 s42, s42, 0x{dst_off:x}
  s_add_u32 s44, s{s_ws}, s42
  s_addc_u32 s45, s{s_ws+1}, 0
  v_lshlrev_b32 v13, 4, v{v_lane}""")
    for kt in range(20):
        for j in range(4):
            r = 16+4*kt+j
            a(f"""  v_lshlrev_b32 v8, 16, v{r}
  v_and_b32 v9, s41, v{r}
  v_sub_f32 v8, v8, v6
  v_sub_f32 v9, v9, v6
  v_cvt_pk_bf16_f32 v14, v8, v9
  v_lshlrev_b32 v8, 16, v14
  v_and_b32 v9, s41, v14
  v_mul_f32 v8, v8, v11
  v_mul_f32 v9, v9, v11
  v_cvt_pk_bf16_f32 v{r}, v8, v9""")
        off = kt*1024
        if off < 4096:
            a(f"  global_store_dwordx4 v13, v[{16+4*kt}:{19+4*kt}], s[44:45] offset:{off}")
        else:
            if off % 4096 == 0:
                a("  s_add_u32 s44, s44, 0x1000\n  s_addc_u32 s45, s45, 0")
            a(f"  global_store_dwordx4 v13, v[{16+4*kt}:{19+4*kt}], s[44:45] offset:{off % 4096}")

NJ_LN, NJ_QKV, NJ_WO, NJ_GU, NJ_WD = 128, 768, 320, 216, 120
CLR_BYTES = P_BYTES + 64*10240
NJ_CLR = (CLR_BYTES + 16383)//16384
PREP_WAVES = NJ_LN+NJ_QKV+NJ_WO+NJ_GU+NJ_WD+NJ_CLR
PREP_WGS = (PREP_WAVES+3)//4

def gen_prep(a):
    name = "prep_kernel"
    khead(a, name)
    b0 = NJ_LN; b1 = b0+NJ_QKV; b2 = b1+NJ_WO; b3 = b2+NJ_GU; b4 = b3+NJ_WD; b5 = b4+NJ_CLR
    a(f"""
  s_load_dwordx2 s[4:5], s[0:1], 0
  s_load_dwordx2 s[6:7], s[0:1], 104
  s_load_dwordx4 s[8:11], s[0:1], 16
  s_load_dwordx4 s[12:15], s[0:1], 32
  s_load_dwordx4 s[16:19], s[0:1], 64
  s_load_dwordx2 s[20:21], s[0:1], 80
  v_lshrrev_b32 v1, 6, v0
  v_and_b32 v2, 63, v0
  s_nop 0
  v_readfirstlane_b32 s22, v1
  s_lshl_b32 s23, s2, 2
  s_nop 2
  s_add_u32 s23, s23, s22
  s_waitcnt lgkmcnt(0)
  s_cmp_ge_u32 s23, {b5}
  s_cbranch_scc1 prep_done
  s_cmp_lt_u32 s23, {b0}
  s_cbranch_scc1 prep_ln
  s_cmp_ge_u32 s23, {b4}
  s_cbranch_scc1 prep_clr
  s_cmp_lt_u32 s23, {b1}
  s_cbranch_scc1 prep_qkv
  s_cmp_lt_u32 s23, {b2}
  s_cbranch_scc1 prep_wo
  s_cmp_lt_u32 s23, {b3}
  s_cbranch_scc1 prep_gu
  ; ---- Wd: j = s23-b3 ; nt=j/3 chunk=j%3
  s_sub_u32 s24, s23, {b3}
  s_mov_b32 s25, 0x55555556
  s_mul_hi_u32 s26, s24, s25          ; nt
  s_mul_i32 s27, s26, 3
  s_sub_u32 s27, s24, s27             ; chunk
  s_mul_i32 s27, s27, 18              ; kt0
  s_mov_b32 s28, s20
  s_mov_b32 s29, s21
  s_mov_b32 s30, 1280
  s_lshl_b32 s31, s26, 4              ; n0
  s_mov_b32 s32, 18                   ; KC
  s_mul_i32 s33, s26, 54
  s_add_u32 s33, s33, s27
  s_lshl_b32 s33, s33, 10
  s_add_u32 s33, s33, 0x{WD_F:x}
  s_mov_b32 s34, 4                    ; A (perm)
  s_mov_b32 s35, 16                   ; B
  s_branch prep_rl
prep_gu:
  s_sub_u32 s24, s23, {b2}
  s_lshr_b32 s26, s24, 3
  s_lshl_b32 s26, s26, 2              ; G*4
  s_bfe_u32 s27, s24, 0x10002
  s_lshl_b32 s27, s27, 1
  s_add_u32 s26, s26, s27
  s_and_b32 s27, s24, 1
  s_add_u32 s26, s26, s27
  s_bitcmp1_b32 s24, 1
  s_cselect_b32 s28, s18, s16
  s_cselect_b32 s29, s19, s17
  s_mov_b32 s30, {F*2}
  s_lshl_b32 s31, s26, 4
  s_mov_b32 s27, 0
  s_mov_b32 s32, 20
  s_mul_i32 s33, s24, 20480
  s_add_u32 s33, s33, 0x{WGU_F:x}
  s_mov_b32 s34, 8
  s_mov_b32 s35, 4
  s_branch prep_rl
prep_wo:
  s_sub_u32 s24, s23, {b1}
  s_lshr_b32 s26, s24, 3              ; nt
  s_and_b32 s27, s24, 7
  s_lshl_b32 s27, s27, 4              ; kt0
  s_mov_b32 s28, s14
  s_mov_b32 s29, s15
  s_mov_b32 s30, 1280
  s_lshl_b32 s31, s26, 4
  s_mov_b32 s32, 16
  s_lshl_b32 s33, s26, 7
  s_add_u32 s33, s33, s27
  s_lshl_b32 s33, s33, 10
  s_add_u32 s33, s33, 0x{WO_F:x}
  s_mov_b32 s34, 4
  s_mov_b32 s35, 16
  s_branch prep_rl
prep_qkv:
  s_sub_u32 s24, s23, {b0}
  s_lshr_b32 s26, s24, 8              ; type
  s_and_b32 s27, s24, 255             ; nt
  s_mov_b32 s28, s8
  s_mov_b32 s29, s9
  s_cmp_eq_u32 s26, 1
  s_cselect_b32 s28, s10, s28
  s_cselect_b32 s29, s11, s29
  s_cmp_eq_u32 s26, 2
  s_cselect_b32 s28, s12, s28
  s_cselect_b32 s29, s13, s29
  s_mov_b32 s30, 8192
  s_lshl_b32 s31, s27, 4
  s_mov_b32 s27, 0
  s_mov_b32 s32, 20
  s_mul_i32 s33, s24, 20480
  s_add_u32 s33, s33, 0x{WQKV_F:x}
  s_mov_b32 s34, 8
  s_mov_b32 s35, 4
prep_rl:
  v_and_b32 v4, 15, v2
  v_lshrrev_b32 v5, 4, v2
  v_add_u32 v4, s31, v4
  v_lshlrev_b32 v4, 1, v4             ; (n0+n)*2
  v_mul_lo_u32 v5, v5, s34            ; g*A
  s_lshl_b32 s36, s27, 5              ; kt0*32
  v_add_u32 v5, s36, v5
  v_mul_lo_u32 v5, v5, s30
  v_add_u32 v8, v4, v5                ; i=0
  v_add_u32 v9, s30, v8
  v_add_u32 v10, s30, v9
  v_add_u32 v11, s30, v10
  s_mul_i32 s37, s35, s30             ; B*stride
  v_add_u32 v12, s37, v8
  v_add_u32 v13, s30, v12
  v_add_u32 v14, s30, v13
  v_add_u32 v15, s30, v14
  s_lshl_b32 s38, s30, 5
  s_add_u32 s40, s6, s33
  s_addc_u32 s41, s7, 0
  v_lshlrev_b32 v16, 4, v2
  s_mov_b32 s39, 0
prep_rl_loop:
""")
    for u in range(2):
        for i in range(8):
            a(f"  global_load_ushort v{32+8*u+i}, v{8+i}, s[28:29]")
        a("  s_add_u32 s28, s28, s38\n  s_addc_u32 s29, s29, 0")
    a(f"""
  s_waitcnt vmcnt(8)
  v_lshl_or_b32 v20, v33, 16, v32
  v_lshl_or_b32 v21, v35, 16, v34
  v_lshl_or_b32 v22, v37, 16, v36
  v_lshl_or_b32 v23, v39, 16, v38
  global_store_dwordx4 v16, v[20:23], s[40:41]
  s_waitcnt vmcnt(1)
  v_lshl_or_b32 v24, v41, 16, v40
  v_lshl_or_b32 v25, v43, 16, v42
  v_lshl_or_b32 v26, v45, 16, v44
  v_lshl_or_b32 v27, v47, 16, v46
  global_store_dwordx4 v16, v[24:27], s[40:41] offset:1024
  s_add_u32 s40, s40, 0x800
  s_addc_u32 s41, s41, 0
  s_add_u32 s39, s39, 2
  s_cmp_lt_u32 s39, s32
  s_cbranch_scc1 prep_rl_loop
  s_branch prep_done
prep_clr:
  s_sub_u32 s24, s23, {b4}
  s_lshl_b32 s24, s24, 14
  v_lshlrev_b32 v16, 4, v2
  v_mov_b32 v20, -1
  v_mov_b32 v21, -1
  v_mov_b32 v22, -1
  v_mov_b32 v23, -1
  s_mov_b32 s39, 0
prep_clr_loop:
  s_add_u32 s25, s24, s39
  s_cmp_ge_u32 s25, {CLR_BYTES}
  s_cbranch_scc1 prep_done
  s_mov_b32 s27, 0x{P_OFF:x}
  s_cmp_lt_u32 s25, {P_BYTES}
  s_cselect_b32 s26, s27, 0x{MEM_F + 10240 - P_BYTES:x}
  s_add_u32 s25, s25, s26
  s_add_u32 s40, s6, s25
  s_addc_u32 s41, s7, 0
  global_store_dwordx4 v16, v[20:23], s[40:41]
  s_add_u32 s39, s39, 1024
  s_cmp_lt_u32 s39, 16384
  s_cbranch_scc1 prep_clr_loop
  s_branch prep_done
prep_ln:
""")
    emit_ln(a, "p", 4, 23, 6, XN_F, 2)
    a("prep_done:\n  s_endpgm")
    return kd(name, 128, 64, 128)

class Gemm:
    def __init__(s, name, MT, NT, KT, NS, WM, WN, x_off, w_off, nwg):
        s.name, s.MT, s.NT, s.KT, s.NS, s.WM, s.WN = name, MT, NT, KT, NS, WM, WN
        s.x_off, s.w_off, s.nwg = x_off, w_off, nwg
        s.mt, s.nt = MT//WM, NT//WN
        s.T = MT+NT
        assert s.T % 4 == 0
        s.nd = s.T//4
        s.stage = s.T*1024
        s.lds = s.stage*NS
    def prologue(s, a, map_code):
        n = s.name
        a(f"""
  s_cmp_ge_u32 s2, {s.nwg}
  s_cbranch_scc1 {n}_done
  s_load_dwordx2 s[6:7], s[0:1], 104
  s_load_dwordx2 s[4:5], s[0:1], 0
  s_load_dwordx2 s[8:9], s[0:1], 88
  v_lshrrev_b32 v5, 6, v0
  v_and_b32 v6, 63, v0
  s_nop 0
  v_readfirstlane_b32 s22, v5         ; wave
  v_lshlrev_b32 v1, 4, v6             ; lane*16
""")
        a(map_code)
        a(f"""
  s_waitcnt lgkmcnt(0)
  s_lshr_b32 s23, s22, {0 if False else (1 if s.WN==2 else (2 if s.WN==4 else 0))}   ; wm
  s_and_b32 s24, s22, {s.WN-1}        ; wn
""")
        for j in range(s.nd):
            sb = 40+2*j
            a(f"""  s_add_u32 s25, s22, {4*j}
  s_mul_i32 s26, s20, {s.MT}
  s_add_u32 s26, s26, s25
  s_mul_i32 s26, s26, {s.KT*1024}
  s_add_u32 s26, s26, 0x{s.x_off:x}
  s_mul_i32 s27, s21, {s.NT}
  s_add_u32 s27, s27, s25
  s_sub_u32 s27, s27, {s.MT}
  s_mul_i32 s27, s27, {s.KT*1024}
  s_add_u32 s27, s27, 0x{s.w_off:x}
  s_cmp_lt_u32 s25, {s.MT}
  s_cselect_b32 s26, s26, s27
  s_add_u32 s{sb}, s6, s26
  s_addc_u32 s{sb+1}, s7, 0""")
        a(f"""  s_lshl_b32 s28, s22, 10
  v_mov_b32 v2, v1
  s_mul_i32 s29, s23, {s.mt*1024}
  s_mul_i32 s30, s24, {s.nt*1024}
  s_add_u32 s30, s30, {s.MT*1024}
  s_mov_b32 s31, 0
  s_mov_b32 s32, 0
""")
        for i in range(s.mt*s.nt*4):
            a(f"  v_accvgpr_write_b32 a{i}, 0")
        for st in range(s.NS-1):
            s.dma(a)
    def dma(s, a):
        for j in range(s.nd):
            a(f"""  s_add_u32 s33, s32, s28
  s_add_u32 m0, s33, {4096*j}
  s_nop 0
  global_load_lds_dwordx4 v2, s[{40+2*j}:{41+2*j}]""")
        a(f"""  v_add_u32 v2, 0x400, v2
  s_add_u32 s32, s32, {s.stage}
  s_cmp_ge_u32 s32, {s.lds}
  s_cselect_b32 s32, 0, s32""")
    def body(s, a, vm, do_dma, transposed):
        a(f"  s_waitcnt vmcnt({vm})\n  s_barrier")
        if do_dma: s.dma(a)
        a(f"""  s_add_u32 s34, s31, s29
  s_add_u32 s35, s31, s30
  v_add_u32 v3, s34, v1
  v_add_u32 v4, s35, v1""")
        fb = 8; fa = 8+4*s.nt
        for j in range(s.nt):
            a(f"  ds_read_b128 v[{fb+4*j}:{fb+4*j+3}], v4 offset:{1024*j}")
        for i in range(s.mt):
            a(f"  ds_read_b128 v[{fa+4*i}:{fa+4*i+3}], v3 offset:{1024*i}")
        a(f"""  s_add_u32 s31, s31, {s.stage}
  s_cmp_ge_u32 s31, {s.lds}
  s_cselect_b32 s31, 0, s31""")
        for i in range(s.mt):
            a(f"  s_waitcnt lgkmcnt({min(15, s.mt-1-i)})")
            for j in range(s.nt):
                acc = 4*(i*s.nt+j)
                X = f"v[{fa+4*i}:{fa+4*i+3}]"; W = f"v[{fb+4*j}:{fb+4*j+3}]"
                if transposed: a(f"  v_mfma_f32_16x16x32_bf16 a[{acc}:{acc+3}], {W}, {X}, a[{acc}:{acc+3}]")
                else: a(f"  v_mfma_f32_16x16x32_bf16 a[{acc}:{acc+3}], {X}, {W}, a[{acc}:{acc+3}]")
    def mainloop(s, a, transposed, tag):
        n = s.name + tag
        steady = s.KT - (s.NS-1)
        a(f"  s_mov_b32 s36, 0\n{n}_loop:")
        s.body(a, (s.NS-2)*s.nd, True, transposed)
        a(f"  s_add_u32 s36, s36, 1\n  s_cmp_lt_u32 s36, {steady}\n  s_cbranch_scc1 {n}_loop")
        for r in range(s.NS-1):
            s.body(a, (s.NS-2-r)*s.nd, False, transposed)
        a("  s_nop 7\n  s_nop 3")

def gen_qkv(a):
    g = Gemm("qkv_kernel", MT=16, NT=8, KT=20, NS=3, WM=2, WN=2, x_off=XN_F, w_off=WQKV_F, nwg=768)
    khead(a, g.name)
    g.prologue(a, """
  s_and_b32 s10, s2, 7
  s_lshr_b32 s11, s2, 3
  s_mov_b32 s12, 0x15555556
  s_mul_hi_u32 s20, s11, s12          ; idx/12
  s_mul_i32 s13, s20, 12
  s_sub_u32 s13, s11, s13
  s_mul_i32 s21, s10, 12
  s_add_u32 s21, s21, s13
""")
    a("""  s_lshr_b32 s37, s21, 5
  s_and_b32 s38, s21, 31
  s_cmp_eq_u32 s37, 2
  s_cbranch_scc1 qkv_v""")
    g.mainloop(a, True, "_t")
    a(f"""  s_lshl_b32 s10, s37, 24             ; type*16MB
  s_add_u32 s10, s10, 0x{Q_F:x}
  s_lshl_b32 s11, s20, 3
  s_lshl_b32 s12, s23, 2
  s_add_u32 s11, s11, s12
  s_lshl_b32 s11, s11, 5
  s_add_u32 s11, s11, s38             ; seg0*32+head
  s_lshl_b32 s11, s11, 13             ; *8192
  s_add_u32 s10, s10, s11
  s_lshl_b32 s12, s24, 12
  s_add_u32 s10, s10, s12
  s_add_u32 s14, s6, s10
  s_addc_u32 s15, s7, 0""")
    for i in range(8):
        for jp in range(2):
            a0 = 4*(i*4+2*jp); a1 = a0+4
            for r in range(4):
                a(f"  v_accvgpr_read_b32 v{8+r}, a{a0+r}\n  v_accvgpr_read_b32 v{12+r}, a{a1+r}")
            a("""  v_cvt_pk_bf16_f32 v16, v8, v9
  v_cvt_pk_bf16_f32 v17, v10, v11
  v_cvt_pk_bf16_f32 v18, v12, v13
  v_cvt_pk_bf16_f32 v19, v14, v15""")
            off = jp*2048 + (i&1)*1024
            a(f"  global_store_dwordx4 v1, v[16:19], s[14:15] offset:{off}")
            a("  s_nop 1")
        if i & 1:
            a("  s_add_u32 s14, s14, 0x40000\n  s_addc_u32 s15, s15, 0")
    a("  s_branch qkv_kernel_done\nqkv_v:")
    g.mainloop(a, False, "_n")
    a(f"""  s_lshl_b32 s11, s20, 3
  s_lshl_b32 s12, s23, 2
  s_add_u32 s11, s11, s12
  s_lshl_b32 s11, s11, 5
  s_add_u32 s11, s11, s38
  s_lshl_b32 s11, s11, 13
  s_add_u32 s10, s11, 0x{V_F:x}
  s_lshl_b32 s12, s24, 12
  s_add_u32 s10, s10, s12
  s_add_u32 s14, s6, s10
  s_addc_u32 s15, s7, 0""")
    for ip in range(4):
        for j in range(4):
            a0 = 4*((2*ip)*4+j); a1 = 4*((2*ip+1)*4+j)
            for r in range(4):
                a(f"  v_accvgpr_read_b32 v{8+r}, a{a0+r}\n  v_accvgpr_read_b32 v{12+r}, a{a1+r}")
            a("""  v_cvt_pk_bf16_f32 v16, v8, v9
  v_cvt_pk_bf16_f32 v17, v10, v11
  v_cvt_pk_bf16_f32 v18, v12, v13
  v_cvt_pk_bf16_f32 v19, v14, v15""")
            a(f"  global_store_dwordx4 v1, v[16:19], s[14:15] offset:{j*1024}")
            a("  s_nop 1")
        a("  s_add_u32 s14, s14, 0x40000\n  s_addc_u32 s15, s15, 0")
    a("qkv_kernel_done:\n  s_endpgm")
    return kd(g.name, 64+128, 64, 64), g

def main():
    a = A()
    kds = []
    launches = []
    body = A()
    kds.append(gen_prep(body)); launches.append(("prep_kernel", PREP_WGS, 256, 0))
    k, g = gen_qkv(body); kds.append(k); launches.append(("qkv_kernel", g.nwg, 256, g.lds))
    import gen_chain
    kds.append(gen_chain.gen_chain(body)); launches.append(("chain_kernel", 256, 256, gen_chain.L_END))
    import gen_post
    kds.append(gen_post.gen_attn(body)); launches.append(("attn_kernel", 512, 256, 0))
    k, g = gen_post.gen_wo(body); kds.append(k); launches.append((g.name, g.nwg, 256, g.lds))
    kds.append(gen_post.gen_ln2(body)); launches.append(("ln2_kernel", 32, 256, 0))
    k, g = gen_post.gen_ffn1(body); kds.append(k); launches.append((g.name, g.nwg, 256, g.lds))
    k, g = gen_post.gen_ffn2(body); kds.append(k); launches.append((g.name, g.nwg, 256, g.lds))
    hdr = open('cdna_kernels/'+KNAME+'.s.ref').read().split('; Override launch')[0]
    out = hdr
    for (n, gx, bx, lds) in launches:
        out += f"; @launch kernel={n} grid=({gx},1,1) block=({bx},1,1) lds={lds}\n"
    out += '.amdgcn_target "amdgcn-amd-amdhsa--gfx950"\n.text\n' + body.text()
    out += '.section .rodata,"a"\n'
    for k in kds: out += ".p2align 6\n" + k
    path = sys.argv[1] if len(sys.argv) > 1 else 'cdna_kernels/'+KNAME+'.s'
    open(path, 'w').write(out)
    print("wrote", path, len(out))
if __name__ == '__main__':
    main()
```

```python
KNAME = "sequential_preLN__memory_aug_recurrent_mem_tr__glu_gated_reglu__prompt"
S, D, H, E, F, M, SEG, NSEG = 2048, 640, 32, 128, 1728, 8, 32, 64
XN_F   = 0x0000000
WQKV_F = 0x0280000
WO_F   = 0x1180000
WGU_F  = 0x1700000
WD_F   = 0x1B40000
Q_F    = 0x2000000
K_F    = 0x3000000
V_F    = 0x4000000
O_F    = 0x5000000
KM_F   = 0xC000000
VM_F   = 0xC800000
H_RM   = 0x7000000
HN_F   = 0x7400000
ACT_F  = 0x7800000
P_OFF  = 0x8000000
MEM_F  = 0x8200000
P_BYTES = 2*160*32*128
MEM_BYTES = 65*10240
MB_OFF = 0x8400000
MB_STRIDE = 65*10240
LF_OFF = MB_OFF + 8*MB_STRIDE
LF_BYTES = 64*8*128
CNT_OFF = 0x8C00000
PART_OFF = 0xB000000
OSTR = 129
CNT3 = CNT_OFF + 1024
import os as _os
RBK = int(_os.environ.get('RBK','24'))
```

```python
from common import *
from gen import A, kd, khead

PART2 = 0xD000000
CNT2 = CNT_OFF + 896
L_OA = 0

def attn_pair(a, tag):
    a(f"""
  s_lshl_b32 s9, s40, 5
  s_add_u32 s9, s9, s41
  s_lshl_b32 s10, s9, 13
  s_add_u32 s11, s10, 0x{Q_F:x}
  s_add_u32 s12, s6, s11
  s_addc_u32 s13, s7, 0
  s_add_u32 s11, s10, 0x{K_F:x}
  s_add_u32 s14, s6, s11
  s_addc_u32 s15, s7, 0
  s_add_u32 s11, s10, 0x{V_F:x}
  s_add_u32 s16, s6, s11
  s_addc_u32 s17, s7, 0
  s_lshl_b32 s10, s9, 12
  s_add_u32 s11, s10, 0x{KM_F:x}
  s_add_u32 s18, s6, s11
  s_addc_u32 s19, s7, 0
  s_add_u32 s11, s10, 0x{VM_F:x}
  s_add_u32 s20, s6, s11
  s_addc_u32 s21, s7, 0
""")
    for f in range(8):
        vo = "v1" if f < 4 else "v6"
        a(f"  global_load_dwordx4 v[{16+4*f}:{19+4*f}], {vo}, s[12:13] offset:{(f%4)*1024}")
        a(f"  global_load_dwordx4 v[{48+4*f}:{51+4*f}], {vo}, s[14:15] offset:{(f%4)*1024}")
    for w in range(4):
        a(f"  global_load_dwordx4 v[{80+4*w}:{83+4*w}], v1, s[18:19] offset:{w*1024}")
    for f in range(8):
        vo = "v1" if f < 4 else "v6"
        a(f"  global_load_dwordx4 v[{96+4*f}:{99+4*f}], {vo}, s[16:17] offset:{(f%4)*1024}")
    for f in range(8):
        a(f"  global_load_dwordx2 v[{128+2*f}:{129+2*f}], v7, s[20:21] offset:{f*512}")
    a("  s_waitcnt vmcnt(16)")
    tiles = [(0,'M',144),(0,0,148),(1,'M',152),(1,0,156),(1,1,160)]
    for w in range(4):
        for (tt, kt, acc) in tiles:
            Kf = f"v[{80+4*w}:{83+4*w}]" if kt == 'M' else f"v[{48+4*(w*2+kt)}:{51+4*(w*2+kt)}]"
            Qf = f"v[{16+4*(w*2+tt)}:{19+4*(w*2+tt)}]"
            c = f"v[{acc}:{acc+3}]" if w > 0 else "0"
            a(f"  v_mfma_f32_16x16x32_bf16 v[{acc}:{acc+3}], {Kf}, {Qf}, {c}")
    a("  s_nop 7")
    for i in range(144, 164, 2):
        a(f"""  v_cvt_pk_bf16_f32 v10, v{i}, v{i+1}
  v_lshlrev_b32 v{i}, 16, v10
  v_and_b32 v{i+1}, s54, v10
  v_mul_f32 v{i}, s52, v{i}
  v_mul_f32 v{i+1}, s52, v{i+1}
  v_cvt_pk_bf16_f32 v10, v{i}, v{i+1}
  v_lshlrev_b32 v{i}, 16, v10
  v_and_b32 v{i+1}, s54, v10""")
    a("  v_cmp_lt_u32 vcc, 31, v3\n  s_nop 1")
    for b in (144, 152):
        for r in range(4): a(f"  v_cndmask_b32 v{b+r}, v{b+r}, v8, vcc")
    for r in range(4):
        a(f"  v_add_u32 v10, {r}, v9\n  v_cmp_gt_u32 vcc, v10, v4\n  s_nop 1")
        a(f"  v_cndmask_b32 v{148+r}, v{148+r}, v8, vcc\n  v_cndmask_b32 v{160+r}, v{160+r}, v8, vcc")
    def softmax(regs, tmp):
        n = len(regs)
        a(f"  v_max3_f32 v{tmp}, v{regs[0]}, v{regs[1]}, v{regs[2]}")
        i = 3
        while i < n:
            if i+1 < n: a(f"  v_max3_f32 v{tmp}, v{tmp}, v{regs[i]}, v{regs[i+1]}"); i += 2
            else: a(f"  v_max_f32 v{tmp}, v{tmp}, v{regs[i]}"); i += 1
        for sw in ("16", "32"):
            a(f"""  s_nop 1
  v_mov_b32 v{tmp+1}, v{tmp}
  s_nop 1
  v_permlane{sw}_swap_b32 v{tmp}, v{tmp+1}
  v_max_f32 v{tmp}, v{tmp}, v{tmp+1}""")
        for r in regs: a(f"  v_sub_f32 v{r}, v{r}, v{tmp}\n  v_mul_f32 v{r}, s53, v{r}")
        for r in regs: a(f"  v_exp_f32 v{r}, v{r}")
        a(f"  s_nop 0\n  v_add_f32 v{tmp}, v{regs[0]}, v{regs[1]}")
        for r in regs[2:]: a(f"  v_add_f32 v{tmp}, v{tmp}, v{r}")
        for sw in ("16", "32"):
            a(f"""  s_nop 1
  v_mov_b32 v{tmp+1}, v{tmp}
  s_nop 1
  v_permlane{sw}_swap_b32 v{tmp}, v{tmp+1}
  v_add_f32 v{tmp}, v{tmp}, v{tmp+1}""")
        a(f"""  v_rcp_f32 v{tmp+1}, v{tmp}
  s_nop 0
  v_fma_f32 v{tmp+2}, -v{tmp}, v{tmp+1}, 1.0
  v_fma_f32 v{tmp+1}, v{tmp+2}, v{tmp+1}, v{tmp+1}""")
        for r in regs: a(f"  v_mul_f32 v{r}, v{r}, v{tmp+1}")
    softmax(list(range(144, 152)), 10)
    softmax(list(range(152, 164)), 10)
    a("""  v_cvt_pk_bf16_f32 v164, v144, v145
  v_cvt_pk_bf16_f32 v165, v146, v147
  v_cvt_pk_bf16_f32 v166, v148, v149
  v_cvt_pk_bf16_f32 v167, v150, v151
  v_mov_b32 v168, 0
  v_mov_b32 v169, 0
  v_cvt_pk_bf16_f32 v170, v152, v153
  v_cvt_pk_bf16_f32 v171, v154, v155
  v_cvt_pk_bf16_f32 v172, v156, v157
  v_cvt_pk_bf16_f32 v173, v158, v159
  v_cvt_pk_bf16_f32 v174, v160, v161
  v_cvt_pk_bf16_f32 v175, v162, v163
  s_waitcnt vmcnt(0)""")
    for tt in range(2):
        pm = "v[164:165]" if tt == 0 else "v[170:171]"
        for et in range(8):
            acc = 16+4*(tt*8+et)
            a(f"  v_mfma_f32_16x16x16_bf16 v[{acc}:{acc+3}], v[{128+2*et}:{129+2*et}], {pm}, 0")
    for tt in range(2):
        px = "v[166:169]" if tt == 0 else "v[172:175]"
        for et in range(8):
            acc = 16+4*(tt*8+et)
            a(f"  v_mfma_f32_16x16x32_bf16 v[{acc}:{acc+3}], v[{96+4*et}:{99+4*et}], {px}, v[{acc}:{acc+3}]")
    a("  v_add_u32 v11, s42, v1\n  s_nop 6")
    for tt in range(2):
        for wp in range(4):
            b = 16+4*(tt*8+2*wp)
            a(f"""  v_cvt_pk_bf16_f32 v{80+4*wp}, v{b}, v{b+1}
  v_cvt_pk_bf16_f32 v{81+4*wp}, v{b+2}, v{b+3}
  v_cvt_pk_bf16_f32 v{82+4*wp}, v{b+4}, v{b+5}
  v_cvt_pk_bf16_f32 v{83+4*wp}, v{b+6}, v{b+7}
  ds_write_b128 v11, v[{80+4*wp}:{83+4*wp}] offset:{tt*16384 + wp*1024}""")
        a("  s_waitcnt lgkmcnt(0)")

def gen_awl(a, LIMIT=100000):
    name = "awl_kernel"
    khead(a, name)
    a(f"""
  s_cmp_ge_u32 s2, 256
  s_cbranch_scc1 awl_done
  s_load_dwordx2 s[6:7], s[0:1], 104
  s_load_dwordx2 s[4:5], s[0:1], 0
  v_lshrrev_b32 v2, 6, v0
  v_and_b32 v3, 63, v0
  s_nop 0
  v_readfirstlane_b32 s8, v2          ; wave
  v_lshlrev_b32 v1, 4, v3
  v_lshlrev_b32 v7, 3, v3
  v_and_b32 v4, 15, v3
  v_lshrrev_b32 v5, 4, v3
  v_add_u32 v6, 0x1000, v1
  s_and_b32 s44, s2, 7                ; hg
  s_lshr_b32 s45, s2, 3               ; rb
  s_mov_b32 s52, 0x3db504f3
  s_mov_b32 s53, 0x3fb8aa3b
  s_mov_b32 s54, 0xffff0000
  v_mov_b32 v8, 0xff800000
  v_lshlrev_b32 v9, 2, v5
  s_waitcnt lgkmcnt(0)
  s_mul_i32 s10, s8, {10*OSTR}
  s_lshl_b32 s11, s44, 4
  s_add_u32 s10, s10, s11
  s_lshl_b32 s10, s10, 10
  s_add_u32 s10, s10, 0x{WO_F:x}
  s_add_u32 s60, s6, s10
  s_addc_u32 s61, s7, 0""")
    for j in range(1, 10):
        a(f"  s_add_u32 s{60+2*j}, s{58+2*j}, {OSTR*1024}\n  s_addc_u32 s{61+2*j}, s{59+2*j}, 0")
    a("""  s_lshl_b32 s41, s44, 2
  s_add_u32 s41, s41, s8              ; head
  s_lshl_b32 s40, s45, 1              ; seg
  s_lshl_b32 s42, s8, 12""")
    attn_pair(a, "a")
    a("  s_add_u32 s40, s40, 1\n  s_add_u32 s42, s42, 32768")
    attn_pair(a, "b")
    BB = lambda st, j: f"v[{16+40*st+4*j}:{19+40*st+4*j}]"
    AA = lambda st, i: f"v[{96+16*st+4*i}:{99+16*st+4*i}]"
    def loadB(kt):
        for j in range(10):
            a(f"  global_load_dwordx4 {BB(kt%2,j)}, v12, s[{60+2*j}:{61+2*j}] offset:{(kt%4)*1024}")
    def readA(kt):
        for i in range(4):
            a(f"  ds_read_b128 {AA(kt%2,i)}, v1 offset:{i*16384 + kt*1024}")
    a("  v_mov_b32 v12, v1")
    loadB(0); loadB(1)
    a("  s_barrier")
    readA(0)
    for kt in range(16):
        if kt+1 < 16: readA(kt+1)
        a(f"  s_waitcnt vmcnt({10 if kt+1 < 16 else 0}) lgkmcnt({4 if kt+1 < 16 else 0})")
        for j in range(10):
            for i in range(4):
                acc = 4*(j*4+i)
                c = f"a[{acc}:{acc+3}]" if kt > 0 else "0"
                a(f"  v_mfma_f32_16x16x32_bf16 a[{acc}:{acc+3}], {BB(kt%2,j)}, {AA(kt%2,i)}, {c}")
        if kt+2 < 16:
            if (kt+2) % 4 == 0: a("  v_add_u32 v12, 0x1000, v12")
            loadB(kt+2)
    a(f"""  s_lshl_b32 s10, s45, 3
  s_add_u32 s10, s10, s44
  s_mul_i32 s10, s10, {64*2560}
  s_mul_i32 s11, s8, 640
  s_add_u32 s10, s10, s11
  s_add_u32 s10, s10, 0x{PART2:x}
  s_add_u32 s12, s6, s10
  s_addc_u32 s13, s7, 0
  v_mul_u32_u24 v12, 2560, v4
  v_lshl_add_u32 v12, v5, 4, v12
  s_nop 4""")
    for i in range(4):
        for j in range(10):
            acc = 4*(j*4+i)
            a(f"  global_store_dwordx4 v12, a[{acc}:{acc+3}], s[12:13] offset:{j*64} sc1")
        a(f"  v_add_u32 v12, {16*2560}, v12")
    a(f"""  s_waitcnt vmcnt(0)
  s_barrier
  s_lshl_b32 s10, s45, 2
  s_add_u32 s10, s10, 0x{CNT2:x}
  s_add_u32 s14, s6, s10
  s_addc_u32 s15, s7, 0
  v_mov_b32 v12, 0
  s_cmp_lg_u32 s8, 0
  s_cbranch_scc1 awl_wait
  v_mov_b32 v13, 1
  s_mov_b64 s[56:57], exec
  s_mov_b64 exec, 1
  global_atomic_add v12, v13, s[14:15]
  s_mov_b32 s58, 0
awl_poll:
  s_sleep 2
  global_load_dword v14, v12, s[14:15] sc1
  s_waitcnt vmcnt(0)
  v_readfirstlane_b32 s10, v14
  s_add_u32 s58, s58, 1
  s_cmp_gt_u32 s58, {LIMIT}
  s_cbranch_scc1 awl_pdone
  s_cmp_lt_u32 s10, 8
  s_cbranch_scc1 awl_poll
awl_pdone:
  s_mov_b64 exec, s[56:57]
awl_wait:
  s_barrier
  v_lshrrev_b32 v10, 5, v0
  v_and_b32 v11, 31, v0
  s_lshl_b32 s10, s44, 3
  v_add_u32 v10, s10, v10
  v_mul_u32_u24 v12, 2560, v10
  v_lshl_add_u32 v12, v11, 4, v12
  s_mul_i32 s10, s45, {8*64*2560}
  s_add_u32 s10, s10, 0x{PART2:x}
  s_add_u32 s12, s6, s10
  s_addc_u32 s13, s7, 0
  s_lshl_b32 s10, s45, 6
  v_add_u32 v13, s10, v10
  v_mul_u32_u24 v14, 0x500, v13
  v_lshl_add_u32 v14, v11, 3, v14""")
    for k in range(5):
        a(f"  global_load_dwordx2 v[{180+2*k}:{181+2*k}], v14, s[4:5] offset:{k*256}")
    for p in range(8):
        for k in range(5):
            r = 16+20*p+4*k
            a(f"  global_load_dwordx4 v[{r}:{r+3}], v12, s[12:13] offset:{k*512} sc1")
        a(f"  s_add_u32 s12, s12, {64*2560}\n  s_addc_u32 s13, s13, 0")
    for p in range(1, 8):
        a(f"  s_waitcnt vmcnt({5*(7-p)})")
        for i in range(0, 20, 2):
            a(f"  v_pk_add_f32 v[{16+i}:{17+i}], v[{16+i}:{17+i}], v[{16+20*p+i}:{17+20*p+i}]")
    a(f"  s_add_u32 s16, s6, 0x{H_RM:x}\n  s_addc_u32 s17, s7, 0")
    for k in range(5):
        b = 16+4*k
        a(f"""  v_cvt_pk_bf16_f32 v40, v{b}, v{b+1}
  v_cvt_pk_bf16_f32 v41, v{b+2}, v{b+3}
  v_lshlrev_b32 v{b}, 16, v40
  v_and_b32 v{b+1}, s54, v40
  v_lshlrev_b32 v{b+2}, 16, v41
  v_and_b32 v{b+3}, s54, v41
  v_lshlrev_b32 v42, 16, v{180+2*k}
  v_and_b32 v43, s54, v{180+2*k}
  v_lshlrev_b32 v44, 16, v{181+2*k}
  v_and_b32 v45, s54, v{181+2*k}
  v_add_f32 v{b}, v{b}, v42
  v_add_f32 v{b+1}, v{b+1}, v43
  v_add_f32 v{b+2}, v{b+2}, v44
  v_add_f32 v{b+3}, v{b+3}, v45
  v_cvt_pk_bf16_f32 v{50+2*k}, v{b}, v{b+1}
  v_cvt_pk_bf16_f32 v{51+2*k}, v{b+2}, v{b+3}
  v_lshlrev_b32 v{b}, 16, v{50+2*k}
  v_and_b32 v{b+1}, s54, v{50+2*k}
  v_lshlrev_b32 v{b+2}, 16, v{51+2*k}
  v_and_b32 v{b+3}, s54, v{51+2*k}
  global_store_dwordx2 v14, v[{50+2*k}:{51+2*k}], s[16:17] offset:{k*256}""")
    def red32(r, t):
        a(f"""  s_nop 1
  v_add_f32_dpp v{r}, v{r}, v{r} quad_perm:[1,0,3,2] row_mask:0xf bank_mask:0xf
  s_nop 1
  v_add_f32_dpp v{r}, v{r}, v{r} quad_perm:[2,3,0,1] row_mask:0xf bank_mask:0xf
  s_nop 1
  v_add_f32_dpp v{r}, v{r}, v{r} row_ror:4 row_mask:0xf bank_mask:0xf
  s_nop 1
  v_add_f32_dpp v{r}, v{r}, v{r} row_ror:8 row_mask:0xf bank_mask:0xf
  s_nop 1
  v_mov_b32 v{t}, v{r}
  s_nop 1
  v_permlane16_swap_b32 v{r}, v{t}
  v_add_f32 v{r}, v{r}, v{t}""")
    a("  v_add_f32 v60, v16, v17")
    for i in range(18, 36): a(f"  v_add_f32 v60, v60, v{i}")
    red32(60, 61)
    a("  v_mul_f32 v60, 0x3acccccd, v60\n  v_mov_b32 v62, 0")
    for i in range(16, 36): a(f"  v_sub_f32 v63, v{i}, v60\n  v_fmac_f32 v62, v63, v63")
    red32(62, 61)
    a(f"""  v_mul_f32 v62, 0x3acccccd, v62
  v_cvt_pk_bf16_f32 v64, v60, v62
  v_lshlrev_b32 v60, 16, v64
  v_and_b32 v62, s54, v64
  v_add_f32 v62, 0x3727c5ac, v62
  v_cvt_pk_bf16_f32 v64, v62, v62
  v_lshlrev_b32 v62, 16, v64
  v_sqrt_f32 v62, v62
  s_nop 0
  v_cvt_pk_bf16_f32 v64, v62, v62
  v_lshlrev_b32 v62, 16, v64
  v_rcp_f32 v63, v62
  s_nop 0
  v_fma_f32 v64, -v62, v63, 1.0
  v_fma_f32 v63, v64, v63, v63
  v_lshrrev_b32 v65, 4, v13
  v_mul_u32_u24 v65, 20480, v65
  v_and_b32 v66, 15, v13
  v_lshl_add_u32 v65, v66, 4, v65
  v_lshrrev_b32 v66, 3, v11
  v_lshl_add_u32 v65, v66, 10, v65
  v_bfe_u32 v66, v11, 1, 2
  v_lshl_add_u32 v65, v66, 8, v65
  v_and_b32 v66, 1, v11
  v_lshl_add_u32 v65, v66, 3, v65
  s_add_u32 s18, s6, 0x{HN_F:x}
  s_addc_u32 s19, s7, 0""")
    for k in range(5):
        b = 16+4*k
        a(f"""  v_sub_f32 v{b}, v{b}, v60
  v_sub_f32 v{b+1}, v{b+1}, v60
  v_sub_f32 v{b+2}, v{b+2}, v60
  v_sub_f32 v{b+3}, v{b+3}, v60
  v_cvt_pk_bf16_f32 v40, v{b}, v{b+1}
  v_cvt_pk_bf16_f32 v41, v{b+2}, v{b+3}
  v_lshlrev_b32 v{b}, 16, v40
  v_and_b32 v{b+1}, s54, v40
  v_lshlrev_b32 v{b+2}, 16, v41
  v_and_b32 v{b+3}, s54, v41
  v_mul_f32 v{b}, v{b}, v63
  v_mul_f32 v{b+1}, v{b+1}, v63
  v_mul_f32 v{b+2}, v{b+2}, v63
  v_mul_f32 v{b+3}, v{b+3}, v63
  v_cvt_pk_bf16_f32 v{70+2*k}, v{b}, v{b+1}
  v_cvt_pk_bf16_f32 v{71+2*k}, v{b+2}, v{b+3}
  global_store_dwordx2 v65, v[{70+2*k}:{71+2*k}], s[18:19]
  v_add_u32 v65, 0x1000, v65""")
    a("awl_done:\n  s_endpgm")
    return kd(name, 192+160, 96, 192)
```

```python
from common import *
from gen import A, kd, khead

L_WV   = 0
L_WO   = 81920
L_MEM  = 102400
L_SC   = 122880
L_O    = 135168
L_END  = 139264

class LK:
    def __init__(s, a): s.a = a; s.n = 0; s.done = 0
    def op(s, txt): s.a("  " + txt); s.n += 1; return s.n
    def wait(s, idn):
        if idn <= s.done: return
        c = s.n - idn
        s.a(f"  s_waitcnt lgkmcnt({min(c,15)})")
        s.done = idn if c <= 15 else s.n - 15
    def waitall(s):
        s.a("  s_waitcnt lgkmcnt(0)"); s.done = s.n

def wreg(n):
    return f"a[{4*n}:{4*n+3}]" if n < 64 else f"v[{112+4*(n-64)}:{112+4*(n-64)+3}]"

DBG_OFF = 0x9000000
def gen_chain(a, RS=10, CS=40, CS2=2, LIMIT=30000, DIAG=False, EMU=True, LOC=False, RC=15, FORCE_SLOW=False, LD=10):
    PSC = '' if LOC else ' sc1'
    name = "chain_kernel"
    def cyc(k):
        if DIAG: a(f"  s_memtime s[{72+2*k}:{73+2*k}]")
    def cycdump():
        if not DIAG: return
        a(f"""  s_lshl_b32 s64, s49, 8
  s_add_u32 s64, s64, s2
  s_lshl_b32 s64, s64, 2
  s_add_u32 s64, s64, s8
  s_lshl_b32 s64, s64, 6
  s_add_u32 s64, s64, 0x{DBG_OFF + 0x1000000:x}
  s_add_u32 s66, s6, s64
  s_addc_u32 s67, s7, 0
  s_waitcnt lgkmcnt(0)
  v_mov_b32 v97, 0
  s_mov_b64 s[68:69], exec
  s_mov_b64 exec, 1""")
        for k in range(10):
            a(f"  v_mov_b32 v110, s{72+2*k}\n  global_store_dword v97, v110, s[66:67] offset:{4*k}\n  s_nop 1")
        a("  s_mov_b64 exec, s[68:69]")
    def stamp(k, extra=None):
        if not DIAG: return
        a(f"""  s_memrealtime s[62:63]
  s_lshl_b32 s64, s49, 8
  s_add_u32 s64, s64, s2
  s_lshl_b32 s64, s64, 2
  s_add_u32 s64, s64, s8
  s_lshl_b32 s64, s64, 6
  s_add_u32 s64, s64, 0x{DBG_OFF + 0:x}
  s_add_u32 s66, s6, s64
  s_addc_u32 s67, s7, 0
  s_waitcnt lgkmcnt(0)
  v_mov_b32 v110, s62
  v_mov_b32 v111, {'s60' if extra else 's63'}
  v_mov_b32 v97, 0
  s_mov_b64 s[68:69], exec
  s_mov_b64 exec, 1
  global_store_dwordx2 v97, v[110:111], s[66:67] offset:{8*k}
  s_mov_b64 exec, s[68:69]""")
    khead(a, name)
    a(f"""
  s_cmp_ge_u32 s2, 256
  s_cbranch_scc1 chain_done
  s_load_dwordx2 s[4:5], s[0:1], 8       ; mem0
  s_load_dwordx2 s[6:7], s[0:1], 104     ; ws
  v_lshrrev_b32 v2, 6, v0
  v_and_b32 v3, 63, v0                   ; lane
  s_nop 0
  v_readfirstlane_b32 s8, v2             ; wave
  v_lshlrev_b32 v1, 4, v3                ; lane*16
  v_and_b32 v4, 15, v3                   ; m
  v_lshrrev_b32 v5, 4, v3                ; g
  s_load_dwordx2 s[70:71], s[0:1], 96
  s_getreg_b32 s61, hwreg(HW_REG_XCC_ID)
  s_and_b32 s61, s61, 15
  s_waitcnt lgkmcnt(0)
  s_cmp_lg_u32 s8, 0
  s_cbranch_scc1 chain_tk_wait
  s_min_u32 s11, s61, 8
  s_lshl_b32 s11, s11, 2
  v_mov_b32 v16, s11
  v_mov_b32 v17, 1
  v_mov_b32 v19, 64
  s_mov_b64 s[56:57], exec
  s_mov_b64 exec, 1
  global_atomic_add v18, v16, v17, s[70:71] sc0
  s_waitcnt vmcnt(0)
  global_atomic_add v19, v17, s[70:71]
  v_mov_b32 v16, {L_O}
  ds_write_b32 v16, v18
  s_waitcnt vmcnt(0) lgkmcnt(0)
  s_mov_b64 exec, s[56:57]
chain_tk_wait:
  s_barrier
  v_mov_b32 v16, {L_O}
  ds_read_b32 v18, v16
  s_waitcnt lgkmcnt(0)
  s_nop 0
  v_readfirstlane_b32 s9, v18            ; h = ticket
  s_mov_b32 s10, s61                     ; j = xcc
  s_mov_b32 s65, 0
  s_mov_b32 s51, 1
  s_cmp_lt_u32 s9, 32
  s_cselect_b32 s11, 1, 0
  s_cmp_lt_u32 s10, 8
  s_cselect_b32 s11, s11, 0
  s_cmp_eq_u32 s11, 1
  s_cbranch_scc1 chain_setup
chain_slow:
  s_lshr_b32 s9, s2, 3                   ; h
  s_and_b32 s10, s2, 7                   ; j
  s_mov_b32 s51, 0
chain_setup:
  s_lshl_b32 s11, s9, 3
  s_lshl_b32 s12, s8, 1
  s_add_u32 s11, s11, s12
  s_mul_i32 s11, s11, 20480
  s_add_u32 s11, s11, 0x{WQKV_F:x}
  s_add_u32 s14, s6, s11
  s_addc_u32 s15, s7, 0                  ; q t0
  s_add_u32 s16, s14, 20480
  s_addc_u32 s17, s15, 0                 ; q t1
  s_add_u32 s18, s14, {256*20480}
  s_addc_u32 s19, s15, 0                 ; k t0
  s_add_u32 s20, s18, 20480
  s_addc_u32 s21, s19, 0
  s_add_u32 s22, s18, {256*20480}
  s_addc_u32 s23, s19, 0                 ; v t0
  s_add_u32 s24, s22, 20480
  s_addc_u32 s25, s23, 0
  v_mov_b32 v6, v1
""")
    for kt in range(20):
        for q in range(4):
            a(f"  global_load_dwordx4 {wreg(kt*4+q)}, v6, s[{14+2*q}:{15+2*q}]")
        if kt < 10:
            for t in range(2):
                a(f"  global_load_dwordx4 {wreg(80+kt*2+t)}, v6, s[{22+2*t}:{23+2*t}]")
        else:
            for t in range(2):
                a(f"""  s_mul_i32 s26, s8, 20480
  s_add_u32 m0, s26, {L_WV + ((kt-10)*2+t)*1024}
  s_nop 0
  global_load_lds_dwordx4 v6, s[{22+2*t}:{23+2*t}]""")
        a("  v_add_u32 v6, 0x400, v6")
    a(f"""
  s_mul_i32 s11, s10, {5*OSTR}
  s_lshl_b32 s12, s9, 2
  s_add_u32 s11, s11, s12
  s_add_u32 s11, s11, s8
  s_lshl_b32 s11, s11, 10
  s_add_u32 s11, s11, 0x{WO_F:x}
  s_add_u32 s26, s6, s11
  s_addc_u32 s27, s7, 0
  s_lshl_b32 s12, s8, 10""")
    for c in range(5):
        a(f"""  s_add_u32 m0, s12, {L_WO + c*4096}
  s_nop 0
  global_load_lds_dwordx4 v1, s[26:27]
  s_add_u32 s26, s26, {OSTR*1024}
  s_addc_u32 s27, s27, 0""")
    a(f"""
  v_mov_b32 v16, 0
  v_mov_b32 v17, 0
  v_mov_b32 v18, 0
  v_mov_b32 v19, 0
  v_lshlrev_b32 v7, 4, v0
  v_add_u32 v7, {L_MEM}, v7""")
    for i in range(5):
        a(f"  ds_write_b128 v7, v[16:19] offset:{i*4096}")
    a(f"""
  s_mul_i32 s11, s8, 160
  v_add_u32 v8, s11, v3                  ; c0
  v_lshlrev_b32 v9, 4, v8
  v_lshrrev_b32 v10, 5, v8
  v_lshlrev_b32 v10, 10, v10
  v_bfe_u32 v11, v8, 3, 2
  v_lshl_add_u32 v10, v11, 8, v10
  v_and_b32 v11, 7, v8
  v_lshl_add_u32 v10, v11, 4, v10
  v_add_u32 v10, {L_MEM}, v10
  v_and_b32 v11, 7, v8
  v_mul_u32_u24 v11, 0x500, v11
  v_lshrrev_b32 v12, 5, v8
  v_lshl_add_u32 v11, v12, 6, v11
  v_bfe_u32 v12, v8, 3, 2
  v_lshl_add_u32 v11, v12, 4, v11
  v_lshrrev_b32 v12, 1, v5
  v_lshlrev_b32 v12, 13, v12
  v_lshrrev_b32 v13, 2, v4
  v_lshl_add_u32 v12, v13, 12, v12
  v_and_b32 v13, 3, v4
  v_lshl_add_u32 v12, v13, 5, v12
  v_and_b32 v13, 1, v5
  v_lshl_add_u32 v12, v13, 4, v12
  v_lshlrev_b32 v13, 3, v3               ; lane*8
  s_mul_i32 s11, s10, 81920
  s_lshl_b32 s12, s9, 7
  s_add_u32 s11, s11, s12
  s_lshl_b32 s12, s8, 14
  s_add_u32 s11, s11, s12
  s_add_u32 s11, s11, 0x{P_OFF:x}
  s_add_u32 s28, s6, s11
  s_addc_u32 s29, s7, 0
  s_mul_i32 s11, s10, 20
  s_add_u32 s11, s11, s9                 ; r = 20*j + h (h<20)
  s_lshl_b32 s12, s11, 12
  s_add_u32 s12, s12, 0x{P_OFF:x}
  s_add_u32 s30, s6, s12
  s_addc_u32 s31, s7, 0
  s_lshl_b32 s12, s11, 6
  s_add_u32 s12, s12, 0x{MB_OFF + 10240:x}
  s_add_u32 s32, s6, s12
  s_addc_u32 s33, s7, 0
  s_mul_i32 s12, s10, {MB_STRIDE}
  s_add_u32 s12, s12, 0x{MB_OFF + 10240:x}
  s_add_u32 s34, s6, s12
  s_addc_u32 s35, s7, 0
  v_lshrrev_b32 v2, 3, v3
  v_mul_u32_u24 v2, {MB_STRIDE}, v2
  v_and_b32 v7, 7, v3
  v_lshl_add_u32 v2, v7, 3, v2
  s_lshl_b32 s12, s10, 7
  s_add_u32 s12, s12, 0x{LF_OFF:x}
  s_add_u32 s92, s6, s12
  s_addc_u32 s93, s7, 0
  s_lshl_b32 s94, s9, 2
  s_cmp_lt_u32 s9, 20
  s_cselect_b32 s36, 1, 0
  s_cmp_eq_u32 s8, 3
  s_cselect_b32 s36, s36, 0
  s_lshl_b32 s11, s9, 13
  s_lshl_b32 s12, s8, 11
  s_add_u32 s11, s11, s12
  s_add_u32 s12, s11, 0x{K_F:x}
  s_add_u32 s38, s6, s12
  s_addc_u32 s39, s7, 0
  s_add_u32 s12, s11, 0x{V_F:x}
  s_add_u32 s40, s6, s12
  s_addc_u32 s41, s7, 0
  s_lshl_b32 s11, s9, 12
  s_lshl_b32 s12, s8, 10
  s_add_u32 s11, s11, s12
  s_add_u32 s12, s11, 0x{KM_F:x}
  s_add_u32 s42, s6, s12
  s_addc_u32 s43, s7, 0
  s_add_u32 s12, s11, 0x{VM_F:x}
  s_add_u32 s44, s6, s12
  s_addc_u32 s45, s7, 0
  v_add_u32 v14, {L_MEM}, v1
  s_mul_i32 s11, s8, 20480
  v_add_u32 v15, s11, v1
  s_mul_i32 s46, s8, 3072
  s_add_u32 s46, s46, {L_SC}
  s_lshl_b32 s47, s8, 10
  s_add_u32 s47, s47, {L_O}
  s_lshl_b32 s48, s8, 12
  s_add_u32 s48, s48, {L_WO}
  s_mov_b32 s49, 0                       ; step
  s_mov_b32 s50, 0
  s_mov_b32 s52, 0x3db504f3              ; scale
  s_mov_b32 s53, {0x3fb8aa3b if EMU else 0x3e0293ee}
  s_mov_b32 s54, 0xffff0000
  global_load_dwordx4 v[72:75], v1, s[38:39]
  global_load_dwordx4 v[76:79], v1, s[38:39] offset:1024
  global_load_dwordx4 v[80:83], v1, s[40:41]
  global_load_dwordx4 v[84:87], v1, s[40:41] offset:1024
  v_mov_b32 v24, 0
  v_mov_b32 v25, 0
  v_mov_b32 v26, 0
  v_mov_b32 v27, 0
  global_load_dwordx4 v[16:19], v11, s[4:5]
  global_load_dwordx4 v[20:23], v11, s[4:5] offset:128
  v_cmp_gt_u32 vcc, 32, v3
  s_and_saveexec_b64 s[56:57], vcc
  global_load_dwordx4 v[24:27], v11, s[4:5] offset:256
  s_mov_b64 exec, s[56:57]
  s_waitcnt vmcnt(0) lgkmcnt(0)
  s_cmp_eq_u32 s65, 1
  s_cbranch_scc1 chain_verified
  s_mov_b32 s60, 0
  v_lshlrev_b32 v28, 2, v3
  s_cmp_lg_u32 s8, 0
  s_cbranch_scc1 chain_vwait
chain_vpoll:
  s_sleep 4
  v_mov_b32 v29, 32
  v_cmp_gt_u32 vcc, 17, v3
  s_and_saveexec_b64 s[56:57], vcc
  global_load_dword v29, v28, s[70:71] sc1
  s_mov_b64 exec, s[56:57]
  s_waitcnt vmcnt(0)
  v_readlane_b32 s11, v29, 16
  s_add_u32 s60, s60, 1
  s_cmp_gt_u32 s60, {LIMIT}
  s_cbranch_scc1 chain_vdone
  s_cmp_lt_u32 s11, 256
  s_cbranch_scc1 chain_vpoll
chain_vdone:
  v_mov_b32 v29, {33 if FORCE_SLOW else 32}
  v_cmp_gt_u32 vcc, 8, v3
  s_and_saveexec_b64 s[56:57], vcc
  global_load_dword v29, v28, s[70:71] sc1
  s_mov_b64 exec, s[56:57]
  s_waitcnt vmcnt(0)
  v_cmp_ne_u32 vcc, 32, v29
  s_mov_b32 s11, 0
  s_cbranch_vccz chain_vok
  s_mov_b32 s11, 1
chain_vok:
  v_mov_b32 v29, s11
  v_mov_b32 v30, {L_O + 64}
  ds_write_b32 v30, v29
  s_waitcnt lgkmcnt(0)
chain_vwait:
  s_barrier
  v_mov_b32 v30, {L_O + 64}
  ds_read_b32 v29, v30
  s_waitcnt lgkmcnt(0)
  s_nop 0
  v_readfirstlane_b32 s11, v29
  s_mov_b32 s65, 1
  s_nop 2
  s_cmp_eq_u32 s11, 0
  s_cbranch_scc1 chain_verified
  s_barrier
  s_branch chain_slow
chain_verified:
  s_barrier
chain_step:
""")
    stamp(0)
    a("""
  ds_write_b128 v10, v[16:19]
  ds_write_b128 v10, v[20:23] offset:2048
  v_cmp_gt_u32 vcc, 32, v3
  s_and_saveexec_b64 s[56:57], vcc
  ds_write_b128 v10, v[24:27] offset:4096
  s_mov_b64 exec, s[56:57]
  s_waitcnt lgkmcnt(0)
  s_barrier
""")
    cyc(0)
    lk = LK(a)
    MB = lambda b: f"v[{16+4*b}:{19+4*b}]"
    QA = ["v[48:51]", "v[52:55]", "v[56:59]", "v[60:63]"]
    VA = ["v[64:67]", "v[68:71]"]
    ids = {}
    for kt in range(3): ids[kt] = lk.op(f"ds_read_b128 {MB(kt%4)}, v14 offset:{kt*1024}")
    for kt in range(20):
        if kt+3 < 20: ids[kt+3] = lk.op(f"ds_read_b128 {MB((kt+3)%4)}, v14 offset:{(kt+3)*1024}")
        lk.wait(ids[kt])
        for q in range(4):
            c = QA[q] if kt > 0 else "0"
            a(f"  v_mfma_f32_16x16x32_bf16 {QA[q]}, {wreg(kt*4+q)}, {MB(kt%4)}, {c}")
    cyc(1)
    ids2 = {}; wid = {}
    WB = lambda b, t: f"v[{32+8*b+4*t}:{35+8*b+4*t}]"
    def issue2(kt):
        if kt >= 20: return
        ids2[kt] = lk.op(f"ds_read_b128 {MB(kt%4)}, v14 offset:{kt*1024}")
        if kt >= 10:
            for t in range(2):
                wid[(kt,t)] = lk.op(f"ds_read_b128 {WB(kt%2,t)}, v15 offset:{((kt-10)*2+t)*1024}")
    state = {'k': 0}
    def fill(n=1):
        for _ in range(n):
            k = state['k']
            if k >= 40: return
            kt, t = k//2, k%2
            lk.wait(max(wid.get((kt,t), 0), ids2[kt]))
            c = VA[t] if kt > 0 else "0"
            w = wreg(80+kt*2+t) if kt < 10 else WB(kt%2, t)
            a(f"  v_mfma_f32_16x16x32_bf16 {VA[t]}, {MB(kt%4)}, {w}, {c}")
            if t == 1: issue2(kt+2)
            state['k'] += 1
    def crit(txt, every=4):
        n = 0
        for ln in txt.strip('\n').split('\n'):
            a(ln); n += 1
            if n % every == 0: fill(1)
    issue2(0); issue2(1)
    fill(2)
    a("  s_nop 3")
    a("""  v_cvt_pk_bf16_f32 v88, v48, v49
  v_cvt_pk_bf16_f32 v89, v50, v51
  v_cvt_pk_bf16_f32 v90, v52, v53
  v_cvt_pk_bf16_f32 v91, v54, v55
  v_cvt_pk_bf16_f32 v92, v56, v57
  v_cvt_pk_bf16_f32 v93, v58, v59
  v_cvt_pk_bf16_f32 v94, v60, v61
  v_cvt_pk_bf16_f32 v95, v62, v63
  s_waitcnt vmcnt(0)
  s_cmp_eq_u32 s49, 63
  s_cbranch_scc1 chain_last
  v_mfma_f32_16x16x32_bf16 v[48:51], v[92:95], v[88:91], 0
  v_mfma_f32_16x16x32_bf16 v[52:55], v[72:75], v[88:91], 0
  v_mfma_f32_16x16x32_bf16 v[56:59], v[76:79], v[88:91], 0""")
    fill(2)
    a(f"""  v_add_u32 v96, s46, v1
  v_add_u32 v97, {L_SC}, v1
  v_mov_b32 v98, s52
  v_mov_b32 v99, s52
  s_nop 1""")
    lk.op("ds_write_b128 v96, v[48:51]")
    lk.op("ds_write_b128 v96, v[52:55] offset:1024")
    lk.op("ds_write_b128 v96, v[56:59] offset:2048")
    fill(2)
    cyc(2)
    lk.waitall()
    a("  s_barrier")
    cyc(3)
    r0 = [lk.op(f"ds_read_b128 v[{48+4*t}:{51+4*t}], v97 offset:{t*1024}") for t in range(3)]
    r1 = [lk.op(f"ds_read_b128 v[{100+4*t}:{103+4*t}], v97 offset:{3072+t*1024}") for t in range(3)]
    p2 = [60, 72, 76]
    r2 = [lk.op(f"ds_read_b128 v[{p2[t]}:{p2[t]+3}], v97 offset:{6144+t*1024}") for t in range(3)]
    fill(3)
    lk.wait(r1[2])
    crit("\n".join(f"  v_pk_add_f32 v[{48+i}:{49+i}], v[{48+i}:{49+i}], v[{100+i}:{101+i}]" for i in range(0, 12, 2)), 3)
    r3 = [lk.op(f"ds_read_b128 v[{100+4*t}:{103+4*t}], v97 offset:{9216+t*1024}") for t in range(3)]
    lk.wait(r2[2])
    crit("\n".join(f"  v_pk_add_f32 v[{48+i}:{49+i}], v[{48+i}:{49+i}], v[{p2[i//4]+i%4}:{p2[i//4]+i%4+1}]" for i in range(0, 12, 2)), 3)
    lk.wait(r3[2])
    crit("\n".join(f"  v_pk_add_f32 v[{48+i}:{49+i}], v[{48+i}:{49+i}], v[{100+i}:{101+i}]" for i in range(0, 12, 2)), 3)
    cyc(4)
    t = ""
    if EMU:
        for i in range(0, 12, 2): t += f"  v_cvt_pk_bf16_f32 v{100+i//2}, v{48+i}, v{49+i}\n"
        for i in range(0, 12, 2): t += f"  v_lshlrev_b32 v{48+i}, 16, v{100+i//2}\n  v_and_b32 v{49+i}, s54, v{100+i//2}\n"
        for i in range(0, 12, 2): t += f"  v_pk_mul_f32 v[{48+i}:{49+i}], v[{48+i}:{49+i}], v[98:99]\n"
        for i in range(0, 12, 2): t += f"  v_cvt_pk_bf16_f32 v{100+i//2}, v{48+i}, v{49+i}\n"
        for i in range(0, 12, 2): t += f"  v_lshlrev_b32 v{48+i}, 16, v{100+i//2}\n  v_and_b32 v{49+i}, s54, v{100+i//2}\n"
    t += """  v_mov_b32 v101, 0xff800000
  v_cmp_lt_u32 vcc, 31, v3
  v_max3_f32 v100, v52, v53, v54
  v_max3_f32 v102, v55, v56, v57
  v_cndmask_b32 v48, v48, v101, vcc
  v_cndmask_b32 v49, v49, v101, vcc
  v_cndmask_b32 v50, v50, v101, vcc
  v_cndmask_b32 v51, v51, v101, vcc
  v_max3_f32 v100, v100, v58, v59
  v_max3_f32 v102, v102, v48, v49
  v_max3_f32 v100, v100, v50, v51
  v_max_f32 v100, v100, v102
  s_nop 0
  v_mov_b32 v101, v100
  s_nop 1
  v_permlane16_swap_b32 v100, v101
  v_max_f32 v100, v100, v101
  s_nop 0
  v_mov_b32 v101, v100
  s_nop 1
  v_permlane32_swap_b32 v100, v101
  v_max_f32 v100, v100, v101
  v_mul_f32 v100, s53, v100
  v_mov_b32 v102, s53
"""
    for i in range(12): t += f"  v_fma_f32 v{48+i}, v{48+i}, v102, -v100\n"
    for i in range(12): t += f"  v_exp_f32 v{48+i}, v{48+i}\n"
    t += """  v_pk_add_f32 v[100:101], v[48:49], v[50:51]
  v_pk_add_f32 v[102:103], v[52:53], v[54:55]
  v_pk_add_f32 v[104:105], v[56:57], v[58:59]
  v_pk_add_f32 v[100:101], v[100:101], v[102:103]
  v_pk_add_f32 v[100:101], v[100:101], v[104:105]
  v_add_f32 v100, v100, v101
  s_nop 0
  v_mov_b32 v101, v100
  s_nop 1
  v_permlane16_swap_b32 v100, v101
  v_add_f32 v100, v100, v101
  s_nop 0
  v_mov_b32 v101, v100
  s_nop 1
  v_permlane32_swap_b32 v100, v101
  v_add_f32 v100, v100, v101
  v_rcp_f32 v102, v100
  s_nop 0
  v_fma_f32 v103, -v100, v102, 1.0
  v_fma_f32 v102, v103, v102, v102
  v_mov_b32 v103, v102
"""
    crit(t, 4)
    cyc(5)
    fill(40)
    cyc(6)
    t = ""
    for i in range(0, 12, 2): t += f"  v_pk_mul_f32 v[{48+i}:{49+i}], v[{48+i}:{49+i}], v[102:103]\n"
    a(t)
    a("""  v_cvt_pk_bf16_f32 v100, v48, v49
  v_cvt_pk_bf16_f32 v101, v50, v51
  v_cvt_pk_bf16_f32 v104, v52, v53
  v_cvt_pk_bf16_f32 v105, v54, v55
  v_cvt_pk_bf16_f32 v106, v56, v57
  v_cvt_pk_bf16_f32 v107, v58, v59
  v_add_u32 v108, s47, v1
  v_add_u32 v109, s48, v1
  ds_read_b128 v[16:19], v109
  ds_read_b128 v[20:23], v109 offset:1024
  v_mfma_f32_16x16x32_bf16 v[48:51], v[80:83], v[104:107], 0
  v_mfma_f32_16x16x32_bf16 v[52:55], v[84:87], v[104:107], 0
  ds_read_b128 v[24:27], v109 offset:2048
  ds_read_b128 v[28:31], v109 offset:3072
  v_cvt_pk_bf16_f32 v96, v64, v65
  v_cvt_pk_bf16_f32 v97, v66, v67
  v_cvt_pk_bf16_f32 v98, v68, v69
  v_cvt_pk_bf16_f32 v99, v70, v71
  s_nop 3
  v_mfma_f32_16x16x16_bf16 v[48:51], v[96:97], v[100:101], v[48:51]
  v_mfma_f32_16x16x16_bf16 v[52:55], v[98:99], v[100:101], v[52:55]
  s_nop 7
  v_cvt_pk_bf16_f32 v56, v48, v49
  v_cvt_pk_bf16_f32 v57, v50, v51
  v_cvt_pk_bf16_f32 v58, v52, v53
  v_cvt_pk_bf16_f32 v59, v54, v55
  ds_write_b128 v108, v[56:59]
""")
    cyc(7)
    a("""  s_waitcnt lgkmcnt(0)
  s_barrier
""")
    cyc(8)
    a(f"""  v_add_u32 v108, {L_O}, v1
  ds_read_b128 v[32:35], v108
  ds_read_b128 v[36:39], v108 offset:1024
  ds_read_b128 v[40:43], v108 offset:2048
  ds_read_b128 v[44:47], v108 offset:3072
  s_cmp_lg_u32 s8, 0
  s_cbranch_scc1 chain_wo1
  v_add_u32 v109, {L_WO + 16384}, v1
  ds_read_b128 v[48:51], v109
  ds_read_b128 v[52:55], v109 offset:1024
  ds_read_b128 v[56:59], v109 offset:2048
  ds_read_b128 v[60:63], v109 offset:3072
  s_waitcnt lgkmcnt(0)
  v_mfma_f32_16x16x32_bf16 v[104:107], v[48:51], v[32:35], 0
  v_mfma_f32_16x16x32_bf16 v[104:107], v[52:55], v[36:39], v[104:107]
  v_mfma_f32_16x16x32_bf16 v[104:107], v[56:59], v[40:43], v[104:107]
  v_mfma_f32_16x16x32_bf16 v[104:107], v[60:63], v[44:47], v[104:107]
chain_wo1:
  s_waitcnt lgkmcnt(0)
  v_mfma_f32_16x16x32_bf16 v[100:103], v[16:19], v[32:35], 0
  v_mfma_f32_16x16x32_bf16 v[100:103], v[20:23], v[36:39], v[100:103]
  v_mfma_f32_16x16x32_bf16 v[100:103], v[24:27], v[40:43], v[100:103]
  v_mfma_f32_16x16x32_bf16 v[100:103], v[28:31], v[44:47], v[100:103]
  s_add_u32 s58, s28, s50
  s_addc_u32 s59, s29, 0
  v_cmp_gt_u32 vcc, 8, v4
  s_and_saveexec_b64 s[56:57], vcc
  s_nop 7
  s_cmp_eq_u32 s51, 0
  s_cbranch_scc1 chain_st_slow
  global_store_dwordx4 v12, v[100:103], s[58:59]
  s_cmp_lg_u32 s8, 0
  s_cbranch_scc1 chain_st1
  s_add_u32 s58, s58, 65536
  s_addc_u32 s59, s59, 0
  global_store_dwordx4 v12, v[104:107], s[58:59]
  s_branch chain_st1
chain_st_slow:
  global_store_dwordx4 v12, v[100:103], s[58:59] sc1
  s_cmp_lg_u32 s8, 0
  s_cbranch_scc1 chain_st1
  s_add_u32 s58, s58, 65536
  s_addc_u32 s59, s59, 0
  global_store_dwordx4 v12, v[104:107], s[58:59] sc1
chain_st1:
  s_mov_b64 exec, s[56:57]
""")
    cyc(9)
    stamp(3)
    cycdump()
    a(f"""
  s_cmp_lg_u32 s10, 0
  s_cbranch_scc1 chain_nokm
  global_store_dwordx4 v1, v[92:95], s[42:43]
  global_store_dwordx2 v13, v[96:97], s[44:45]
  global_store_dwordx2 v13, v[98:99], s[44:45] offset:512
chain_nokm:
  s_add_u32 s42, s42, 0x20000
  s_addc_u32 s43, s43, 0
  s_add_u32 s44, s44, 0x20000
  s_addc_u32 s45, s45, 0
  s_add_u32 s38, s38, 0x40000
  s_addc_u32 s39, s39, 0
  s_add_u32 s40, s40, 0x40000
  s_addc_u32 s41, s41, 0
  ; ---- reducer
  s_cmp_eq_u32 s36, 0
  s_cbranch_scc1 chain_cons
  s_add_u32 s58, s30, s50
  s_addc_u32 s59, s31, 0
  s_mov_b32 s60, 0
  s_cmp_eq_u32 s51, 1
  s_cbranch_scc1 chain_rpoll
  s_sleep 16
chain_rpoll:
  s_sleep {RS}
  global_load_dwordx4 v[16:19], v1, s[58:59] sc1
  global_load_dwordx4 v[20:23], v1, s[58:59] offset:1024 sc1
  global_load_dwordx4 v[24:27], v1, s[58:59] offset:2048 sc1
  global_load_dwordx4 v[28:31], v1, s[58:59] offset:3072 sc1
  s_waitcnt vmcnt(0)
  v_max3_u32 v32, v16, v17, v18
  v_max3_u32 v33, v19, v20, v21
  v_max3_u32 v34, v22, v23, v24
  v_max3_u32 v35, v25, v26, v27
  v_max3_u32 v32, v32, v28, v29
  v_max3_u32 v33, v33, v30, v31
  v_max3_u32 v32, v32, v34, v35
  v_max_u32 v32, v32, v33
  v_cmp_eq_u32 vcc, -1, v32
  s_add_u32 s60, s60, 1
  s_cmp_gt_u32 s60, {LIMIT}
  s_cbranch_scc1 chain_rdone
  s_cbranch_vccnz chain_rpoll
chain_rdone:
  v_add_f32 v16, v16, v20
  v_add_f32 v17, v17, v21
  v_add_f32 v18, v18, v22
  v_add_f32 v19, v19, v23
  v_add_f32 v24, v24, v28
  v_add_f32 v25, v25, v29
  v_add_f32 v26, v26, v30
  v_add_f32 v27, v27, v31
  v_add_f32 v16, v16, v24
  v_add_f32 v17, v17, v25
  v_add_f32 v18, v18, v26
  v_add_f32 v19, v19, v27
  s_nop 1
  v_add_f32_dpp v16, v16, v16 row_ror:8 row_mask:0xf bank_mask:0xf
  v_add_f32_dpp v17, v17, v17 row_ror:8 row_mask:0xf bank_mask:0xf
  v_add_f32_dpp v18, v18, v18 row_ror:8 row_mask:0xf bank_mask:0xf
  v_add_f32_dpp v19, v19, v19 row_ror:8 row_mask:0xf bank_mask:0xf
  v_mov_b32 v20, v16
  v_mov_b32 v21, v17
  v_mov_b32 v22, v18
  v_mov_b32 v23, v19
  s_nop 1
  v_permlane16_swap_b32 v16, v20
  v_permlane16_swap_b32 v17, v21
  v_permlane16_swap_b32 v18, v22
  v_permlane16_swap_b32 v19, v23
  v_add_f32 v16, v16, v20
  v_add_f32 v17, v17, v21
  v_add_f32 v18, v18, v22
  v_add_f32 v19, v19, v23
  v_mov_b32 v20, v16
  v_mov_b32 v21, v17
  v_mov_b32 v22, v18
  v_mov_b32 v23, v19
  s_nop 1
  v_permlane32_swap_b32 v16, v20
  v_permlane32_swap_b32 v17, v21
  v_permlane32_swap_b32 v18, v22
  v_permlane32_swap_b32 v19, v23
  v_add_f32 v16, v16, v20
  v_add_f32 v17, v17, v21
  v_add_f32 v18, v18, v22
  v_add_f32 v19, v19, v23
  v_cvt_pk_bf16_f32 v20, v16, v17
  v_cvt_pk_bf16_f32 v21, v18, v19
  global_store_dwordx2 v2, v[20:21], s[32:33] sc1
  v_mov_b32 v24, -1
  v_mov_b32 v25, -1
  v_mov_b32 v26, -1
  v_mov_b32 v27, -1
  s_cmp_eq_u32 s51, 0
  s_cbranch_scc1 chain_rc_slow
  v_mov_b32 v28, s94
  v_mov_b32 v29, 1
  s_mov_b64 s[56:57], exec
  s_mov_b64 exec, 1
  global_store_dword v28, v29, s[92:93]
  s_mov_b64 exec, s[56:57]
  global_store_dwordx4 v1, v[24:27], s[58:59]
  global_store_dwordx4 v1, v[24:27], s[58:59] offset:1024
  global_store_dwordx4 v1, v[24:27], s[58:59] offset:2048
  global_store_dwordx4 v1, v[24:27], s[58:59] offset:3072
  s_branch chain_rc_done
chain_rc_slow:
  global_store_dwordx4 v1, v[24:27], s[58:59] sc1
  global_store_dwordx4 v1, v[24:27], s[58:59] offset:1024 sc1
  global_store_dwordx4 v1, v[24:27], s[58:59] offset:2048 sc1
  global_store_dwordx4 v1, v[24:27], s[58:59] offset:3072 sc1
chain_rc_done:
  s_add_u32 s32, s32, 10240
  s_addc_u32 s33, s33, 0
""")
    stamp(4, True)
    a(f"""
  s_mov_b32 s60, 0
  s_cmp_eq_u32 s51, 1
  s_cbranch_scc1 chain_lf
  s_sleep 22
  s_branch chain_cpoll2
chain_cons:
  s_mov_b32 s60, 0
  s_cmp_eq_u32 s51, 1
  s_cbranch_scc1 chain_lf0
  s_sleep 58
  s_branch chain_cpoll2
chain_lf0:
  s_sleep {CS}
chain_lf:
  v_lshlrev_b32 v28, 2, v3
chain_lfpoll:
  s_sleep 1
  v_mov_b32 v29, 0
  v_cmp_gt_u32 vcc, 20, v3
  s_and_saveexec_b64 s[56:57], vcc
  global_load_dword v29, v28, s[92:93] sc1
  s_mov_b64 exec, s[56:57]
  s_waitcnt vmcnt(0)
  v_cmp_eq_u32 vcc, -1, v29
  s_add_u32 s60, s60, 1
  s_cmp_gt_u32 s60, {LIMIT}
  s_cbranch_scc1 chain_lfdone
  s_cbranch_vccnz chain_lfpoll
chain_lfdone:
  s_mov_b32 s60, 0
  s_sleep {LD}
chain_cpoll2:
  v_mov_b32 v24, 0
  v_mov_b32 v25, 0
  v_mov_b32 v26, 0
  v_mov_b32 v27, 0
chain_cpoll:
  s_sleep {CS2}
  global_load_dwordx4 v[16:19], v9, s[34:35] sc1
  global_load_dwordx4 v[20:23], v9, s[34:35] offset:1024 sc1
  v_cmp_gt_u32 vcc, 32, v3
  s_and_saveexec_b64 s[56:57], vcc
  global_load_dwordx4 v[24:27], v9, s[34:35] offset:2048 sc1
  s_mov_b64 exec, s[56:57]
  s_waitcnt vmcnt(0)
  v_max3_u32 v32, v16, v17, v18
  v_max3_u32 v33, v19, v20, v21
  v_max3_u32 v34, v22, v23, v24
  v_max3_u32 v32, v32, v25, v26
  v_max3_u32 v33, v33, v27, v34
  v_max_u32 v32, v32, v33
  v_cmp_eq_u32 vcc, -1, v32
  s_add_u32 s60, s60, 1
  s_cmp_gt_u32 s60, {LIMIT}
  s_cbranch_scc1 chain_cdone
  s_cbranch_vccnz chain_cpoll
chain_cdone:
""")
    stamp(5, True)
    a(f"""
  global_load_dwordx4 v[72:75], v1, s[38:39]
  global_load_dwordx4 v[76:79], v1, s[38:39] offset:1024
  global_load_dwordx4 v[80:83], v1, s[40:41]
  global_load_dwordx4 v[84:87], v1, s[40:41] offset:1024
  s_add_u32 s34, s34, 10240
  s_addc_u32 s35, s35, 0
  s_add_u32 s92, s92, 1024
  s_addc_u32 s93, s93, 0
  s_xor_b32 s50, s50, 655360
  s_add_u32 s49, s49, 1
  s_branch chain_step
chain_last:
""")
    lk2 = lk
    a("  s_waitcnt lgkmcnt(0)")
    for kt in range(1, 20):
        a(f"  ds_read_b128 {MB(0)}, v14 offset:{kt*1024}")
        if kt >= 10:
            for t in range(2): a(f"  ds_read_b128 {WB(0,t)}, v15 offset:{((kt-10)*2+t)*1024}")
        a("  s_waitcnt lgkmcnt(0)")
        for t in range(2):
            w = wreg(80+kt*2+t) if kt < 10 else WB(0, t)
            a(f"  v_mfma_f32_16x16x32_bf16 {VA[t]}, {MB(0)}, {w}, {VA[t]}")
        a("  s_nop 7")
    a("""  s_nop 7
  v_cvt_pk_bf16_f32 v96, v64, v65
  v_cvt_pk_bf16_f32 v97, v66, v67
  v_cvt_pk_bf16_f32 v98, v68, v69
  v_cvt_pk_bf16_f32 v99, v70, v71
  s_cmp_lg_u32 s10, 0
  s_cbranch_scc1 chain_done
  global_store_dwordx4 v1, v[92:95], s[42:43]
  global_store_dwordx2 v13, v[96:97], s[44:45]
  global_store_dwordx2 v13, v[98:99], s[44:45] offset:512
chain_done:
  s_endpgm""")
    return kd(name, 512, 100, 256)
```

```python
from common import *
from gen import A, kd, khead, Gemm, emit_ln

def gen_attn(a):
    name = "attn_kernel"
    khead(a, name)
    a(f"""
  s_cmp_ge_u32 s2, 512
  s_cbranch_scc1 attn_done
  s_load_dwordx2 s[6:7], s[0:1], 104
  v_lshrrev_b32 v2, 6, v0
  v_and_b32 v3, 63, v0
  s_nop 0
  v_readfirstlane_b32 s8, v2
  v_lshlrev_b32 v1, 4, v3
  v_lshlrev_b32 v7, 3, v3
  v_and_b32 v4, 15, v3                ; q local
  v_lshrrev_b32 v5, 4, v3             ; g
  s_lshl_b32 s9, s2, 2
  s_add_u32 s9, s9, s8
  s_waitcnt lgkmcnt(0)
  s_lshl_b32 s10, s9, 13
  s_add_u32 s11, s10, 0x{Q_F:x}
  s_add_u32 s12, s6, s11
  s_addc_u32 s13, s7, 0
  s_add_u32 s11, s10, 0x{K_F:x}
  s_add_u32 s14, s6, s11
  s_addc_u32 s15, s7, 0
  s_add_u32 s11, s10, 0x{V_F:x}
  s_add_u32 s16, s6, s11
  s_addc_u32 s17, s7, 0
  s_lshl_b32 s10, s9, 12
  s_add_u32 s11, s10, 0x{KM_F:x}
  s_add_u32 s18, s6, s11
  s_addc_u32 s19, s7, 0
  s_add_u32 s11, s10, 0x{VM_F:x}
  s_add_u32 s20, s6, s11
  s_addc_u32 s21, s7, 0
  v_add_u32 v6, 0x1000, v1
""")
    for f in range(8):
        vo = "v1" if f < 4 else "v6"
        a(f"  global_load_dwordx4 v[{16+4*f}:{19+4*f}], {vo}, s[12:13] offset:{(f%4)*1024}")
        a(f"  global_load_dwordx4 v[{48+4*f}:{51+4*f}], {vo}, s[14:15] offset:{(f%4)*1024}")
    for w in range(4):
        a(f"  global_load_dwordx4 v[{80+4*w}:{83+4*w}], v1, s[18:19] offset:{w*1024}")
    for f in range(8):
        vo = "v1" if f < 4 else "v6"
        a(f"  global_load_dwordx4 v[{96+4*f}:{99+4*f}], {vo}, s[16:17] offset:{(f%4)*1024}")
    for f in range(8):
        a(f"  global_load_dwordx2 v[{128+2*f}:{129+2*f}], v7, s[20:21] offset:{f*512}")
    a("  s_waitcnt vmcnt(16)")
    tiles = [(0,'M',144),(0,0,148),(1,'M',152),(1,0,156),(1,1,160)]
    for w in range(4):
        for (tt, kt, acc) in tiles:
            Kf = f"v[{80+4*w}:{83+4*w}]" if kt == 'M' else f"v[{48+4*(w*2+kt)}:{51+4*(w*2+kt)}]"
            Qf = f"v[{16+4*(w*2+tt)}:{19+4*(w*2+tt)}]"
            c = f"v[{acc}:{acc+3}]" if w > 0 else "0"
            a(f"  v_mfma_f32_16x16x32_bf16 v[{acc}:{acc+3}], {Kf}, {Qf}, {c}")
    a("""  s_mov_b32 s52, 0x3db504f3
  s_mov_b32 s53, 0x3fb8aa3b
  s_mov_b32 s54, 0xffff0000
  v_mov_b32 v8, 0xff800000
  v_lshlrev_b32 v9, 2, v5             ; 4g
  s_nop 4""")
    for i in range(144, 164, 2):
        a(f"""  v_cvt_pk_bf16_f32 v10, v{i}, v{i+1}
  v_lshlrev_b32 v{i}, 16, v10
  v_and_b32 v{i+1}, s54, v10
  v_mul_f32 v{i}, s52, v{i}
  v_mul_f32 v{i+1}, s52, v{i+1}
  v_cvt_pk_bf16_f32 v10, v{i}, v{i+1}
  v_lshlrev_b32 v{i}, 16, v10
  v_and_b32 v{i+1}, s54, v10""")
    a("  v_cmp_lt_u32 vcc, 31, v3\n  s_nop 1")
    for b in (144, 152):
        for r in range(4): a(f"  v_cndmask_b32 v{b+r}, v{b+r}, v8, vcc")
    for r in range(4):
        a(f"  v_add_u32 v10, {r}, v9\n  v_cmp_gt_u32 vcc, v10, v4\n  s_nop 1")
        a(f"  v_cndmask_b32 v{148+r}, v{148+r}, v8, vcc\n  v_cndmask_b32 v{160+r}, v{160+r}, v8, vcc")
    def softmax(regs, tmp):
        n = len(regs)
        a(f"  v_max3_f32 v{tmp}, v{regs[0]}, v{regs[1]}, v{regs[2]}")
        i = 3
        while i < n:
            if i+1 < n: a(f"  v_max3_f32 v{tmp}, v{tmp}, v{regs[i]}, v{regs[i+1]}"); i += 2
            else: a(f"  v_max_f32 v{tmp}, v{tmp}, v{regs[i]}"); i += 1
        for sw in ("16", "32"):
            a(f"""  s_nop 1
  v_mov_b32 v{tmp+1}, v{tmp}
  s_nop 1
  v_permlane{sw}_swap_b32 v{tmp}, v{tmp+1}
  v_max_f32 v{tmp}, v{tmp}, v{tmp+1}""")
        for r in regs: a(f"  v_sub_f32 v{r}, v{r}, v{tmp}\n  v_mul_f32 v{r}, s53, v{r}")
        for r in regs: a(f"  v_exp_f32 v{r}, v{r}")
        a(f"  s_nop 0\n  v_add_f32 v{tmp}, v{regs[0]}, v{regs[1]}")
        for r in regs[2:]: a(f"  v_add_f32 v{tmp}, v{tmp}, v{r}")
        for sw in ("16", "32"):
            a(f"""  s_nop 1
  v_mov_b32 v{tmp+1}, v{tmp}
  s_nop 1
  v_permlane{sw}_swap_b32 v{tmp}, v{tmp+1}
  v_add_f32 v{tmp}, v{tmp}, v{tmp+1}""")
        a(f"""  v_rcp_f32 v{tmp+1}, v{tmp}
  s_nop 0
  v_fma_f32 v{tmp+2}, -v{tmp}, v{tmp+1}, 1.0
  v_fma_f32 v{tmp+1}, v{tmp+2}, v{tmp+1}, v{tmp+1}""")
        for r in regs: a(f"  v_mul_f32 v{r}, v{r}, v{tmp+1}")
    softmax(list(range(144, 152)), 10)
    softmax(list(range(152, 164)), 10)
    a("""  v_cvt_pk_bf16_f32 v164, v144, v145
  v_cvt_pk_bf16_f32 v165, v146, v147
  v_cvt_pk_bf16_f32 v166, v148, v149
  v_cvt_pk_bf16_f32 v167, v150, v151
  v_mov_b32 v168, 0
  v_mov_b32 v169, 0
  v_cvt_pk_bf16_f32 v170, v152, v153
  v_cvt_pk_bf16_f32 v171, v154, v155
  v_cvt_pk_bf16_f32 v172, v156, v157
  v_cvt_pk_bf16_f32 v173, v158, v159
  v_cvt_pk_bf16_f32 v174, v160, v161
  v_cvt_pk_bf16_f32 v175, v162, v163
  s_waitcnt vmcnt(0)""")
    for tt in range(2):
        pm = "v[164:165]" if tt == 0 else "v[170:171]"
        for et in range(8):
            acc = 16+4*(tt*8+et)
            a(f"  v_mfma_f32_16x16x16_bf16 v[{acc}:{acc+3}], v[{128+2*et}:{129+2*et}], {pm}, 0")
    for tt in range(2):
        px = "v[166:169]" if tt == 0 else "v[172:175]"
        for et in range(8):
            acc = 16+4*(tt*8+et)
            a(f"  v_mfma_f32_16x16x32_bf16 v[{acc}:{acc+3}], v[{96+4*et}:{99+4*et}], {px}, v[{acc}:{acc+3}]")
    a(f"""  s_lshr_b32 s10, s9, 5
  s_and_b32 s11, s9, 31
  s_mul_i32 s10, s10, {2*OSTR*1024}
  s_lshl_b32 s11, s11, 12
  s_add_u32 s10, s10, s11
  s_add_u32 s10, s10, 0x{O_F:x}
  s_add_u32 s22, s6, s10
  s_addc_u32 s23, s7, 0
  s_add_u32 s24, s22, {OSTR*1024}
  s_addc_u32 s25, s23, 0
  s_nop 4""")
    for tt in range(2):
        for wp in range(4):
            b = 16+4*(tt*8+2*wp)
            a(f"""  v_cvt_pk_bf16_f32 v{80+4*wp}, v{b}, v{b+1}
  v_cvt_pk_bf16_f32 v{81+4*wp}, v{b+2}, v{b+3}
  v_cvt_pk_bf16_f32 v{82+4*wp}, v{b+4}, v{b+5}
  v_cvt_pk_bf16_f32 v{83+4*wp}, v{b+6}, v{b+7}
  global_store_dwordx4 v1, v[{80+4*wp}:{83+4*wp}], s[{22+2*tt}:{23+2*tt}] offset:{wp*1024}""")
        a("  s_nop 1")
    a("attn_done:\n  s_endpgm")
    return kd(name, 176, 64, 176)

def resid_epilogue(a, g, s_res, s_dst):
    a(f"""  v_and_b32 v5, 15, v0
  v_bfe_u32 v6, v0, 4, 2              ; g
  s_mul_i32 s10, s20, {g.MT}
  s_mul_i32 s11, s23, {g.mt}
  s_add_u32 s10, s10, s11
  s_lshl_b32 s10, s10, 4              ; token0
  v_add_u32 v5, s10, v5
  v_mul_u32_u24 v5, 0x500, v5
  s_mul_i32 s10, s21, {g.NT}
  s_mul_i32 s11, s24, {g.nt}
  s_add_u32 s10, s10, s11
  s_lshl_b32 s10, s10, 5
  v_lshl_add_u32 v5, v6, 3, v5
  v_add_u32 v5, s10, v5
  s_mov_b32 s54, 0xffff0000""")
    k = 0
    for i in range(g.mt):
        for j in range(g.nt):
            a(f"  global_load_dwordx2 v[{32+2*k}:{33+2*k}], v5, s[{s_res}:{s_res+1}] offset:{j*32}")
            k += 1
        if i+1 < g.mt: a(f"  v_add_u32 v5, {16*1280}, v5")
    a(f"  v_subrev_u32 v5, {16*1280*(g.mt-1)}, v5")
    k = 0; n = g.mt*g.nt
    for i in range(g.mt):
        for j in range(g.nt):
            acc = 4*(i*g.nt+j)
            for r in range(4): a(f"  v_accvgpr_read_b32 v{8+r}, a{acc+r}")
            a(f"""  v_cvt_pk_bf16_f32 v12, v8, v9
  v_cvt_pk_bf16_f32 v13, v10, v11
  v_lshlrev_b32 v8, 16, v12
  v_and_b32 v9, s54, v12
  v_lshlrev_b32 v10, 16, v13
  v_and_b32 v11, s54, v13
  s_waitcnt vmcnt({n-1-k})
  v_lshlrev_b32 v14, 16, v{32+2*k}
  v_and_b32 v15, s54, v{32+2*k}
  v_lshlrev_b32 v16, 16, v{33+2*k}
  v_and_b32 v17, s54, v{33+2*k}
  v_add_f32 v8, v8, v14
  v_add_f32 v9, v9, v15
  v_add_f32 v10, v10, v16
  v_add_f32 v11, v11, v17
  v_cvt_pk_bf16_f32 v{20+2*(k%4)}, v8, v9
  v_cvt_pk_bf16_f32 v{21+2*(k%4)}, v10, v11
  global_store_dwordx2 v5, v[{20+2*(k%4)}:{21+2*(k%4)}], s[{s_dst}:{s_dst+1}] offset:{j*32}""")
            k += 1; n += 1
        if i+1 < g.mt: a(f"  v_add_u32 v5, {16*1280}, v5")

MAP64 = """
  s_and_b32 s10, s2, 7
  s_lshr_b32 s11, s2, 3
  s_and_b32 s12, s11, 1
  s_lshl_b32 s20, s10, 1
  s_add_u32 s20, s20, s12
  s_lshr_b32 s21, s11, 1
  s_mov_b32 s19, 0
"""
MAPSK = """
  s_and_b32 s10, s2, 7
  s_lshr_b32 s11, s2, 3
  s_and_b32 s12, s11, 1
  s_lshl_b32 s20, s10, 1
  s_add_u32 s20, s20, s12
  s_lshr_b32 s13, s11, 1              ; rest
  s_mul_i32 s19, s13, 52429
  s_lshr_b32 s19, s19, 18
  s_mul_i32 s14, s19, 5
  s_sub_u32 s21, s13, s14             ; nb = rest%5
"""
def splitk_reduce(a, g, cnt_base):
    n = g.name; nacc = g.mt*g.nt
    a(f"""  s_mul_i32 s10, s20, 5
  s_add_u32 s10, s10, s21             ; tile
  s_mul_i32 s11, s10, {g.NSPLIT*4*nacc*1024}
  s_mul_i32 s12, s22, {nacc*1024}
  s_add_u32 s11, s11, s12
  s_add_u32 s11, s11, 0x{PART_OFF:x}
  s_add_u32 s14, s6, s11
  s_addc_u32 s15, s7, 0
  s_mul_i32 s12, s19, {4*nacc*1024}
  s_add_u32 s16, s14, s12
  s_addc_u32 s17, s15, 0
  v_mov_b32 v5, v1""")
    for t in range(nacc):
        a(f"  global_store_dwordx4 v5, a[{4*t}:{4*t+3}], s[16:17] offset:{(t%4)*1024} sc1")
        if t % 4 == 3: a("  v_add_u32 v5, 0x1000, v5")
    a(f"""  s_waitcnt vmcnt(0)
  s_barrier
  s_cmp_lg_u32 s22, 0
  s_cbranch_scc1 {n}_skw
  s_lshl_b32 s12, s10, 2
  s_add_u32 s12, s12, 0x{CNT_OFF + cnt_base:x}
  s_add_u32 s16, s6, s12
  s_addc_u32 s17, s7, 0
  v_mov_b32 v8, 0
  v_mov_b32 v9, 1
  s_mov_b64 s[56:57], exec
  s_mov_b64 exec, 1
  global_atomic_add v10, v8, v9, s[16:17] sc0
  s_waitcnt vmcnt(0)
  ds_write_b32 v8, v10
  s_waitcnt lgkmcnt(0)
  s_mov_b64 exec, s[56:57]
{n}_skw:
  s_barrier
  v_mov_b32 v8, 0
  ds_read_b32 v10, v8
  s_waitcnt lgkmcnt(0)
  s_nop 0
  v_readfirstlane_b32 s12, v10
  s_nop 3
  s_cmp_lg_u32 s12, {g.NSPLIT-1}
  s_cbranch_scc1 {n}_done""")
    for t0 in range(0, nacc, 4):
        a(f"  v_add_u32 v5, {t0*1024}, v1")
        for sp in range(g.NSPLIT):
            a(f"  s_add_u32 s16, s14, {sp*4*nacc*1024}\n  s_addc_u32 s17, s15, 0")
            for t in range(4):
                r = 8 + 16*sp + 4*t
                a(f"  global_load_dwordx4 v[{r}:{r+3}], v5, s[16:17] offset:{t*1024} sc1")
        a("  s_waitcnt vmcnt(0)")
        for sp in range(1, g.NSPLIT):
            for i in range(0, 16, 2):
                a(f"  v_pk_add_f32 v[{8+i}:{9+i}], v[{8+i}:{9+i}], v[{8+16*sp+i}:{9+16*sp+i}]")
        for i in range(16):
            a(f"  v_accvgpr_write_b32 a{4*t0+i}, v{8+i}")
    a("  s_nop 1")

def gen_wo(a):
    g = Gemm("wo_kernel", MT=8, NT=8, KT=128, NS=4, WM=2, WN=2, x_off=O_F, w_off=WO_F, nwg=320, KS=1, NSPLIT=4, KSTR=OSTR)
    khead(a, g.name); g.prologue(a, MAPSK)
    g.mainloop(a, True, "")
    splitk_reduce(a, g, 0)
    a(f"  s_add_u32 s14, s6, 0x{H_RM:x}\n  s_addc_u32 s15, s7, 0")
    resid_epilogue(a, g, 4, 14)
    a("wo_kernel_done:\n  s_endpgm")
    return kd(g.name, 80+64, 64, 80), g

def gen_ffn2(a):
    g = Gemm("ffn2_kernel", MT=8, NT=8, KT=54, NS=4, WM=2, WN=2, x_off=ACT_F, w_off=WD_F, nwg=240, KS=1, NSPLIT=3)
    khead(a, g.name); g.prologue(a, MAPSK)
    g.mainloop(a, True, "")
    splitk_reduce(a, g, 512)
    a(f"  s_add_u32 s14, s6, 0x{H_RM:x}\n  s_addc_u32 s15, s7, 0")
    resid_epilogue(a, g, 14, 8)
    a("ffn2_kernel_done:\n  s_endpgm")
    return kd(g.name, 80+64, 64, 80), g

def gen_ln2(a):
    name = "ln2_kernel"
    khead(a, name)
    a(f"""
  s_cmp_ge_u32 s2, 32
  s_cbranch_scc1 ln2_done
  s_load_dwordx2 s[6:7], s[0:1], 104
  v_lshrrev_b32 v1, 6, v0
  v_and_b32 v2, 63, v0
  s_nop 0
  v_readfirstlane_b32 s22, v1
  s_lshl_b32 s23, s2, 2
  s_nop 2
  s_add_u32 s23, s23, s22
  s_waitcnt lgkmcnt(0)
  s_add_u32 s4, s6, 0x{H_RM:x}
  s_addc_u32 s5, s7, 0""")
    emit_ln(a, "l", 4, 23, 6, HN_F, 2)
    a("ln2_done:\n  s_endpgm")
    return kd(name, 128, 64, 128)

def gen_ffn1(a):
    g = Gemm("ffn1_kernel", MT=8, NT=8, KT=20, NS=4, WM=2, WN=2, x_off=HN_F, w_off=WGU_F, nwg=432)
    khead(a, g.name)
    g.prologue(a, MAP64)
    g.mainloop(a, True, "")
    a(f"""  s_lshl_b32 s10, s20, 3
  s_lshl_b32 s11, s23, 2
  s_add_u32 s10, s10, s11
  s_mul_i32 s10, s10, 54
  s_lshl_b32 s11, s21, 1
  s_add_u32 s10, s10, s11
  s_add_u32 s10, s10, s24
  s_lshl_b32 s10, s10, 10
  s_add_u32 s10, s10, 0x{ACT_F:x}
  s_add_u32 s14, s6, s10
  s_addc_u32 s15, s7, 0
  s_mov_b32 s54, 0xffff0000""")
    for i in range(4):
        for t in range(2):
            ag = 4*(i*4+t); au = 4*(i*4+2+t)
            for r in range(4): a(f"  v_accvgpr_read_b32 v{8+r}, a{ag+r}\n  v_accvgpr_read_b32 v{12+r}, a{au+r}")
            a(f"""  v_cvt_pk_bf16_f32 v16, v8, v9
  v_cvt_pk_bf16_f32 v17, v10, v11
  v_cvt_pk_bf16_f32 v18, v12, v13
  v_cvt_pk_bf16_f32 v19, v14, v15
  v_lshlrev_b32 v8, 16, v16
  v_and_b32 v9, s54, v16
  v_lshlrev_b32 v10, 16, v17
  v_and_b32 v11, s54, v17
  v_lshlrev_b32 v12, 16, v18
  v_and_b32 v13, s54, v18
  v_lshlrev_b32 v14, 16, v19
  v_and_b32 v15, s54, v19
  v_max_f32 v8, 0, v8
  v_max_f32 v9, 0, v9
  v_max_f32 v10, 0, v10
  v_max_f32 v11, 0, v11
  v_mul_f32 v8, v8, v12
  v_mul_f32 v9, v9, v13
  v_mul_f32 v10, v10, v14
  v_mul_f32 v11, v11, v15
  v_cvt_pk_bf16_f32 v{20+4*(i%2)+2*t}, v8, v9
  v_cvt_pk_bf16_f32 v{21+4*(i%2)+2*t}, v10, v11""")
        a(f"  global_store_dwordx4 v1, v[{20+4*(i%2)}:{23+4*(i%2)}], s[14:15]")
        a(f"  s_add_u32 s14, s14, {54*1024}\n  s_addc_u32 s15, s15, 0")
    a("ffn1_kernel_done:\n  s_endpgm")
    return kd(g.name, g.vgprs()+64, 64, g.vgprs()), g
```

```python
import sys
from common import *

class A:
    def __init__(s): s.l = []
    def __call__(s, t):
        for x in t.strip('\n').split('\n'): s.l.append(x)
    def text(s): return '\n'.join(s.l) + '\n'

def kd(name, vgpr, sgpr, accum):
    return f""".amdhsa_kernel {name}
  .amdhsa_next_free_vgpr {vgpr}
  .amdhsa_next_free_sgpr {sgpr}
  .amdhsa_accum_offset {accum}
  .amdhsa_group_segment_fixed_size 0
  .amdhsa_kernarg_size 112
  .amdhsa_user_sgpr_count 2
  .amdhsa_user_sgpr_kernarg_segment_ptr 1
  .amdhsa_system_sgpr_workgroup_id_x 1
.end_amdhsa_kernel
"""

def khead(a, name):
    a(f""".globl {name}
.p2align 8
.type {name},@function
{name}:""")

def emit_ln(a, tag, s_src, s_rt, s_ws, dst_off, v_lane):
    a(f"""
  v_and_b32 v4, 15, v{v_lane}          ; r
  v_lshrrev_b32 v5, 4, v{v_lane}       ; g
  s_lshl_b32 s40, s{s_rt}, 4
  v_add_u32 v4, s40, v4                ; row
  v_mul_u32_u24 v4, 0x500, v4          ; row*1280
  v_lshl_add_u32 v4, v5, 4, v4         ; + g*16
""")
    for kt in range(20):
        a(f"  global_load_dwordx4 v[{16+4*kt}:{19+4*kt}], v4, s[{s_src}:{s_src+1}] offset:{kt*64}")
    a("  v_mov_b32 v6, 0\n  v_mov_b32 v7, 0")
    a("  s_mov_b32 s41, 0xffff0000")
    for kt in range(20):
        a(f"  s_waitcnt vmcnt({19-kt})")
        for j in range(4):
            r = 16+4*kt+j
            a(f"""  v_lshlrev_b32 v8, 16, v{r}
  v_and_b32 v9, s41, v{r}
  v_add_f32 v6, v6, v8
  v_add_f32 v7, v7, v9""")
    a("""  v_add_f32 v6, v6, v7
  s_nop 1
  v_mov_b32 v7, v6
  s_nop 1
  v_permlane16_swap_b32 v6, v7
  v_add_f32 v6, v6, v7
  s_nop 1
  v_mov_b32 v7, v6
  s_nop 1
  v_permlane32_swap_b32 v6, v7
  v_add_f32 v6, v6, v7
  v_mul_f32 v6, 0x3acccccd, v6
  v_mov_b32 v10, 0
  v_mov_b32 v11, 0""")
    for kt in range(20):
        for j in range(4):
            r = 16+4*kt+j
            a(f"""  v_lshlrev_b32 v8, 16, v{r}
  v_and_b32 v9, s41, v{r}
  v_sub_f32 v8, v8, v6
  v_sub_f32 v9, v9, v6
  v_fmac_f32 v10, v8, v8
  v_fmac_f32 v11, v9, v9""")
    a("""  v_add_f32 v10, v10, v11
  s_nop 1
  v_mov_b32 v11, v10
  s_nop 1
  v_permlane16_swap_b32 v10, v11
  v_add_f32 v10, v10, v11
  s_nop 1
  v_mov_b32 v11, v10
  s_nop 1
  v_permlane32_swap_b32 v10, v11
  v_add_f32 v10, v10, v11
  v_mul_f32 v10, 0x3acccccd, v10       ; var
  v_cvt_pk_bf16_f32 v12, v6, v10
  v_lshlrev_b32 v6, 16, v12            ; mean_b
  v_and_b32 v10, s41, v12              ; var_b
  v_add_f32 v10, 0x3727c5ac, v10       ; + 1e-5
  v_cvt_pk_bf16_f32 v12, v10, v10
  v_lshlrev_b32 v10, 16, v12
  v_sqrt_f32 v10, v10
  s_nop 0
  v_cvt_pk_bf16_f32 v12, v10, v10
  v_lshlrev_b32 v10, 16, v12
  v_rcp_f32 v11, v10
  s_nop 0
  v_fma_f32 v12, -v10, v11, 1.0
  v_fma_f32 v11, v12, v11, v11         ; 1/den
""")
    a(f"""  s_mul_i32 s42, s{s_rt}, 20480
  s_add_u32 s42, s42, 0x{dst_off:x}
  s_add_u32 s44, s{s_ws}, s42
  s_addc_u32 s45, s{s_ws+1}, 0
  v_lshlrev_b32 v13, 4, v{v_lane}""")
    for kt in range(20):
        for j in range(4):
            r = 16+4*kt+j
            a(f"""  v_lshlrev_b32 v8, 16, v{r}
  v_and_b32 v9, s41, v{r}
  v_sub_f32 v8, v8, v6
  v_sub_f32 v9, v9, v6
  v_cvt_pk_bf16_f32 v14, v8, v9
  v_lshlrev_b32 v8, 16, v14
  v_and_b32 v9, s41, v14
  v_mul_f32 v8, v8, v11
  v_mul_f32 v9, v9, v11
  v_cvt_pk_bf16_f32 v{r}, v8, v9""")
        off = kt*1024
        if off < 4096:
            a(f"  global_store_dwordx4 v13, v[{16+4*kt}:{19+4*kt}], s[44:45] offset:{off}")
        else:
            if off % 4096 == 0:
                a("  s_add_u32 s44, s44, 0x1000\n  s_addc_u32 s45, s45, 0")
            a(f"  global_store_dwordx4 v13, v[{16+4*kt}:{19+4*kt}], s[44:45] offset:{off % 4096}")

NJ_LN, NJ_QKV, NJ_WO, NJ_GU, NJ_WD = 128, 768, 320, 216, 120
CLR_BYTES = P_BYTES + 8*MB_STRIDE + LF_BYTES
NJ_CLR = (CLR_BYTES + 16383)//16384
PREP_WAVES = NJ_LN+NJ_QKV+NJ_WO+NJ_GU+NJ_WD+NJ_CLR
PREP_WGS = (PREP_WAVES+3)//4

def gen_prep(a):
    name = "prep_kernel"
    khead(a, name)
    b0 = NJ_LN; b1 = b0+NJ_QKV; b2 = b1+NJ_WO; b3 = b2+NJ_GU; b4 = b3+NJ_WD; b5 = b4+NJ_CLR
    a(f"""
  s_load_dwordx2 s[4:5], s[0:1], 0
  s_load_dwordx2 s[6:7], s[0:1], 104
  s_load_dwordx4 s[8:11], s[0:1], 16
  s_load_dwordx4 s[12:15], s[0:1], 32
  s_load_dwordx4 s[16:19], s[0:1], 64
  s_load_dwordx2 s[20:21], s[0:1], 80
  v_lshrrev_b32 v1, 6, v0
  v_and_b32 v2, 63, v0
  s_nop 0
  v_readfirstlane_b32 s22, v1
  s_lshl_b32 s23, s2, 2
  s_nop 2
  s_add_u32 s23, s23, s22
  s_waitcnt lgkmcnt(0)
  s_cmp_ge_u32 s23, {b5}
  s_cbranch_scc1 prep_done
  s_cmp_lt_u32 s23, {b0}
  s_cbranch_scc1 prep_ln
  s_cmp_ge_u32 s23, {b4}
  s_cbranch_scc1 prep_clr
  s_cmp_lt_u32 s23, {b1}
  s_cbranch_scc1 prep_qkv
  s_cmp_lt_u32 s23, {b2}
  s_cbranch_scc1 prep_wo
  s_cmp_lt_u32 s23, {b3}
  s_cbranch_scc1 prep_gu
  ; ---- Wd: j = s23-b3 ; nt=j/3 chunk=j%3
  s_sub_u32 s24, s23, {b3}
  s_mov_b32 s25, 0x55555556
  s_mul_hi_u32 s26, s24, s25          ; nt
  s_mul_i32 s27, s26, 3
  s_sub_u32 s27, s24, s27             ; chunk
  s_mul_i32 s27, s27, 18              ; kt0
  s_mov_b32 s28, s20
  s_mov_b32 s29, s21
  s_mov_b32 s30, 1280
  s_lshl_b32 s31, s26, 4              ; n0
  s_mov_b32 s32, 18                   ; KC
  s_mul_i32 s33, s26, 54
  s_add_u32 s33, s33, s27
  s_lshl_b32 s33, s33, 10
  s_add_u32 s33, s33, 0x{WD_F:x}
  s_mov_b32 s34, 4                    ; A (perm)
  s_mov_b32 s35, 16                   ; B
  s_branch prep_rl
prep_gu:
  s_sub_u32 s24, s23, {b2}
  s_lshr_b32 s26, s24, 3
  s_lshl_b32 s26, s26, 2              ; G*4
  s_bfe_u32 s27, s24, 0x10002
  s_lshl_b32 s27, s27, 1
  s_add_u32 s26, s26, s27
  s_and_b32 s27, s24, 1
  s_add_u32 s26, s26, s27
  s_bitcmp1_b32 s24, 1
  s_cselect_b32 s28, s18, s16
  s_cselect_b32 s29, s19, s17
  s_mov_b32 s30, {F*2}
  s_lshl_b32 s31, s26, 4
  s_mov_b32 s27, 0
  s_mov_b32 s32, 20
  s_mul_i32 s33, s24, 20480
  s_add_u32 s33, s33, 0x{WGU_F:x}
  s_mov_b32 s34, 8
  s_mov_b32 s35, 4
  s_branch prep_rl
prep_wo:
  s_sub_u32 s24, s23, {b1}
  s_lshr_b32 s26, s24, 3              ; nt
  s_and_b32 s27, s24, 7
  s_lshl_b32 s27, s27, 4              ; kt0
  s_mov_b32 s28, s14
  s_mov_b32 s29, s15
  s_mov_b32 s30, 1280
  s_lshl_b32 s31, s26, 4
  s_mov_b32 s32, 16
  s_mul_i32 s33, s26, {OSTR}
  s_add_u32 s33, s33, s27
  s_lshl_b32 s33, s33, 10
  s_add_u32 s33, s33, 0x{WO_F:x}
  s_mov_b32 s34, 4
  s_mov_b32 s35, 16
  s_branch prep_rl
prep_qkv:
  s_sub_u32 s24, s23, {b0}
  s_lshr_b32 s26, s24, 8              ; type
  s_and_b32 s27, s24, 255             ; nt
  s_mov_b32 s28, s8
  s_mov_b32 s29, s9
  s_cmp_eq_u32 s26, 1
  s_cselect_b32 s28, s10, s28
  s_cselect_b32 s29, s11, s29
  s_cmp_eq_u32 s26, 2
  s_cselect_b32 s28, s12, s28
  s_cselect_b32 s29, s13, s29
  s_mov_b32 s30, 8192
  s_lshl_b32 s31, s27, 4
  s_mov_b32 s27, 0
  s_mov_b32 s32, 20
  s_mul_i32 s33, s24, 20480
  s_add_u32 s33, s33, 0x{WQKV_F:x}
  s_mov_b32 s34, 8
  s_mov_b32 s35, 4
prep_rl:
  v_and_b32 v4, 15, v2
  v_lshrrev_b32 v5, 4, v2
  v_add_u32 v4, s31, v4
  v_lshlrev_b32 v4, 1, v4             ; (n0+n)*2
  v_mul_lo_u32 v5, v5, s34            ; g*A
  s_lshl_b32 s36, s27, 5              ; kt0*32
  v_add_u32 v5, s36, v5
  v_mul_lo_u32 v5, v5, s30
  v_add_u32 v8, v4, v5                ; i=0
  v_add_u32 v9, s30, v8
  v_add_u32 v10, s30, v9
  v_add_u32 v11, s30, v10
  s_mul_i32 s37, s35, s30             ; B*stride
  v_add_u32 v12, s37, v8
  v_add_u32 v13, s30, v12
  v_add_u32 v14, s30, v13
  v_add_u32 v15, s30, v14
  s_lshl_b32 s38, s30, 5
  s_add_u32 s40, s6, s33
  s_addc_u32 s41, s7, 0
  v_lshlrev_b32 v16, 4, v2
  s_mov_b32 s39, 0
prep_rl_loop:
""")
    for u in range(2):
        for i in range(8):
            a(f"  global_load_ushort v{32+8*u+i}, v{8+i}, s[28:29]")
        a("  s_add_u32 s28, s28, s38\n  s_addc_u32 s29, s29, 0")
    a(f"""
  s_waitcnt vmcnt(8)
  v_lshl_or_b32 v20, v33, 16, v32
  v_lshl_or_b32 v21, v35, 16, v34
  v_lshl_or_b32 v22, v37, 16, v36
  v_lshl_or_b32 v23, v39, 16, v38
  global_store_dwordx4 v16, v[20:23], s[40:41]
  s_waitcnt vmcnt(1)
  v_lshl_or_b32 v24, v41, 16, v40
  v_lshl_or_b32 v25, v43, 16, v42
  v_lshl_or_b32 v26, v45, 16, v44
  v_lshl_or_b32 v27, v47, 16, v46
  global_store_dwordx4 v16, v[24:27], s[40:41] offset:1024
  s_add_u32 s40, s40, 0x800
  s_addc_u32 s41, s41, 0
  s_add_u32 s39, s39, 2
  s_cmp_lt_u32 s39, s32
  s_cbranch_scc1 prep_rl_loop
  s_branch prep_done
prep_clr:
  s_sub_u32 s24, s23, {b4}
  s_cmp_lg_u32 s24, 0
  s_cbranch_scc1 prep_clr2
  v_lshlrev_b32 v16, 4, v2
  v_mov_b32 v20, 0
  v_mov_b32 v21, 0
  v_mov_b32 v22, 0
  v_mov_b32 v23, 0
  s_add_u32 s40, s6, 0x{CNT_OFF:x}
  s_addc_u32 s41, s7, 0
  global_store_dwordx4 v16, v[20:23], s[40:41]
  s_nop 1
prep_clr2:
  s_lshl_b32 s24, s24, 14
  v_lshlrev_b32 v16, 4, v2
  v_mov_b32 v20, -1
  v_mov_b32 v21, -1
  v_mov_b32 v22, -1
  v_mov_b32 v23, -1
  s_mov_b32 s39, 0
prep_clr_loop:
  s_add_u32 s25, s24, s39
  s_cmp_ge_u32 s25, {CLR_BYTES}
  s_cbranch_scc1 prep_done
  s_mov_b32 s27, 0x{P_OFF:x}
  s_cmp_lt_u32 s25, {P_BYTES}
  s_cselect_b32 s26, s27, 0x{MB_OFF - P_BYTES:x}
  s_add_u32 s25, s25, s26
  s_add_u32 s40, s6, s25
  s_addc_u32 s41, s7, 0
  global_store_dwordx4 v16, v[20:23], s[40:41]
  s_add_u32 s39, s39, 1024
  s_cmp_lt_u32 s39, 16384
  s_cbranch_scc1 prep_clr_loop
  s_branch prep_done
prep_ln:
""")
    emit_ln(a, "p", 4, 23, 6, XN_F, 2)
    a("prep_done:\n  s_endpgm")
    return kd(name, 128, 64, 128)

class Gemm:
    def __init__(s, name, MT, NT, KT, NS, WM, WN, x_off, w_off, nwg, KS=1, NSPLIT=1, KSTR=None):
        s.name, s.MT, s.NT, s.KT, s.NS, s.WM, s.WN = name, MT, NT, KT, NS, WM, WN
        s.x_off, s.w_off, s.nwg, s.KS = x_off, w_off, nwg, KS
        s.mt, s.nt = MT//WM, NT//WN
        s.T = MT+NT
        s.KSTR = KSTR or KT
        s.NSPLIT = NSPLIT; s.KTC = KT//NSPLIT
        assert s.T % 4 == 0 and KS == 1 and KT % NSPLIT == 0
        s.nd = s.T//4
        s.stage = s.T*1024*KS
        s.lds = s.stage*NS
        s.NSTEP = s.KTC//KS
    def prologue(s, a, map_code):
        n = s.name
        a(f"""
  s_cmp_ge_u32 s2, {s.nwg}
  s_cbranch_scc1 {n}_done
  s_load_dwordx2 s[6:7], s[0:1], 104
  s_load_dwordx2 s[4:5], s[0:1], 0
  s_load_dwordx2 s[8:9], s[0:1], 88
  v_lshrrev_b32 v5, 6, v0
  v_and_b32 v6, 63, v0
  s_nop 0
  v_readfirstlane_b32 s22, v5         ; wave
  v_lshlrev_b32 v1, 4, v6             ; lane*16
""")
        a(map_code)
        a(f"""
  s_waitcnt lgkmcnt(0)
  s_lshr_b32 s23, s22, {1 if s.WN==2 else (2 if s.WN==4 else 0)}   ; wm
  s_and_b32 s24, s22, {s.WN-1}        ; wn
""")
        for j in range(s.nd):
            sb = 40+2*j
            a(f"""  s_add_u32 s25, s22, {4*j}
  s_mul_i32 s26, s20, {s.MT}
  s_add_u32 s26, s26, s25
  s_mul_i32 s26, s26, {s.KSTR*1024}
  s_add_u32 s26, s26, 0x{s.x_off:x}
  s_mul_i32 s27, s21, {s.NT}
  s_add_u32 s27, s27, s25
  s_sub_u32 s27, s27, {s.MT}
  s_mul_i32 s27, s27, {s.KSTR*1024}
  s_add_u32 s27, s27, 0x{s.w_off:x}
  s_cmp_lt_u32 s25, {s.MT}
  s_cselect_b32 s26, s26, s27
  s_add_u32 s{sb}, s6, s26
  s_addc_u32 s{sb+1}, s7, 0""")
        a(f"""  s_mul_i32 s28, s22, {1024*s.KS}
  s_mul_i32 s25, s19, {s.KTC*1024 if s.NSPLIT > 1 else 0}
  v_add_u32 v2, s25, v1
  s_mul_i32 s29, s23, {s.mt*1024*s.KS}
  s_mul_i32 s30, s24, {s.nt*1024*s.KS}
  s_add_u32 s30, s30, {s.MT*1024*s.KS}
  s_mov_b32 s31, 0
  s_mov_b32 s32, 0
""")
        for st in range(s.NS):
            s.dma(a)
        for i in range(s.mt*s.nt*4):
            a(f"  v_accvgpr_write_b32 a{i}, 0")
    def dma_list(s):
        L = ["  s_add_u32 s33, s32, s28"]
        for j in range(s.nd):
            L.append(f"  s_add_u32 m0, s33, {4096*j}\n  s_nop 0\n  global_load_lds_dwordx4 v2, s[{40+2*j}:{41+2*j}]")
        L.append(f"""  v_add_u32 v2, 1024, v2
  s_add_u32 s32, s32, {s.stage}
  s_cmp_ge_u32 s32, {s.lds}
  s_cselect_b32 s32, 0, s32""")
        return L
    def dma(s, a):
        for x in s.dma_list(): a(x)
    def regs(s, k):
        nf = s.nt + s.mt
        base = 8 + 4*nf*(k % 2)
        return base, base + 4*s.nt
    def read_list(s, k):
        fb, fa = s.regs(k)
        L = [f"""  s_add_u32 s34, s31, s29
  s_add_u32 s35, s31, s30
  v_add_u32 v3, s34, v1
  v_add_u32 v4, s35, v1"""]
        for j in range(s.nt): L.append(f"  ds_read_b128 v[{fb+4*j}:{fb+4*j+3}], v4 offset:{1024*j}")
        for i in range(s.mt): L.append(f"  ds_read_b128 v[{fa+4*i}:{fa+4*i+3}], v3 offset:{1024*i}")
        L.append(f"""  s_add_u32 s31, s31, {s.stage}
  s_cmp_ge_u32 s31, {s.lds}
  s_cselect_b32 s31, 0, s31""")
        return L
    def body(s, a, par, vm, do_dma, do_read, transposed):
        if do_read:
            a(f"  s_waitcnt vmcnt({vm}) lgkmcnt(0)\n  s_barrier")
        else:
            a("  s_waitcnt lgkmcnt(0)")
        side = []
        if do_read: side += s.read_list(par ^ 1)
        if do_dma: side += s.dma_list()
        fb, fa = s.regs(par)
        mf = []
        for i in range(s.mt):
            for j in range(s.nt):
                acc = 4*(i*s.nt+j)
                X = f"v[{fa+4*i}:{fa+4*i+3}]"; W = f"v[{fb+4*j}:{fb+4*j+3}]"
                if transposed: mf.append(f"  v_mfma_f32_16x16x32_bf16 a[{acc}:{acc+3}], {W}, {X}, a[{acc}:{acc+3}]")
                else: mf.append(f"  v_mfma_f32_16x16x32_bf16 a[{acc}:{acc+3}], {X}, {W}, a[{acc}:{acc+3}]")
        n = len(mf); m = len(side); k = 0
        for i, x in enumerate(mf):
            a(x)
            while k < m and k * n < (i+1) * m:
                a(side[k]); k += 1
        while k < m: a(side[k]); k += 1
    def mainloop(s, a, transposed, tag):
        n = s.name + tag
        per = s.nd; N = s.NSTEP; NS = s.NS
        a(f"  s_waitcnt vmcnt({(NS-1)*per})\n  s_barrier")
        for x in s.read_list(0): a(x)
        steady = N - NS
        kt = 0
        if steady % 2 == 1:
            s.body(a, 0, (NS-2)*per, True, True, transposed); kt = 1
        if steady - kt > 0:
            a(f"  s_mov_b32 s36, 0\n{n}_loop:")
            s.body(a, kt % 2, (NS-2)*per, True, True, transposed)
            s.body(a, (kt+1) % 2, (NS-2)*per, True, True, transposed)
            a(f"  s_add_u32 s36, s36, 2\n  s_cmp_lt_u32 s36, {steady-kt}\n  s_cbranch_scc1 {n}_loop")
        kt = steady
        while kt < N:
            rd = kt+1 < N
            s.body(a, kt % 2, max(0, N-2-kt)*per, False, rd, transposed)
            kt += 1
        a("  s_nop 7\n  s_nop 3")
    def vgprs(s):
        nf = s.nt + s.mt
        v = 8 + 4*nf*2
        return max(64, (v+3)//4*4)

def gen_qkv(a):
    g = Gemm("qkv_kernel", MT=16, NT=8, KT=20, NS=3, WM=2, WN=2, x_off=XN_F, w_off=WQKV_F, nwg=768)
    khead(a, g.name)
    g.prologue(a, """
  s_and_b32 s10, s2, 7
  s_lshr_b32 s11, s2, 3
  s_mov_b32 s12, 0x15555556
  s_mul_hi_u32 s20, s11, s12          ; idx/12
  s_mul_i32 s13, s20, 12
  s_sub_u32 s13, s11, s13
  s_mul_i32 s21, s10, 12
  s_add_u32 s21, s21, s13
  s_mov_b32 s19, 0
""")
    a("""  s_lshr_b32 s37, s21, 5
  s_and_b32 s38, s21, 31
  s_cmp_eq_u32 s37, 2
  s_cbranch_scc1 qkv_v""")
    g.mainloop(a, True, "_t")
    a(f"""  s_lshl_b32 s10, s37, 24             ; type*16MB
  s_add_u32 s10, s10, 0x{Q_F:x}
  s_lshl_b32 s11, s20, 3
  s_lshl_b32 s12, s23, 2
  s_add_u32 s11, s11, s12
  s_lshl_b32 s11, s11, 5
  s_add_u32 s11, s11, s38             ; seg0*32+head
  s_lshl_b32 s11, s11, 13             ; *8192
  s_add_u32 s10, s10, s11
  s_lshl_b32 s12, s24, 12
  s_add_u32 s10, s10, s12
  s_add_u32 s14, s6, s10
  s_addc_u32 s15, s7, 0""")
    for i in range(8):
        for jp in range(2):
            a0 = 4*(i*4+2*jp); a1 = a0+4
            for r in range(4):
                a(f"  v_accvgpr_read_b32 v{8+r}, a{a0+r}\n  v_accvgpr_read_b32 v{12+r}, a{a1+r}")
            a("""  v_cvt_pk_bf16_f32 v16, v8, v9
  v_cvt_pk_bf16_f32 v17, v10, v11
  v_cvt_pk_bf16_f32 v18, v12, v13
  v_cvt_pk_bf16_f32 v19, v14, v15""")
            off = jp*2048 + (i&1)*1024
            a(f"  global_store_dwordx4 v1, v[16:19], s[14:15] offset:{off}")
            a("  s_nop 1")
        if i & 1:
            a("  s_add_u32 s14, s14, 0x40000\n  s_addc_u32 s15, s15, 0")
    a("  s_branch qkv_kernel_done\nqkv_v:")
    g.mainloop(a, False, "_n")
    a(f"""  s_lshl_b32 s11, s20, 3
  s_lshl_b32 s12, s23, 2
  s_add_u32 s11, s11, s12
  s_lshl_b32 s11, s11, 5
  s_add_u32 s11, s11, s38
  s_lshl_b32 s11, s11, 13
  s_add_u32 s10, s11, 0x{V_F:x}
  s_lshl_b32 s12, s24, 12
  s_add_u32 s10, s10, s12
  s_add_u32 s14, s6, s10
  s_addc_u32 s15, s7, 0""")
    for ip in range(4):
        for j in range(4):
            a0 = 4*((2*ip)*4+j); a1 = 4*((2*ip+1)*4+j)
            for r in range(4):
                a(f"  v_accvgpr_read_b32 v{8+r}, a{a0+r}\n  v_accvgpr_read_b32 v{12+r}, a{a1+r}")
            a("""  v_cvt_pk_bf16_f32 v16, v8, v9
  v_cvt_pk_bf16_f32 v17, v10, v11
  v_cvt_pk_bf16_f32 v18, v12, v13
  v_cvt_pk_bf16_f32 v19, v14, v15""")
            a(f"  global_store_dwordx4 v1, v[16:19], s[14:15] offset:{j*1024}")
            a("  s_nop 1")
        a("  s_add_u32 s14, s14, 0x40000\n  s_addc_u32 s15, s15, 0")
    a("qkv_kernel_done:\n  s_endpgm")
    return kd(g.name, g.vgprs()+128, 64, g.vgprs()), g

def main():
    a = A()
    kds = []
    launches = []
    body = A()
    kds.append(gen_prep(body)); launches.append(("prep_kernel", PREP_WGS, 256, 0))
    k, g = gen_qkv(body); kds.append(k); launches.append(("qkv_kernel", g.nwg, 256, g.lds))
    import gen_chain
    import os
    kds.append(gen_chain.gen_chain(body, RS=int(os.environ.get('RS','2')), CS=int(os.environ.get('CS','6')), CS2=int(os.environ.get('CS2','2')), DIAG=bool(int(os.environ.get('DIAG','0'))), EMU=bool(int(os.environ.get('EMU','1'))), LOC=bool(int(os.environ.get('LOC','0'))), RC=int(os.environ.get('RC','22')), FORCE_SLOW=bool(int(os.environ.get('FSLOW','0'))), LD=int(os.environ.get('LD','1')))); launches.append(("chain_kernel", 256, 256, gen_chain.L_END))
    import gen_post
    import gen_awl
    kds.append(gen_awl.gen_awl(body)); launches.append(("awl_kernel", 256, 256, 65536))
    k, g = gen_post.gen_ffn1(body); kds.append(k); launches.append((g.name, g.nwg, 256, g.lds))
    k, g = gen_post.gen_ffn2(body); kds.append(k); launches.append((g.name, g.nwg, 256, g.lds))
    hdr = open('cdna_kernels/'+KNAME+'.s.ref').read().split('; Override launch')[0]
    out = hdr
    for (n, gx, bx, lds) in launches:
        out += f"; @launch kernel={n} grid=({gx},1,1) block=({bx},1,1) lds={lds}\n"
    out += '.amdgcn_target "amdgcn-amd-amdhsa--gfx950"\n.text\n' + body.text()
    out += '.section .rodata,"a"\n'
    for k in kds: out += ".p2align 6\n" + k
    path = sys.argv[1] if len(sys.argv) > 1 else 'cdna_kernels/'+KNAME+'.s'
    open(path, 'w').write(out)
    print("wrote", path, len(out))
if __name__ == '__main__':
    main()
```

```python
from common import *
from gen import A, kd, khead

PART2 = 0xD000000
CNT2 = CNT_OFF + 896
L_OA = 0

def attn_loads(a, R):
    a(f"""
  s_lshl_b32 s9, s40, 5
  s_add_u32 s9, s9, s41
  s_lshl_b32 s10, s9, 13
  s_add_u32 s11, s10, 0x{Q_F:x}
  s_add_u32 s12, s6, s11
  s_addc_u32 s13, s7, 0
  s_add_u32 s11, s10, 0x{K_F:x}
  s_add_u32 s14, s6, s11
  s_addc_u32 s15, s7, 0
  s_add_u32 s11, s10, 0x{V_F:x}
  s_add_u32 s16, s6, s11
  s_addc_u32 s17, s7, 0
  s_lshl_b32 s10, s9, 12
  s_add_u32 s11, s10, 0x{KM_F:x}
  s_add_u32 s18, s6, s11
  s_addc_u32 s19, s7, 0
  s_add_u32 s11, s10, 0x{VM_F:x}
  s_add_u32 s20, s6, s11
  s_addc_u32 s21, s7, 0
""")
    for f in range(8):
        vo = "v1" if f < 4 else "v6"
        a(f"  global_load_dwordx4 {R(16+4*f,4)}, {vo}, s[12:13] offset:{(f%4)*1024}")
        a(f"  global_load_dwordx4 {R(48+4*f,4)}, {vo}, s[14:15] offset:{(f%4)*1024}")
    for w in range(4):
        a(f"  global_load_dwordx4 {R(80+4*w,4)}, v1, s[18:19] offset:{w*1024}")
    for f in range(8):
        vo = "v1" if f < 4 else "v6"
        a(f"  global_load_dwordx4 {R(96+4*f,4)}, {vo}, s[16:17] offset:{(f%4)*1024}")
    for f in range(8):
        a(f"  global_load_dwordx2 {R(128+2*f,2)}, v7, s[20:21] offset:{f*512}")

RV = lambda r, n: f"v[{r}:{r+n-1}]"
RA = lambda r, n: f"a[{r-16}:{r-16+n-1}]"

def attn_pair(a, R, vm1, vm2):
    a(f"  s_waitcnt vmcnt({vm1})")
    tiles = [(0,'M',144),(0,0,148),(1,'M',152),(1,0,156),(1,1,160)]
    for w in range(4):
        for (tt, kt, acc) in tiles:
            Kf = R(80+4*w,4) if kt == 'M' else R(48+4*(w*2+kt),4)
            Qf = R(16+4*(w*2+tt),4)
            c = f"v[{acc}:{acc+3}]" if w > 0 else "0"
            a(f"  v_mfma_f32_16x16x32_bf16 v[{acc}:{acc+3}], {Kf}, {Qf}, {c}")
    a("  s_nop 7")
    for i in range(144, 164, 2):
        a(f"""  v_cvt_pk_bf16_f32 v10, v{i}, v{i+1}
  v_lshlrev_b32 v{i}, 16, v10
  v_and_b32 v{i+1}, s54, v10
  v_mul_f32 v{i}, s52, v{i}
  v_mul_f32 v{i+1}, s52, v{i+1}
  v_cvt_pk_bf16_f32 v10, v{i}, v{i+1}
  v_lshlrev_b32 v{i}, 16, v10
  v_and_b32 v{i+1}, s54, v10""")
    a("  v_cmp_lt_u32 vcc, 31, v3\n  s_nop 1")
    for b in (144, 152):
        for r in range(4): a(f"  v_cndmask_b32 v{b+r}, v{b+r}, v8, vcc")
    for r in range(4):
        a(f"  v_add_u32 v10, {r}, v9\n  v_cmp_gt_u32 vcc, v10, v4\n  s_nop 1")
        a(f"  v_cndmask_b32 v{148+r}, v{148+r}, v8, vcc\n  v_cndmask_b32 v{160+r}, v{160+r}, v8, vcc")
    def softmax(regs, tmp):
        n = len(regs)
        a(f"  v_max3_f32 v{tmp}, v{regs[0]}, v{regs[1]}, v{regs[2]}")
        i = 3
        while i < n:
            if i+1 < n: a(f"  v_max3_f32 v{tmp}, v{tmp}, v{regs[i]}, v{regs[i+1]}"); i += 2
            else: a(f"  v_max_f32 v{tmp}, v{tmp}, v{regs[i]}"); i += 1
        for sw in ("16", "32"):
            a(f"""  s_nop 1
  v_mov_b32 v{tmp+1}, v{tmp}
  s_nop 1
  v_permlane{sw}_swap_b32 v{tmp}, v{tmp+1}
  v_max_f32 v{tmp}, v{tmp}, v{tmp+1}""")
        for r in regs: a(f"  v_sub_f32 v{r}, v{r}, v{tmp}\n  v_mul_f32 v{r}, s53, v{r}")
        for r in regs: a(f"  v_exp_f32 v{r}, v{r}")
        a(f"  s_nop 0\n  v_add_f32 v{tmp}, v{regs[0]}, v{regs[1]}")
        for r in regs[2:]: a(f"  v_add_f32 v{tmp}, v{tmp}, v{r}")
        for sw in ("16", "32"):
            a(f"""  s_nop 1
  v_mov_b32 v{tmp+1}, v{tmp}
  s_nop 1
  v_permlane{sw}_swap_b32 v{tmp}, v{tmp+1}
  v_add_f32 v{tmp}, v{tmp}, v{tmp+1}""")
        a(f"""  v_rcp_f32 v{tmp+1}, v{tmp}
  s_nop 0
  v_fma_f32 v{tmp+2}, -v{tmp}, v{tmp+1}, 1.0
  v_fma_f32 v{tmp+1}, v{tmp+2}, v{tmp+1}, v{tmp+1}""")
        for r in regs: a(f"  v_mul_f32 v{r}, v{r}, v{tmp+1}")
    softmax(list(range(144, 152)), 10)
    softmax(list(range(152, 164)), 10)
    a("""  v_cvt_pk_bf16_f32 v164, v144, v145
  v_cvt_pk_bf16_f32 v165, v146, v147
  v_cvt_pk_bf16_f32 v166, v148, v149
  v_cvt_pk_bf16_f32 v167, v150, v151
  v_mov_b32 v168, 0
  v_mov_b32 v169, 0
  v_cvt_pk_bf16_f32 v170, v152, v153
  v_cvt_pk_bf16_f32 v171, v154, v155
  v_cvt_pk_bf16_f32 v172, v156, v157
  v_cvt_pk_bf16_f32 v173, v158, v159
  v_cvt_pk_bf16_f32 v174, v160, v161
  v_cvt_pk_bf16_f32 v175, v162, v163""")
    a(f"  s_waitcnt vmcnt({vm2})")
    for tt in range(2):
        pm = "v[164:165]" if tt == 0 else "v[170:171]"
        for et in range(8):
            acc = 16+4*(tt*8+et)
            a(f"  v_mfma_f32_16x16x16_bf16 v[{acc}:{acc+3}], {R(128+2*et,2)}, {pm}, 0")
    for tt in range(2):
        px = "v[166:169]" if tt == 0 else "v[172:175]"
        for et in range(8):
            acc = 16+4*(tt*8+et)
            a(f"  v_mfma_f32_16x16x32_bf16 v[{acc}:{acc+3}], {R(96+4*et,4)}, {px}, v[{acc}:{acc+3}]")
    a("  v_add_u32 v11, s42, v1\n  s_nop 6")
    for tt in range(2):
        for wp in range(4):
            b = 16+4*(tt*8+2*wp)
            a(f"""  v_cvt_pk_bf16_f32 v{80+4*wp}, v{b}, v{b+1}
  v_cvt_pk_bf16_f32 v{81+4*wp}, v{b+2}, v{b+3}
  v_cvt_pk_bf16_f32 v{82+4*wp}, v{b+4}, v{b+5}
  v_cvt_pk_bf16_f32 v{83+4*wp}, v{b+6}, v{b+7}
  ds_write_b128 v11, v[{80+4*wp}:{83+4*wp}] offset:{tt*16384 + wp*1024}""")
        a("  s_waitcnt lgkmcnt(0)")

import os
def gen_awl(a, LIMIT=100000):
    name = "awl_kernel"
    DIAG = bool(int(os.environ.get('DIAG','0')))
    def st(k):
        if DIAG: a(f"  s_memrealtime s[{80+2*k}:{81+2*k}]")
    khead(a, name)
    a(f"""
  s_cmp_ge_u32 s2, 256
  s_cbranch_scc1 awl_done
  s_load_dwordx2 s[6:7], s[0:1], 104
  s_load_dwordx2 s[4:5], s[0:1], 0
  v_lshrrev_b32 v2, 6, v0
  v_and_b32 v3, 63, v0
  s_nop 0
  v_readfirstlane_b32 s8, v2          ; wave
  v_lshlrev_b32 v1, 4, v3
  v_lshlrev_b32 v7, 3, v3
  v_and_b32 v4, 15, v3
  v_lshrrev_b32 v5, 4, v3
  v_add_u32 v6, 0x1000, v1
  s_and_b32 s44, s2, 7                ; hg
  s_lshr_b32 s45, s2, 3               ; rb
  s_mov_b32 s52, 0x3db504f3
  s_mov_b32 s53, 0x3fb8aa3b
  s_mov_b32 s54, 0xffff0000
  v_mov_b32 v8, 0xff800000
  v_lshlrev_b32 v9, 2, v5
  s_waitcnt lgkmcnt(0)
  s_mul_i32 s10, s8, {10*OSTR}
  s_lshl_b32 s11, s44, 4
  s_add_u32 s10, s10, s11
  s_lshl_b32 s10, s10, 10
  s_add_u32 s10, s10, 0x{WO_F:x}
  s_add_u32 s60, s6, s10
  s_addc_u32 s61, s7, 0""")
    for j in range(1, 10):
        a(f"  s_add_u32 s{60+2*j}, s{58+2*j}, {OSTR*1024}\n  s_addc_u32 s{61+2*j}, s{59+2*j}, 0")
    st(0)
    a("""  s_lshl_b32 s41, s44, 2
  s_add_u32 s41, s41, s8              ; head
  s_lshl_b32 s40, s45, 1              ; seg
  s_lshl_b32 s42, s8, 12""")
    attn_loads(a, RV)
    a("  s_add_u32 s40, s40, 1")
    attn_loads(a, RA)
    attn_pair(a, RV, 36+16, 36)
    a("  s_add_u32 s42, s42, 32768")
    attn_pair(a, RA, 16, 0)
    st(1)
    a(f"""  s_lshl_b32 s10, s45, 3
  s_add_u32 s10, s10, s44
  s_mul_i32 s10, s10, {64*2560}
  s_mul_i32 s11, s8, 640
  s_add_u32 s10, s10, s11
  s_add_u32 s10, s10, 0x{PART2:x}
  s_add_u32 s12, s6, s10
  s_addc_u32 s13, s7, 0
  v_mul_u32_u24 v176, 2560, v4
  v_lshl_add_u32 v176, v5, 4, v176
  v_add_u32 v177, {16*2560}, v176
  v_add_u32 v178, {32*2560}, v176
  v_add_u32 v179, {48*2560}, v176
  v_add_u32 v180, 0x1000, v1
  v_add_u32 v181, 0x2000, v1
  v_add_u32 v182, 0x3000, v1""")
    PD = 10
    NB = PD + 1
    BB = lambda st, j: f"v[{16+8*(st%NB)+4*j}:{19+8*(st%NB)+4*j}]"
    AA = lambda st, i: f"v[{112+16*(st%3)+4*i}:{115+16*(st%3)+4*i}]"
    steps = [(jg, kt) for jg in range(5) for kt in range(16)]
    vmq = []
    def loadB(n):
        jg, kt = steps[n]
        vo = ["v1", "v180", "v181", "v182"][kt//4]
        for j in range(2):
            a(f"  global_load_dwordx4 {BB(n,j)}, {vo}, s[{60+2*(2*jg+j)}:{61+2*(2*jg+j)}] offset:{(kt%4)*1024}")
            vmq.append(('B', n))
    def readA(n):
        jg, kt = steps[n]
        for i in range(4):
            a(f"  ds_read_b128 {AA(n,i)}, v1 offset:{i*16384 + kt*1024}")
    for n in range(PD): loadB(n)
    a("  s_barrier")
    readA(0); readA(1)
    for n, (jg, kt) in enumerate(steps):
        if n+PD < len(steps): loadB(n+PD)
        if n+2 < len(steps): readA(n+2)
        idx = max(i for i, t in enumerate(vmq) if t == ('B', n))
        vm = len(vmq) - 1 - idx
        lg = 8 if n+2 < len(steps) else (4 if n+1 < len(steps) else 0)
        a(f"  s_waitcnt vmcnt({min(vm,63)}) lgkmcnt({lg})")
        ab = 32*(jg % 2)
        for j in range(2):
            for i in range(4):
                acc = ab + 4*(j*4+i)
                c = f"a[{acc}:{acc+3}]" if kt > 0 else "0"
                a(f"  v_mfma_f32_16x16x32_bf16 a[{acc}:{acc+3}], {BB(n,j)}, {AA(n,i)}, {c}")
        if (kt == 2 and jg > 0) or n == len(steps)-1:
            gs = [jg-1] if kt == 2 else [jg]
            if n == len(steps)-1: a("  s_nop 7\n  s_nop 1")
            for g_ in gs:
                ab2 = 32*(g_ % 2)
                for j in range(2):
                    for i in range(4):
                        acc = ab2 + 4*(j*4+i)
                        a(f"  global_store_dwordx4 v{176+i}, a[{acc}:{acc+3}], s[12:13] offset:{(2*g_+j)*64} sc1")
                        vmq.append(('S', g_))
    st(2)
    a("  s_waitcnt vmcnt(0)")
    st(3)
    a(f"""  s_barrier
  s_lshl_b32 s10, s45, 2
  s_add_u32 s10, s10, 0x{CNT2:x}
  s_add_u32 s14, s6, s10
  s_addc_u32 s15, s7, 0
  v_mov_b32 v12, 0
  s_cmp_lg_u32 s8, 0
  s_cbranch_scc1 awl_wait
  v_mov_b32 v13, 1
  s_mov_b64 s[56:57], exec
  s_mov_b64 exec, 1
  global_atomic_add v12, v13, s[14:15]
  s_mov_b32 s58, 0
awl_poll:
  s_sleep 2
  global_load_dword v14, v12, s[14:15] sc1
  s_waitcnt vmcnt(0)
  v_readfirstlane_b32 s10, v14
  s_add_u32 s58, s58, 1
  s_cmp_gt_u32 s58, {LIMIT}
  s_cbranch_scc1 awl_pdone
  s_cmp_lt_u32 s10, 8
  s_cbranch_scc1 awl_poll
awl_pdone:
  s_mov_b64 exec, s[56:57]
awl_wait:
  s_barrier
""")
    st(4)
    a(f"""
  v_lshrrev_b32 v10, 5, v0
  v_and_b32 v11, 31, v0
  s_lshl_b32 s10, s44, 3
  v_add_u32 v10, s10, v10
  v_mul_u32_u24 v12, 2560, v10
  v_lshl_add_u32 v12, v11, 4, v12
  s_mul_i32 s10, s45, {8*64*2560}
  s_add_u32 s10, s10, 0x{PART2:x}
  s_add_u32 s12, s6, s10
  s_addc_u32 s13, s7, 0
  s_lshl_b32 s10, s45, 6
  v_add_u32 v13, s10, v10
  v_mul_u32_u24 v14, 0x500, v13
  v_lshl_add_u32 v14, v11, 3, v14""")
    for k in range(5):
        a(f"  global_load_dwordx2 v[{180+2*k}:{181+2*k}], v14, s[4:5] offset:{k*256}")
    for p in range(8):
        for k in range(5):
            r = 16+20*p+4*k
            a(f"  global_load_dwordx4 v[{r}:{r+3}], v12, s[12:13] offset:{k*512} sc1")
        a(f"  s_add_u32 s12, s12, {64*2560}\n  s_addc_u32 s13, s13, 0")
    for p in range(1, 8):
        a(f"  s_waitcnt vmcnt({5*(7-p)})")
        for i in range(0, 20, 2):
            a(f"  v_pk_add_f32 v[{16+i}:{17+i}], v[{16+i}:{17+i}], v[{16+20*p+i}:{17+20*p+i}]")
    a(f"  s_add_u32 s16, s6, 0x{H_RM:x}\n  s_addc_u32 s17, s7, 0")
    for k in range(5):
        b = 16+4*k
        a(f"""  v_cvt_pk_bf16_f32 v40, v{b}, v{b+1}
  v_cvt_pk_bf16_f32 v41, v{b+2}, v{b+3}
  v_lshlrev_b32 v{b}, 16, v40
  v_and_b32 v{b+1}, s54, v40
  v_lshlrev_b32 v{b+2}, 16, v41
  v_and_b32 v{b+3}, s54, v41
  v_lshlrev_b32 v42, 16, v{180+2*k}
  v_and_b32 v43, s54, v{180+2*k}
  v_lshlrev_b32 v44, 16, v{181+2*k}
  v_and_b32 v45, s54, v{181+2*k}
  v_add_f32 v{b}, v{b}, v42
  v_add_f32 v{b+1}, v{b+1}, v43
  v_add_f32 v{b+2}, v{b+2}, v44
  v_add_f32 v{b+3}, v{b+3}, v45
  v_cvt_pk_bf16_f32 v{50+2*k}, v{b}, v{b+1}
  v_cvt_pk_bf16_f32 v{51+2*k}, v{b+2}, v{b+3}
  v_lshlrev_b32 v{b}, 16, v{50+2*k}
  v_and_b32 v{b+1}, s54, v{50+2*k}
  v_lshlrev_b32 v{b+2}, 16, v{51+2*k}
  v_and_b32 v{b+3}, s54, v{51+2*k}
  global_store_dwordx2 v14, v[{50+2*k}:{51+2*k}], s[16:17] offset:{k*256}""")
    def red32(r, t):
        a(f"""  s_nop 1
  v_add_f32_dpp v{r}, v{r}, v{r} quad_perm:[1,0,3,2] row_mask:0xf bank_mask:0xf
  s_nop 1
  v_add_f32_dpp v{r}, v{r}, v{r} quad_perm:[2,3,0,1] row_mask:0xf bank_mask:0xf
  s_nop 1
  v_add_f32_dpp v{r}, v{r}, v{r} row_ror:4 row_mask:0xf bank_mask:0xf
  s_nop 1
  v_add_f32_dpp v{r}, v{r}, v{r} row_ror:8 row_mask:0xf bank_mask:0xf
  s_nop 1
  v_mov_b32 v{t}, v{r}
  s_nop 1
  v_permlane16_swap_b32 v{r}, v{t}
  v_add_f32 v{r}, v{r}, v{t}""")
    a("  v_add_f32 v60, v16, v17")
    for i in range(18, 36): a(f"  v_add_f32 v60, v60, v{i}")
    red32(60, 61)
    a("  v_mul_f32 v60, 0x3acccccd, v60\n  v_mov_b32 v62, 0")
    for i in range(16, 36): a(f"  v_sub_f32 v63, v{i}, v60\n  v_fmac_f32 v62, v63, v63")
    red32(62, 61)
    a(f"""  v_mul_f32 v62, 0x3acccccd, v62
  v_cvt_pk_bf16_f32 v64, v60, v62
  v_lshlrev_b32 v60, 16, v64
  v_and_b32 v62, s54, v64
  v_add_f32 v62, 0x3727c5ac, v62
  v_cvt_pk_bf16_f32 v64, v62, v62
  v_lshlrev_b32 v62, 16, v64
  v_sqrt_f32 v62, v62
  s_nop 0
  v_cvt_pk_bf16_f32 v64, v62, v62
  v_lshlrev_b32 v62, 16, v64
  v_rcp_f32 v63, v62
  s_nop 0
  v_fma_f32 v64, -v62, v63, 1.0
  v_fma_f32 v63, v64, v63, v63
  v_lshrrev_b32 v65, 4, v13
  v_mul_u32_u24 v65, 20480, v65
  v_and_b32 v66, 15, v13
  v_lshl_add_u32 v65, v66, 4, v65
  v_lshrrev_b32 v66, 3, v11
  v_lshl_add_u32 v65, v66, 10, v65
  v_bfe_u32 v66, v11, 1, 2
  v_lshl_add_u32 v65, v66, 8, v65
  v_and_b32 v66, 1, v11
  v_lshl_add_u32 v65, v66, 3, v65
  s_add_u32 s18, s6, 0x{HN_F:x}
  s_addc_u32 s19, s7, 0""")
    for k in range(5):
        b = 16+4*k
        a(f"""  v_sub_f32 v{b}, v{b}, v60
  v_sub_f32 v{b+1}, v{b+1}, v60
  v_sub_f32 v{b+2}, v{b+2}, v60
  v_sub_f32 v{b+3}, v{b+3}, v60
  v_cvt_pk_bf16_f32 v40, v{b}, v{b+1}
  v_cvt_pk_bf16_f32 v41, v{b+2}, v{b+3}
  v_lshlrev_b32 v{b}, 16, v40
  v_and_b32 v{b+1}, s54, v40
  v_lshlrev_b32 v{b+2}, 16, v41
  v_and_b32 v{b+3}, s54, v41
  v_mul_f32 v{b}, v{b}, v63
  v_mul_f32 v{b+1}, v{b+1}, v63
  v_mul_f32 v{b+2}, v{b+2}, v63
  v_mul_f32 v{b+3}, v{b+3}, v63
  v_cvt_pk_bf16_f32 v{70+2*k}, v{b}, v{b+1}
  v_cvt_pk_bf16_f32 v{71+2*k}, v{b+2}, v{b+3}
  global_store_dwordx2 v65, v[{70+2*k}:{71+2*k}], s[18:19]
  v_add_u32 v65, 0x1000, v65""")
    if DIAG:
        a(f"""  s_waitcnt vmcnt(0)
  s_memrealtime s[90:91]
  s_lshl_b32 s10, s2, 6
  s_add_u32 s10, s10, 0x9800000
  s_add_u32 s12, s6, s10
  s_addc_u32 s13, s7, 0
  s_waitcnt lgkmcnt(0)
  v_mov_b32 v12, 0
  s_mov_b64 exec, 1""")
        for k in range(6):
            a(f"  v_mov_b32 v13, s{80+2*k}\n  global_store_dword v12, v13, s[12:13] offset:{4*k}\n  s_nop 1")
    a("awl_done:\n  s_endpgm")
    return kd(name, 192+160, 96, 192)
```

```python
from common import *
from gen import A, kd, khead

L_WV   = 0
L_WO   = 81920
L_MEM  = 102400
L_SC   = 122880
L_O    = 135168
L_KV   = 139264
L_END  = 155648

class LK:
    def __init__(s, a): s.a = a; s.n = 0; s.done = 0
    def op(s, txt): s.a("  " + txt); s.n += 1; return s.n
    def wait(s, idn):
        if idn <= s.done: return
        c = s.n - idn
        s.a(f"  s_waitcnt lgkmcnt({min(c,15)})")
        s.done = idn if c <= 15 else s.n - 15
    def waitall(s):
        s.a("  s_waitcnt lgkmcnt(0)"); s.done = s.n

def wreg(n):
    return f"a[{4*n}:{4*n+3}]" if n < 64 else f"v[{112+4*(n-64)}:{112+4*(n-64)+3}]"

DBG_OFF = 0x9000000
def gen_chain(a, RS=10, CS=40, CS2=2, LIMIT=30000, DIAG=False, EMU=True, LOC=False, RC=15, FORCE_SLOW=False, LD=10):
    PSC = '' if LOC else ' sc1'
    name = "chain_kernel"
    def cyc(k):
        if DIAG: a(f"  s_memtime s[{72+2*k}:{73+2*k}]")
    def cycdump():
        if not DIAG: return
        a(f"""  s_lshl_b32 s64, s49, 8
  s_add_u32 s64, s64, s2
  s_lshl_b32 s64, s64, 2
  s_add_u32 s64, s64, s8
  s_lshl_b32 s64, s64, 6
  s_add_u32 s64, s64, 0x{DBG_OFF + 0x1000000:x}
  s_add_u32 s66, s6, s64
  s_addc_u32 s67, s7, 0
  s_waitcnt lgkmcnt(0)
  v_mov_b32 v97, 0
  s_mov_b64 s[68:69], exec
  s_mov_b64 exec, 1""")
        for k in range(10):
            a(f"  v_mov_b32 v110, s{72+2*k}\n  global_store_dword v97, v110, s[66:67] offset:{4*k}\n  s_nop 1")
        a("  s_mov_b64 exec, s[68:69]")
    def stamp(k, extra=None):
        if not DIAG: return
        a(f"""  s_memrealtime s[62:63]
  s_lshl_b32 s64, s49, 8
  s_add_u32 s64, s64, s2
  s_lshl_b32 s64, s64, 2
  s_add_u32 s64, s64, s8
  s_lshl_b32 s64, s64, 6
  s_add_u32 s64, s64, 0x{DBG_OFF + 0:x}
  s_add_u32 s66, s6, s64
  s_addc_u32 s67, s7, 0
  s_waitcnt lgkmcnt(0)
  v_mov_b32 v110, s62
  v_mov_b32 v111, {'s60' if extra else 's63'}
  v_mov_b32 v97, 0
  s_mov_b64 s[68:69], exec
  s_mov_b64 exec, 1
  global_store_dwordx2 v97, v[110:111], s[66:67] offset:{8*k}
  s_mov_b64 exec, s[68:69]""")
    khead(a, name)
    a(f"""
  s_cmp_ge_u32 s2, 256
  s_cbranch_scc1 chain_done
  s_load_dwordx2 s[4:5], s[0:1], 8       ; mem0
  s_load_dwordx2 s[6:7], s[0:1], 104     ; ws
  v_lshrrev_b32 v2, 6, v0
  v_and_b32 v3, 63, v0                   ; lane
  s_nop 0
  v_readfirstlane_b32 s8, v2             ; wave
  v_lshlrev_b32 v1, 4, v3                ; lane*16
  v_and_b32 v4, 15, v3                   ; m
  v_lshrrev_b32 v5, 4, v3                ; g
  s_load_dwordx2 s[70:71], s[0:1], 96
  s_getreg_b32 s61, hwreg(HW_REG_XCC_ID)
  s_and_b32 s61, s61, 15
  s_waitcnt lgkmcnt(0)
  s_cmp_lg_u32 s8, 0
  s_cbranch_scc1 chain_tk_wait
  s_min_u32 s11, s61, 8
  s_lshl_b32 s11, s11, 2
  v_mov_b32 v16, s11
  v_mov_b32 v17, 1
  v_mov_b32 v19, 64
  s_mov_b64 s[56:57], exec
  s_mov_b64 exec, 1
  global_atomic_add v18, v16, v17, s[70:71] sc0
  s_waitcnt vmcnt(0)
  global_atomic_add v19, v17, s[70:71]
  v_mov_b32 v16, {L_O}
  ds_write_b32 v16, v18
  s_waitcnt vmcnt(0) lgkmcnt(0)
  s_mov_b64 exec, s[56:57]
chain_tk_wait:
  s_barrier
  v_mov_b32 v16, {L_O}
  ds_read_b32 v18, v16
  s_waitcnt lgkmcnt(0)
  s_nop 0
  v_readfirstlane_b32 s9, v18            ; h = ticket
  s_mov_b32 s10, s61                     ; j = xcc
  s_mov_b32 s65, 0
  s_mov_b32 s51, 1
  s_cmp_lt_u32 s9, 32
  s_cselect_b32 s11, 1, 0
  s_cmp_lt_u32 s10, 8
  s_cselect_b32 s11, s11, 0
  s_cmp_eq_u32 s11, 1
  s_cbranch_scc1 chain_setup
chain_slow:
  s_lshr_b32 s9, s2, 3                   ; h
  s_and_b32 s10, s2, 7                   ; j
  s_mov_b32 s51, 0
chain_setup:
  s_lshl_b32 s11, s9, 3
  s_lshl_b32 s12, s8, 1
  s_add_u32 s11, s11, s12
  s_mul_i32 s11, s11, 20480
  s_add_u32 s11, s11, 0x{WQKV_F:x}
  s_add_u32 s14, s6, s11
  s_addc_u32 s15, s7, 0                  ; q t0
  s_add_u32 s16, s14, 20480
  s_addc_u32 s17, s15, 0                 ; q t1
  s_add_u32 s18, s14, {256*20480}
  s_addc_u32 s19, s15, 0                 ; k t0
  s_add_u32 s20, s18, 20480
  s_addc_u32 s21, s19, 0
  s_add_u32 s22, s18, {256*20480}
  s_addc_u32 s23, s19, 0                 ; v t0
  s_add_u32 s24, s22, 20480
  s_addc_u32 s25, s23, 0
  v_mov_b32 v6, v1
""")
    for kt in range(20):
        for q in range(4):
            a(f"  global_load_dwordx4 {wreg(kt*4+q)}, v6, s[{14+2*q}:{15+2*q}]")
        if kt < 10:
            for t in range(2):
                a(f"  global_load_dwordx4 {wreg(80+kt*2+t)}, v6, s[{22+2*t}:{23+2*t}]")
        else:
            for t in range(2):
                a(f"""  s_mul_i32 s26, s8, 20480
  s_add_u32 m0, s26, {L_WV + ((kt-10)*2+t)*1024}
  s_nop 0
  global_load_lds_dwordx4 v6, s[{22+2*t}:{23+2*t}]""")
        a("  v_add_u32 v6, 0x400, v6")
    a(f"""
  s_mul_i32 s11, s10, {5*OSTR}
  s_lshl_b32 s12, s9, 2
  s_add_u32 s11, s11, s12
  s_add_u32 s11, s11, s8
  s_lshl_b32 s11, s11, 10
  s_add_u32 s11, s11, 0x{WO_F:x}
  s_add_u32 s26, s6, s11
  s_addc_u32 s27, s7, 0
  s_lshl_b32 s12, s8, 10""")
    for c in range(5):
        a(f"""  s_add_u32 m0, s12, {L_WO + c*4096}
  s_nop 0
  global_load_lds_dwordx4 v1, s[26:27]
  s_add_u32 s26, s26, {OSTR*1024}
  s_addc_u32 s27, s27, 0""")
    a(f"""
  v_mov_b32 v16, 0
  v_mov_b32 v17, 0
  v_mov_b32 v18, 0
  v_mov_b32 v19, 0
  v_lshlrev_b32 v7, 4, v0
  v_add_u32 v7, {L_MEM}, v7""")
    for i in range(5):
        a(f"  ds_write_b128 v7, v[16:19] offset:{i*4096}")
    a(f"""
  s_mul_i32 s11, s8, 160
  v_add_u32 v8, s11, v3                  ; c0
  v_lshlrev_b32 v9, 4, v8
  v_lshrrev_b32 v10, 5, v8
  v_lshlrev_b32 v10, 10, v10
  v_bfe_u32 v11, v8, 3, 2
  v_lshl_add_u32 v10, v11, 8, v10
  v_and_b32 v11, 7, v8
  v_lshl_add_u32 v10, v11, 4, v10
  v_add_u32 v10, {L_MEM}, v10
  v_and_b32 v11, 7, v8
  v_mul_u32_u24 v11, 0x500, v11
  v_lshrrev_b32 v12, 5, v8
  v_lshl_add_u32 v11, v12, 6, v11
  v_bfe_u32 v12, v8, 3, 2
  v_lshl_add_u32 v11, v12, 4, v11
  v_lshrrev_b32 v12, 1, v5
  v_lshlrev_b32 v12, 13, v12
  v_lshrrev_b32 v13, 2, v4
  v_lshl_add_u32 v12, v13, 12, v12
  v_and_b32 v13, 3, v4
  v_lshl_add_u32 v12, v13, 5, v12
  v_and_b32 v13, 1, v5
  v_lshl_add_u32 v12, v13, 4, v12
  v_lshlrev_b32 v13, 3, v3               ; lane*8
  s_mul_i32 s11, s10, 81920
  s_lshl_b32 s12, s9, 7
  s_add_u32 s11, s11, s12
  s_lshl_b32 s12, s8, 14
  s_add_u32 s11, s11, s12
  s_add_u32 s11, s11, 0x{P_OFF:x}
  s_add_u32 s28, s6, s11
  s_addc_u32 s29, s7, 0
  s_mul_i32 s11, s10, 20
  s_add_u32 s11, s11, s9                 ; r = 20*j + h (h<20)
  s_lshl_b32 s12, s11, 12
  s_add_u32 s12, s12, 0x{P_OFF:x}
  s_add_u32 s30, s6, s12
  s_addc_u32 s31, s7, 0
  s_lshl_b32 s12, s11, 6
  s_add_u32 s12, s12, 0x{MB_OFF + 10240:x}
  s_add_u32 s32, s6, s12
  s_addc_u32 s33, s7, 0
  s_mul_i32 s12, s10, {MB_STRIDE}
  s_add_u32 s12, s12, 0x{MB_OFF + 10240:x}
  s_add_u32 s34, s6, s12
  s_addc_u32 s35, s7, 0
  v_lshrrev_b32 v2, 3, v3
  v_mul_u32_u24 v2, {MB_STRIDE}, v2
  v_and_b32 v7, 7, v3
  v_lshl_add_u32 v2, v7, 3, v2
  s_lshl_b32 s12, s10, 7
  s_add_u32 s12, s12, 0x{LF_OFF:x}
  s_add_u32 s92, s6, s12
  s_addc_u32 s93, s7, 0
  s_lshl_b32 s94, s9, 2
  s_cmp_lt_u32 s9, 20
  s_cselect_b32 s36, 1, 0
  s_cmp_eq_u32 s8, 3
  s_cselect_b32 s36, s36, 0
  s_lshl_b32 s11, s9, 13
  s_lshl_b32 s12, s8, 11
  s_add_u32 s11, s11, s12
  s_add_u32 s12, s11, 0x{K_F:x}
  s_add_u32 s38, s6, s12
  s_addc_u32 s39, s7, 0
  s_add_u32 s12, s11, 0x{V_F:x}
  s_add_u32 s40, s6, s12
  s_addc_u32 s41, s7, 0
  s_lshl_b32 s11, s9, 12
  s_lshl_b32 s12, s8, 10
  s_add_u32 s11, s11, s12
  s_add_u32 s12, s11, 0x{KM_F:x}
  s_add_u32 s42, s6, s12
  s_addc_u32 s43, s7, 0
  s_add_u32 s12, s11, 0x{VM_F:x}
  s_add_u32 s44, s6, s12
  s_addc_u32 s45, s7, 0
  v_lshrrev_b32 v7, 3, v4
  v_mul_u32_u24 v7, 6144, v7
  v_and_b32 v14, 7, v4
  v_lshl_add_u32 v7, v14, 4, v7
  v_lshl_add_u32 v7, v5, 8, v7
  v_add_u32 v7, {L_SC}, v7
  v_add_u32 v14, {L_MEM}, v1
  s_mul_i32 s11, s8, 20480
  v_add_u32 v15, s11, v1
  s_mul_i32 s46, s8, 3072
  s_add_u32 s46, s46, {L_SC}
  s_lshl_b32 s47, s8, 10
  s_add_u32 s47, s47, {L_O}
  s_lshl_b32 s48, s8, 12
  s_add_u32 s48, s48, {L_WO}
  s_mov_b32 s49, 0                       ; step
  s_mov_b32 s50, 0
  s_mov_b32 s52, 0x3db504f3              ; scale
  s_mov_b32 s53, {0x3fb8aa3b if EMU else 0x3e0293ee}
  s_mov_b32 s54, 0xffff0000
  s_lshl_b32 s95, s8, 12
  s_add_u32 s95, s95, {L_KV}
  v_add_u32 v6, s95, v1
  s_mov_b32 m0, s95
  s_nop 0
  global_load_lds_dwordx4 v1, s[38:39]
  global_load_lds_dwordx4 v1, s[38:39] offset:1024
  s_add_u32 m0, s95, 2048
  s_nop 0
  global_load_lds_dwordx4 v1, s[40:41]
  global_load_lds_dwordx4 v1, s[40:41] offset:1024
  v_mov_b32 v24, 0
  v_mov_b32 v25, 0
  v_mov_b32 v26, 0
  v_mov_b32 v27, 0
  global_load_dwordx4 v[16:19], v11, s[4:5]
  global_load_dwordx4 v[20:23], v11, s[4:5] offset:128
  v_cmp_gt_u32 vcc, 32, v3
  s_and_saveexec_b64 s[56:57], vcc
  global_load_dwordx4 v[24:27], v11, s[4:5] offset:256
  s_mov_b64 exec, s[56:57]
  s_waitcnt vmcnt(0) lgkmcnt(0)
  s_cmp_eq_u32 s65, 1
  s_cbranch_scc1 chain_verified
  s_mov_b32 s60, 0
  v_lshlrev_b32 v28, 2, v3
  s_cmp_lg_u32 s8, 0
  s_cbranch_scc1 chain_vwait
chain_vpoll:
  s_sleep 4
  v_mov_b32 v29, 32
  v_cmp_gt_u32 vcc, 17, v3
  s_and_saveexec_b64 s[56:57], vcc
  global_load_dword v29, v28, s[70:71] sc1
  s_mov_b64 exec, s[56:57]
  s_waitcnt vmcnt(0)
  v_readlane_b32 s11, v29, 16
  s_add_u32 s60, s60, 1
  s_cmp_gt_u32 s60, {LIMIT}
  s_cbranch_scc1 chain_vdone
  s_cmp_lt_u32 s11, 256
  s_cbranch_scc1 chain_vpoll
chain_vdone:
  v_mov_b32 v29, {33 if FORCE_SLOW else 32}
  v_cmp_gt_u32 vcc, 8, v3
  s_and_saveexec_b64 s[56:57], vcc
  global_load_dword v29, v28, s[70:71] sc1
  s_mov_b64 exec, s[56:57]
  s_waitcnt vmcnt(0)
  v_cmp_ne_u32 vcc, 32, v29
  s_mov_b32 s11, 0
  s_cbranch_vccz chain_vok
  s_mov_b32 s11, 1
chain_vok:
  v_mov_b32 v29, s11
  v_mov_b32 v30, {L_O + 64}
  ds_write_b32 v30, v29
  s_waitcnt lgkmcnt(0)
chain_vwait:
  s_barrier
  v_mov_b32 v30, {L_O + 64}
  ds_read_b32 v29, v30
  s_waitcnt lgkmcnt(0)
  s_nop 0
  v_readfirstlane_b32 s11, v29
  s_mov_b32 s65, 1
  s_nop 2
  s_cmp_eq_u32 s11, 0
  s_cbranch_scc1 chain_verified
  s_barrier
  s_branch chain_slow
chain_verified:
  s_barrier
chain_step:
""")
    stamp(0)
    a("""
  ds_read_b128 v[72:75], v6
  ds_read_b128 v[76:79], v6 offset:1024
  ds_read_b128 v[80:83], v6 offset:2048
  ds_read_b128 v[84:87], v6 offset:3072
  ds_write_b128 v10, v[16:19]
  ds_write_b128 v10, v[20:23] offset:2048
  v_cmp_gt_u32 vcc, 32, v3
  s_and_saveexec_b64 s[56:57], vcc
  ds_write_b128 v10, v[24:27] offset:4096
  s_mov_b64 exec, s[56:57]
  s_add_u32 s38, s38, 0x40000
  s_addc_u32 s39, s39, 0
  s_add_u32 s40, s40, 0x40000
  s_addc_u32 s41, s41, 0
  s_waitcnt lgkmcnt(0)
  s_barrier
  s_cmp_eq_u32 s49, 63
  s_cbranch_scc1 chain_nokv
  s_mov_b32 m0, s95
  s_nop 0
  global_load_lds_dwordx4 v1, s[38:39]
  global_load_lds_dwordx4 v1, s[38:39] offset:1024
  s_add_u32 m0, s95, 2048
  s_nop 0
  global_load_lds_dwordx4 v1, s[40:41]
  global_load_lds_dwordx4 v1, s[40:41] offset:1024
chain_nokv:
""")
    cyc(0)
    lk = LK(a)
    MB = lambda b: f"v[{16+4*b}:{19+4*b}]"
    QA = ["v[48:51]", "v[52:55]", "v[56:59]", "v[60:63]"]
    VA = ["v[64:67]", "v[68:71]"]
    WB = lambda b, t: f"v[{32+8*b+4*t}:{35+8*b+4*t}]"
    ids = {}; wid = {}
    for kt in range(3): ids[kt] = lk.op(f"ds_read_b128 {MB(kt%4)}, v14 offset:{kt*1024}")
    for kt in range(20):
        if kt+3 < 20: ids[kt+3] = lk.op(f"ds_read_b128 {MB((kt+3)%4)}, v14 offset:{(kt+3)*1024}")
        if kt in (8, 9):
            for t in range(2): wid[(kt+2,t)] = lk.op(f"ds_read_b128 {WB((kt+2)%2,t)}, v15 offset:{((kt+2-10)*2+t)*1024}")
        lk.wait(ids[kt])
        for q in range(4):
            c = QA[q] if kt > 0 else "0"
            a(f"  v_mfma_f32_16x16x32_bf16 {QA[q]}, {wreg(kt*4+q)}, {MB(kt%4)}, {c}")
        if kt >= 10:
            lk.wait(wid[(kt,1)])
            for t in range(2):
                c = VA[t] if kt > 10 else "0"
                a(f"  v_mfma_f32_16x16x32_bf16 {VA[t]}, {MB(kt%4)}, {WB(kt%2,t)}, {c}")
            if kt+2 < 20:
                for t in range(2): wid[(kt+2,t)] = lk.op(f"ds_read_b128 {WB((kt+2)%2,t)}, v15 offset:{((kt+2-10)*2+t)*1024}")
        if kt >= 17:
            pass
    cyc(1)
    ids2 = {}
    MB2 = lambda kt: f"v[{32+4*(kt%4)}:{35+4*(kt%4)}]"
    def issue2(kt):
        if kt >= 10: return
        ids2[kt] = lk.op(f"ds_read_b128 {MB2(kt)}, v14 offset:{kt*1024}")
    state = {'k': 0}
    def fill(n=1):
        for _ in range(n):
            k = state['k']
            if k >= 20: return
            kt, t = k//2, k%2
            lk.wait(ids2[kt])
            a(f"  v_mfma_f32_16x16x32_bf16 {VA[t]}, {MB2(kt)}, {wreg(80+kt*2+t)}, {VA[t]}")
            if t == 1: issue2(kt+3)
            state['k'] += 1
    def crit(txt, every=4):
        n = 0
        for ln in txt.strip('\n').split('\n'):
            a(ln); n += 1
            if n % every == 0: fill(1)
    issue2(0); issue2(1); issue2(2)
    a("  s_nop 4")
    a("""  v_cvt_pk_bf16_f32 v88, v48, v49
  v_cvt_pk_bf16_f32 v89, v50, v51
  v_cvt_pk_bf16_f32 v90, v52, v53
  v_cvt_pk_bf16_f32 v91, v54, v55
  v_cvt_pk_bf16_f32 v92, v56, v57
  v_cvt_pk_bf16_f32 v93, v58, v59
  v_cvt_pk_bf16_f32 v94, v60, v61
  v_cvt_pk_bf16_f32 v95, v62, v63
  s_cmp_eq_u32 s49, 63
  s_cbranch_scc1 chain_last
  v_mfma_f32_16x16x32_bf16 v[48:51], v[92:95], v[88:91], 0
  v_mfma_f32_16x16x32_bf16 v[52:55], v[72:75], v[88:91], 0
  v_mfma_f32_16x16x32_bf16 v[56:59], v[76:79], v[88:91], 0""")
    fill(2)
    a(f"""  v_add_u32 v96, s46, v1
  v_add_u32 v97, {L_SC}, v1
  v_mov_b32 v98, s52
  v_mov_b32 v99, s52
  s_nop 1""")
    lk.op("ds_write_b128 v96, v[48:51]")
    lk.op("ds_write_b128 v96, v[52:55] offset:1024")
    lk.op("ds_write_b128 v96, v[56:59] offset:2048")
    fill(2)
    cyc(2)
    lk.waitall()
    a("  s_barrier")
    cyc(3)
    r0 = [lk.op(f"ds_read_b128 v[{48+4*t}:{51+4*t}], v7 offset:{t*1024}") for t in range(3)]
    r1 = [lk.op(f"ds_read_b128 v[{100+4*t}:{103+4*t}], v7 offset:{3072+t*1024}") for t in range(3)]
    fill(3)
    lk.wait(r1[2])
    crit("\n".join(f"  v_pk_add_f32 v[{48+i}:{49+i}], v[{48+i}:{49+i}], v[{100+i}:{101+i}]" for i in range(0, 12, 2)), 3)
    crit("\n".join(f"  v_add_f32_dpp v{48+i}, v{48+i}, v{48+i} row_ror:8 row_mask:0xf bank_mask:0xf" for i in range(12)), 4)
    cyc(4)
    t = ""
    if EMU:
        for i in range(0, 12, 2): t += f"  v_cvt_pk_bf16_f32 v{100+i//2}, v{48+i}, v{49+i}\n"
        for i in range(0, 12, 2): t += f"  v_lshlrev_b32 v{48+i}, 16, v{100+i//2}\n  v_and_b32 v{49+i}, s54, v{100+i//2}\n"
        for i in range(0, 12, 2): t += f"  v_pk_mul_f32 v[{48+i}:{49+i}], v[{48+i}:{49+i}], v[98:99]\n"
        for i in range(0, 12, 2): t += f"  v_cvt_pk_bf16_f32 v{100+i//2}, v{48+i}, v{49+i}\n"
        for i in range(0, 12, 2): t += f"  v_lshlrev_b32 v{48+i}, 16, v{100+i//2}\n  v_and_b32 v{49+i}, s54, v{100+i//2}\n"
    t += """  v_mov_b32 v101, 0xff800000
  v_cmp_lt_u32 vcc, 31, v3
  v_max3_f32 v100, v52, v53, v54
  v_max3_f32 v102, v55, v56, v57
  v_cndmask_b32 v48, v48, v101, vcc
  v_cndmask_b32 v49, v49, v101, vcc
  v_cndmask_b32 v50, v50, v101, vcc
  v_cndmask_b32 v51, v51, v101, vcc
  v_max3_f32 v100, v100, v58, v59
  v_max3_f32 v102, v102, v48, v49
  v_max3_f32 v100, v100, v50, v51
  v_max_f32 v100, v100, v102
  s_nop 0
  v_mov_b32 v101, v100
  s_nop 1
  v_permlane16_swap_b32 v100, v101
  v_max_f32 v100, v100, v101
  s_nop 0
  v_mov_b32 v101, v100
  s_nop 1
  v_permlane32_swap_b32 v100, v101
  v_max_f32 v100, v100, v101
  v_mul_f32 v100, s53, v100
  v_mov_b32 v102, s53
"""
    for i in range(12): t += f"  v_fma_f32 v{48+i}, v{48+i}, v102, -v100\n"
    for i in range(12): t += f"  v_exp_f32 v{48+i}, v{48+i}\n"
    t += """  v_pk_add_f32 v[100:101], v[48:49], v[50:51]
  v_pk_add_f32 v[102:103], v[52:53], v[54:55]
  v_pk_add_f32 v[104:105], v[56:57], v[58:59]
  v_pk_add_f32 v[100:101], v[100:101], v[102:103]
  v_pk_add_f32 v[100:101], v[100:101], v[104:105]
  v_add_f32 v100, v100, v101
  s_nop 0
  v_mov_b32 v101, v100
  s_nop 1
  v_permlane16_swap_b32 v100, v101
  v_add_f32 v100, v100, v101
  s_nop 0
  v_mov_b32 v101, v100
  s_nop 1
  v_permlane32_swap_b32 v100, v101
  v_add_f32 v100, v100, v101
  v_rcp_f32 v102, v100
  s_nop 0
  v_fma_f32 v103, -v100, v102, 1.0
  v_fma_f32 v102, v103, v102, v102
  v_mov_b32 v103, v102
"""
    crit(t, 4)
    cyc(5)
    fill(40)
    cyc(6)
    t = ""
    for i in range(0, 12, 2): t += f"  v_pk_mul_f32 v[{48+i}:{49+i}], v[{48+i}:{49+i}], v[102:103]\n"
    a(t)
    a("""  v_cvt_pk_bf16_f32 v100, v48, v49
  v_cvt_pk_bf16_f32 v101, v50, v51
  v_cvt_pk_bf16_f32 v104, v52, v53
  v_cvt_pk_bf16_f32 v105, v54, v55
  v_cvt_pk_bf16_f32 v106, v56, v57
  v_cvt_pk_bf16_f32 v107, v58, v59
  v_add_u32 v108, s47, v1
  v_add_u32 v109, s48, v1
  ds_read_b128 v[16:19], v109
  ds_read_b128 v[20:23], v109 offset:1024
  v_mfma_f32_16x16x32_bf16 v[48:51], v[80:83], v[104:107], 0
  v_mfma_f32_16x16x32_bf16 v[52:55], v[84:87], v[104:107], 0
  ds_read_b128 v[24:27], v109 offset:2048
  ds_read_b128 v[28:31], v109 offset:3072
  v_cvt_pk_bf16_f32 v96, v64, v65
  v_cvt_pk_bf16_f32 v97, v66, v67
  v_cvt_pk_bf16_f32 v98, v68, v69
  v_cvt_pk_bf16_f32 v99, v70, v71
  s_nop 3
  v_mfma_f32_16x16x16_bf16 v[48:51], v[96:97], v[100:101], v[48:51]
  v_mfma_f32_16x16x16_bf16 v[52:55], v[98:99], v[100:101], v[52:55]
  s_nop 7
  v_cvt_pk_bf16_f32 v56, v48, v49
  v_cvt_pk_bf16_f32 v57, v50, v51
  v_cvt_pk_bf16_f32 v58, v52, v53
  v_cvt_pk_bf16_f32 v59, v54, v55
  ds_write_b128 v108, v[56:59]
""")
    cyc(7)
    a("""  s_waitcnt lgkmcnt(0)
  s_barrier
""")
    cyc(8)
    a(f"""  v_add_u32 v108, {L_O}, v1
  ds_read_b128 v[32:35], v108
  ds_read_b128 v[36:39], v108 offset:1024
  ds_read_b128 v[40:43], v108 offset:2048
  ds_read_b128 v[44:47], v108 offset:3072
  s_cmp_lg_u32 s8, 0
  s_cbranch_scc1 chain_wo1
  v_add_u32 v109, {L_WO + 16384}, v1
  ds_read_b128 v[48:51], v109
  ds_read_b128 v[52:55], v109 offset:1024
  ds_read_b128 v[56:59], v109 offset:2048
  ds_read_b128 v[60:63], v109 offset:3072
  s_waitcnt lgkmcnt(0)
  v_mfma_f32_16x16x32_bf16 v[104:107], v[48:51], v[32:35], 0
  v_mfma_f32_16x16x32_bf16 v[104:107], v[52:55], v[36:39], v[104:107]
  v_mfma_f32_16x16x32_bf16 v[104:107], v[56:59], v[40:43], v[104:107]
  v_mfma_f32_16x16x32_bf16 v[104:107], v[60:63], v[44:47], v[104:107]
chain_wo1:
  s_waitcnt lgkmcnt(0)
  v_mfma_f32_16x16x32_bf16 v[100:103], v[16:19], v[32:35], 0
  v_mfma_f32_16x16x32_bf16 v[100:103], v[20:23], v[36:39], v[100:103]
  v_mfma_f32_16x16x32_bf16 v[100:103], v[24:27], v[40:43], v[100:103]
  v_mfma_f32_16x16x32_bf16 v[100:103], v[28:31], v[44:47], v[100:103]
  s_add_u32 s58, s28, s50
  s_addc_u32 s59, s29, 0
  v_cmp_gt_u32 vcc, 8, v4
  s_and_saveexec_b64 s[56:57], vcc
  s_nop 7
  s_cmp_eq_u32 s51, 0
  s_cbranch_scc1 chain_st_slow
  global_store_dwordx4 v12, v[100:103], s[58:59]
  s_cmp_lg_u32 s8, 0
  s_cbranch_scc1 chain_st1
  s_add_u32 s58, s58, 65536
  s_addc_u32 s59, s59, 0
  global_store_dwordx4 v12, v[104:107], s[58:59]
  s_branch chain_st1
chain_st_slow:
  global_store_dwordx4 v12, v[100:103], s[58:59] sc1
  s_cmp_lg_u32 s8, 0
  s_cbranch_scc1 chain_st1
  s_add_u32 s58, s58, 65536
  s_addc_u32 s59, s59, 0
  global_store_dwordx4 v12, v[104:107], s[58:59] sc1
chain_st1:
  s_mov_b64 exec, s[56:57]
""")
    cyc(9)
    stamp(3)
    cycdump()
    a(f"""
  s_cmp_lg_u32 s10, 0
  s_cbranch_scc1 chain_nokm
  global_store_dwordx4 v1, v[92:95], s[42:43]
  global_store_dwordx2 v13, v[96:97], s[44:45]
  global_store_dwordx2 v13, v[98:99], s[44:45] offset:512
chain_nokm:
  s_add_u32 s42, s42, 0x20000
  s_addc_u32 s43, s43, 0
  s_add_u32 s44, s44, 0x20000
  s_addc_u32 s45, s45, 0
  ; ---- reducer
  s_cmp_eq_u32 s36, 0
  s_cbranch_scc1 chain_cons
  s_add_u32 s58, s30, s50
  s_addc_u32 s59, s31, 0
  s_mov_b32 s60, 0
  s_cmp_eq_u32 s51, 1
  s_cbranch_scc1 chain_rpoll
  s_sleep 16
chain_rpoll:
  s_sleep {RS}
  global_load_dwordx4 v[16:19], v1, s[58:59] sc1
  global_load_dwordx4 v[20:23], v1, s[58:59] offset:1024 sc1
  global_load_dwordx4 v[24:27], v1, s[58:59] offset:2048 sc1
  global_load_dwordx4 v[28:31], v1, s[58:59] offset:3072 sc1
  s_waitcnt vmcnt(0)
  v_max3_u32 v32, v16, v17, v18
  v_max3_u32 v33, v19, v20, v21
  v_max3_u32 v34, v22, v23, v24
  v_max3_u32 v35, v25, v26, v27
  v_max3_u32 v32, v32, v28, v29
  v_max3_u32 v33, v33, v30, v31
  v_max3_u32 v32, v32, v34, v35
  v_max_u32 v32, v32, v33
  v_cmp_eq_u32 vcc, -1, v32
  s_add_u32 s60, s60, 1
  s_cmp_gt_u32 s60, {LIMIT}
  s_cbranch_scc1 chain_rdone
  s_cbranch_vccnz chain_rpoll
chain_rdone:
  v_add_f32 v16, v16, v20
  v_add_f32 v17, v17, v21
  v_add_f32 v18, v18, v22
  v_add_f32 v19, v19, v23
  v_add_f32 v24, v24, v28
  v_add_f32 v25, v25, v29
  v_add_f32 v26, v26, v30
  v_add_f32 v27, v27, v31
  v_add_f32 v16, v16, v24
  v_add_f32 v17, v17, v25
  v_add_f32 v18, v18, v26
  v_add_f32 v19, v19, v27
  s_nop 1
  v_add_f32_dpp v16, v16, v16 row_ror:8 row_mask:0xf bank_mask:0xf
  v_add_f32_dpp v17, v17, v17 row_ror:8 row_mask:0xf bank_mask:0xf
  v_add_f32_dpp v18, v18, v18 row_ror:8 row_mask:0xf bank_mask:0xf
  v_add_f32_dpp v19, v19, v19 row_ror:8 row_mask:0xf bank_mask:0xf
  v_mov_b32 v20, v16
  v_mov_b32 v21, v17
  v_mov_b32 v22, v18
  v_mov_b32 v23, v19
  s_nop 1
  v_permlane16_swap_b32 v16, v20
  v_permlane16_swap_b32 v17, v21
  v_permlane16_swap_b32 v18, v22
  v_permlane16_swap_b32 v19, v23
  v_add_f32 v16, v16, v20
  v_add_f32 v17, v17, v21
  v_add_f32 v18, v18, v22
  v_add_f32 v19, v19, v23
  v_mov_b32 v20, v16
  v_mov_b32 v21, v17
  v_mov_b32 v22, v18
  v_mov_b32 v23, v19
  s_nop 1
  v_permlane32_swap_b32 v16, v20
  v_permlane32_swap_b32 v17, v21
  v_permlane32_swap_b32 v18, v22
  v_permlane32_swap_b32 v19, v23
  v_add_f32 v16, v16, v20
  v_add_f32 v17, v17, v21
  v_add_f32 v18, v18, v22
  v_add_f32 v19, v19, v23
  v_cvt_pk_bf16_f32 v20, v16, v17
  v_cvt_pk_bf16_f32 v21, v18, v19
  global_store_dwordx2 v2, v[20:21], s[32:33] sc1
  v_mov_b32 v24, -1
  v_mov_b32 v25, -1
  v_mov_b32 v26, -1
  v_mov_b32 v27, -1
  s_cmp_eq_u32 s51, 0
  s_cbranch_scc1 chain_rc_slow
  v_mov_b32 v28, s94
  v_mov_b32 v29, 1
  s_mov_b64 s[56:57], exec
  s_mov_b64 exec, 1
  global_store_dword v28, v29, s[92:93]
  s_mov_b64 exec, s[56:57]
  global_store_dwordx4 v1, v[24:27], s[58:59]
  global_store_dwordx4 v1, v[24:27], s[58:59] offset:1024
  global_store_dwordx4 v1, v[24:27], s[58:59] offset:2048
  global_store_dwordx4 v1, v[24:27], s[58:59] offset:3072
  s_branch chain_rc_done
chain_rc_slow:
  global_store_dwordx4 v1, v[24:27], s[58:59] sc1
  global_store_dwordx4 v1, v[24:27], s[58:59] offset:1024 sc1
  global_store_dwordx4 v1, v[24:27], s[58:59] offset:2048 sc1
  global_store_dwordx4 v1, v[24:27], s[58:59] offset:3072 sc1
chain_rc_done:
  s_add_u32 s32, s32, 10240
  s_addc_u32 s33, s33, 0
""")
    stamp(4, True)
    a(f"""
  s_mov_b32 s60, 0
  s_cmp_eq_u32 s51, 1
  s_cbranch_scc1 chain_lf
  s_sleep 22
  s_branch chain_cpoll2
chain_cons:
  s_mov_b32 s60, 0
  s_cmp_eq_u32 s51, 1
  s_cbranch_scc1 chain_lf0
  s_sleep 58
  s_branch chain_cpoll2
chain_lf0:
  s_sleep {CS}
chain_lf:
  v_lshlrev_b32 v28, 2, v3
chain_lfpoll:
  s_sleep 1
  v_mov_b32 v29, 0
  v_cmp_gt_u32 vcc, 20, v3
  s_and_saveexec_b64 s[56:57], vcc
  global_load_dword v29, v28, s[92:93] sc1
  s_mov_b64 exec, s[56:57]
  s_waitcnt vmcnt(0)
  v_cmp_eq_u32 vcc, -1, v29
  s_add_u32 s60, s60, 1
  s_cmp_gt_u32 s60, {LIMIT}
  s_cbranch_scc1 chain_lfdone
  s_cbranch_vccnz chain_lfpoll
chain_lfdone:
  s_mov_b32 s60, 0
  s_sleep {LD}
chain_cpoll2:
  v_mov_b32 v24, 0
  v_mov_b32 v25, 0
  v_mov_b32 v26, 0
  v_mov_b32 v27, 0
chain_cpoll:
  s_sleep {CS2}
  global_load_dwordx4 v[16:19], v9, s[34:35] sc1
  global_load_dwordx4 v[20:23], v9, s[34:35] offset:1024 sc1
  v_cmp_gt_u32 vcc, 32, v3
  s_and_saveexec_b64 s[56:57], vcc
  global_load_dwordx4 v[24:27], v9, s[34:35] offset:2048 sc1
  s_mov_b64 exec, s[56:57]
  s_waitcnt vmcnt(0)
  v_max3_u32 v32, v16, v17, v18
  v_max3_u32 v33, v19, v20, v21
  v_max3_u32 v34, v22, v23, v24
  v_max3_u32 v32, v32, v25, v26
  v_max3_u32 v33, v33, v27, v34
  v_max_u32 v32, v32, v33
  v_cmp_eq_u32 vcc, -1, v32
  s_add_u32 s60, s60, 1
  s_cmp_gt_u32 s60, {LIMIT}
  s_cbranch_scc1 chain_cdone
  s_cbranch_vccnz chain_cpoll
chain_cdone:
""")
    stamp(5, True)
    a(f"""
  s_add_u32 s34, s34, 10240
  s_addc_u32 s35, s35, 0
  s_add_u32 s92, s92, 1024
  s_addc_u32 s93, s93, 0
  s_xor_b32 s50, s50, 655360
  s_add_u32 s49, s49, 1
  s_branch chain_step
chain_last:
""")
    lk2 = lk
    a("  s_waitcnt lgkmcnt(0)")
    for kt in range(0, 10):
        a(f"  ds_read_b128 {MB(0)}, v14 offset:{kt*1024}")
        a("  s_waitcnt lgkmcnt(0)")
        for t in range(2):
            a(f"  v_mfma_f32_16x16x32_bf16 {VA[t]}, {MB(0)}, {wreg(80+kt*2+t)}, {VA[t]}")
        a("  s_nop 7")
    a("""  s_nop 7
  v_cvt_pk_bf16_f32 v96, v64, v65
  v_cvt_pk_bf16_f32 v97, v66, v67
  v_cvt_pk_bf16_f32 v98, v68, v69
  v_cvt_pk_bf16_f32 v99, v70, v71
  s_cmp_lg_u32 s10, 0
  s_cbranch_scc1 chain_done
  global_store_dwordx4 v1, v[92:95], s[42:43]
  global_store_dwordx2 v13, v[96:97], s[44:45]
  global_store_dwordx2 v13, v[98:99], s[44:45] offset:512
chain_done:
  s_endpgm""")
    return kd(name, 512, 100, 256)
```

```python
import sys
from common import *

class A:
    def __init__(s): s.l = []
    def __call__(s, t):
        for x in t.strip('\n').split('\n'): s.l.append(x)
    def text(s): return '\n'.join(s.l) + '\n'

def kd(name, vgpr, sgpr, accum):
    return f""".amdhsa_kernel {name}
  .amdhsa_next_free_vgpr {vgpr}
  .amdhsa_next_free_sgpr {sgpr}
  .amdhsa_accum_offset {accum}
  .amdhsa_group_segment_fixed_size 0
  .amdhsa_kernarg_size 112
  .amdhsa_user_sgpr_count 2
  .amdhsa_user_sgpr_kernarg_segment_ptr 1
  .amdhsa_system_sgpr_workgroup_id_x 1
.end_amdhsa_kernel
"""

def khead(a, name):
    a(f""".globl {name}
.p2align 8
.type {name},@function
{name}:""")

def emit_ln(a, tag, s_src, s_rt, s_ws, dst_off, v_lane):
    a(f"""
  v_and_b32 v4, 15, v{v_lane}          ; r
  v_lshrrev_b32 v5, 4, v{v_lane}       ; g
  s_lshl_b32 s40, s{s_rt}, 4
  v_add_u32 v4, s40, v4                ; row
  v_mul_u32_u24 v4, 0x500, v4          ; row*1280
  v_lshl_add_u32 v4, v5, 4, v4         ; + g*16
""")
    for kt in range(20):
        a(f"  global_load_dwordx4 v[{16+4*kt}:{19+4*kt}], v4, s[{s_src}:{s_src+1}] offset:{kt*64}")
    a("  v_mov_b32 v6, 0\n  v_mov_b32 v7, 0")
    a("  s_mov_b32 s41, 0xffff0000")
    for kt in range(20):
        a(f"  s_waitcnt vmcnt({19-kt})")
        for j in range(4):
            r = 16+4*kt+j
            a(f"""  v_lshlrev_b32 v8, 16, v{r}
  v_and_b32 v9, s41, v{r}
  v_add_f32 v6, v6, v8
  v_add_f32 v7, v7, v9""")
    a("""  v_add_f32 v6, v6, v7
  s_nop 1
  v_mov_b32 v7, v6
  s_nop 1
  v_permlane16_swap_b32 v6, v7
  v_add_f32 v6, v6, v7
  s_nop 1
  v_mov_b32 v7, v6
  s_nop 1
  v_permlane32_swap_b32 v6, v7
  v_add_f32 v6, v6, v7
  v_mul_f32 v6, 0x3acccccd, v6
  v_mov_b32 v10, 0
  v_mov_b32 v11, 0""")
    for kt in range(20):
        for j in range(4):
            r = 16+4*kt+j
            a(f"""  v_lshlrev_b32 v8, 16, v{r}
  v_and_b32 v9, s41, v{r}
  v_sub_f32 v8, v8, v6
  v_sub_f32 v9, v9, v6
  v_fmac_f32 v10, v8, v8
  v_fmac_f32 v11, v9, v9""")
    a("""  v_add_f32 v10, v10, v11
  s_nop 1
  v_mov_b32 v11, v10
  s_nop 1
  v_permlane16_swap_b32 v10, v11
  v_add_f32 v10, v10, v11
  s_nop 1
  v_mov_b32 v11, v10
  s_nop 1
  v_permlane32_swap_b32 v10, v11
  v_add_f32 v10, v10, v11
  v_mul_f32 v10, 0x3acccccd, v10       ; var
  v_cvt_pk_bf16_f32 v12, v6, v10
  v_lshlrev_b32 v6, 16, v12            ; mean_b
  v_and_b32 v10, s41, v12              ; var_b
  v_add_f32 v10, 0x3727c5ac, v10       ; + 1e-5
  v_cvt_pk_bf16_f32 v12, v10, v10
  v_lshlrev_b32 v10, 16, v12
  v_sqrt_f32 v10, v10
  s_nop 0
  v_cvt_pk_bf16_f32 v12, v10, v10
  v_lshlrev_b32 v10, 16, v12
  v_rcp_f32 v11, v10
  s_nop 0
  v_fma_f32 v12, -v10, v11, 1.0
  v_fma_f32 v11, v12, v11, v11         ; 1/den
""")
    a(f"""  s_mul_i32 s42, s{s_rt}, 20480
  s_add_u32 s42, s42, 0x{dst_off:x}
  s_add_u32 s44, s{s_ws}, s42
  s_addc_u32 s45, s{s_ws+1}, 0
  v_lshlrev_b32 v13, 4, v{v_lane}""")
    for kt in range(20):
        for j in range(4):
            r = 16+4*kt+j
            a(f"""  v_lshlrev_b32 v8, 16, v{r}
  v_and_b32 v9, s41, v{r}
  v_sub_f32 v8, v8, v6
  v_sub_f32 v9, v9, v6
  v_cvt_pk_bf16_f32 v14, v8, v9
  v_lshlrev_b32 v8, 16, v14
  v_and_b32 v9, s41, v14
  v_mul_f32 v8, v8, v11
  v_mul_f32 v9, v9, v11
  v_cvt_pk_bf16_f32 v{r}, v8, v9""")
        off = kt*1024
        if off < 4096:
            a(f"  global_store_dwordx4 v13, v[{16+4*kt}:{19+4*kt}], s[44:45] offset:{off}")
        else:
            if off % 4096 == 0:
                a("  s_add_u32 s44, s44, 0x1000\n  s_addc_u32 s45, s45, 0")
            a(f"  global_store_dwordx4 v13, v[{16+4*kt}:{19+4*kt}], s[44:45] offset:{off % 4096}")

NJ_LN, NJ_QKV, NJ_WO, NJ_GU, NJ_WD = 128, 192*4, 160, 54*4, 90
CLR_BYTES = P_BYTES + 8*MB_STRIDE + LF_BYTES
NJ_CLR = (CLR_BYTES + 16383)//16384
PREP_WAVES = NJ_LN+NJ_QKV+NJ_WO+NJ_GU+NJ_WD+NJ_CLR
PREP_WGS = (PREP_WAVES+3)//4
PREP_LDS = 4*2*4608

def gen_prep(a):
    name = "prep_kernel"
    khead(a, name)
    b0 = NJ_LN; b1 = b0+NJ_QKV; b2 = b1+NJ_WO; b3 = b2+NJ_GU; b4 = b3+NJ_WD; b5 = b4+NJ_CLR
    a(f"""
  s_load_dwordx2 s[4:5], s[0:1], 0
  s_load_dwordx2 s[6:7], s[0:1], 104
  s_load_dwordx4 s[8:11], s[0:1], 16
  s_load_dwordx4 s[12:15], s[0:1], 32
  s_load_dwordx4 s[16:19], s[0:1], 64
  s_load_dwordx2 s[20:21], s[0:1], 80
  v_lshrrev_b32 v1, 6, v0
  v_and_b32 v2, 63, v0
  s_nop 0
  v_readfirstlane_b32 s22, v1
  s_lshl_b32 s23, s2, 2
  s_nop 2
  s_add_u32 s23, s23, s22
  s_waitcnt lgkmcnt(0)
  s_cmp_ge_u32 s23, {b5}
  s_cbranch_scc1 prep_done
  s_cmp_lt_u32 s23, {b0}
  s_cbranch_scc1 prep_ln
  s_cmp_ge_u32 s23, {b4}
  s_cbranch_scc1 prep_clr
  s_cmp_lt_u32 s23, {b1}
  s_cbranch_scc1 prep_qkv
  s_cmp_lt_u32 s23, {b2}
  s_cbranch_scc1 prep_wo
  s_cmp_lt_u32 s23, {b3}
  s_cbranch_scc1 prep_gu
  ; Wd: j: cg=j/3 chunk=j%3
  s_sub_u32 s24, s23, {b3}
  s_mov_b32 s25, 0x1c71c71d
  s_mul_hi_u32 s26, s24, s25
  s_mul_i32 s27, s26, 9
  s_sub_u32 s27, s24, s27
  s_mul_i32 s27, s27, 6
  s_mov_b32 s28, s20
  s_mov_b32 s29, s21
  s_mov_b32 s30, 1280
  s_lshl_b32 s31, s26, 6
  s_mov_b32 s32, 6
  s_mul_i32 s33, s26, {4*54}
  s_add_u32 s33, s33, s27
  s_lshl_b32 s33, s33, 10
  s_add_u32 s33, s33, 0x{WD_F:x}
  s_mov_b32 s44, {54*1024}
  s_mov_b32 s45, {2*54*1024}
  s_mov_b32 s46, {3*54*1024}
  s_mov_b32 s34, 4
  s_mov_b32 s35, 16
  s_branch prep_rl
prep_gu:
  s_sub_u32 s24, s23, {b2}
  s_and_b32 s27, s24, 3
  s_mul_i32 s27, s27, 5
  s_lshr_b32 s26, s24, 3
  s_bitcmp1_b32 s24, 2
  s_cselect_b32 s28, s18, s16
  s_cselect_b32 s29, s19, s17
  s_cselect_b32 s25, 2, 0
  s_mov_b32 s30, {F*2}
  s_lshl_b32 s31, s26, 6
  s_mov_b32 s32, 5
  s_lshl_b32 s33, s26, 3
  s_add_u32 s33, s33, s25
  s_mul_i32 s33, s33, 20
  s_add_u32 s33, s33, s27
  s_lshl_b32 s33, s33, 10
  s_add_u32 s33, s33, 0x{WGU_F:x}
  s_mov_b32 s44, {20480}
  s_mov_b32 s45, {4*20480}
  s_mov_b32 s46, {5*20480}
  s_mov_b32 s34, 8
  s_mov_b32 s35, 4
  s_branch prep_rl
prep_wo:
  s_sub_u32 s24, s23, {b1}
  s_lshr_b32 s26, s24, 4              ; cg
  s_and_b32 s27, s24, 15
  s_lshl_b32 s27, s27, 3
  s_mov_b32 s28, s14
  s_mov_b32 s29, s15
  s_mov_b32 s30, 1280
  s_lshl_b32 s31, s26, 6
  s_mov_b32 s32, 8
  s_mul_i32 s33, s26, {4*OSTR}
  s_add_u32 s33, s33, s27
  s_lshl_b32 s33, s33, 10
  s_add_u32 s33, s33, 0x{WO_F:x}
  s_mov_b32 s44, {OSTR*1024}
  s_mov_b32 s45, {2*OSTR*1024}
  s_mov_b32 s46, {3*OSTR*1024}
  s_mov_b32 s34, 4
  s_mov_b32 s35, 16
  s_branch prep_rl
prep_qkv:
  s_sub_u32 s24, s23, {b0}
  s_and_b32 s27, s24, 3
  s_mul_i32 s27, s27, 5
  s_lshr_b32 s24, s24, 2
  s_lshr_b32 s26, s24, 6
  s_and_b32 s25, s24, 63
  s_mov_b32 s28, s8
  s_mov_b32 s29, s9
  s_cmp_eq_u32 s26, 1
  s_cselect_b32 s28, s10, s28
  s_cselect_b32 s29, s11, s29
  s_cmp_eq_u32 s26, 2
  s_cselect_b32 s28, s12, s28
  s_cselect_b32 s29, s13, s29
  s_mov_b32 s30, 8192
  s_lshl_b32 s31, s25, 6
  s_mov_b32 s32, 5
  s_mul_i32 s33, s24, 80
  s_add_u32 s33, s33, s27
  s_lshl_b32 s33, s33, 10
  s_add_u32 s33, s33, 0x{WQKV_F:x}
  s_mov_b32 s44, {20480}
  s_mov_b32 s45, {2*20480}
  s_mov_b32 s46, {3*20480}
  s_mov_b32 s34, 8
  s_mov_b32 s35, 4
prep_rl:
  v_lshrrev_b32 v4, 3, v2
  v_and_b32 v5, 7, v2
  s_lshl_b32 s36, s27, 5
  v_add_u32 v6, s36, v4
  v_mul_lo_u32 v6, v6, s30
  s_lshl_b32 s37, s31, 1
  v_lshl_add_u32 v6, v5, 4, v6
  v_add_u32 v8, s37, v6
  s_lshl_b32 s38, s30, 3
  v_add_u32 v9, s38, v8
  v_add_u32 v10, s38, v9
  v_add_u32 v11, s38, v10
  s_lshl_b32 s38, s30, 5
  s_mul_i32 s39, s22, 9216
  v_mul_u32_u24 v12, 144, v4
  v_lshl_add_u32 v12, v5, 4, v12
  v_add_u32 v12, s39, v12
  v_lshrrev_b32 v13, 4, v2
  v_mul_lo_u32 v13, v13, s34
  v_bfe_u32 v14, v2, 2, 2
  v_add_u32 v13, v13, v14
  v_mul_u32_u24 v13, 144, v13
  v_and_b32 v14, 3, v2
  v_lshl_add_u32 v13, v14, 3, v13
  v_add_u32 v13, s39, v13
  s_mul_i32 s40, s35, 144
  v_add_u32 v14, s40, v13
  v_lshlrev_b32 v16, 4, v2
  v_add_u32 v17, s44, v16
  v_add_u32 v18, s45, v16
  v_add_u32 v19, s46, v16
  s_add_u32 s40, s6, s33
  s_addc_u32 s41, s7, 0
  global_load_dwordx4 v[20:23], v8, s[28:29]
  global_load_dwordx4 v[24:27], v9, s[28:29]
  global_load_dwordx4 v[28:31], v10, s[28:29]
  global_load_dwordx4 v[32:35], v11, s[28:29]
  s_mov_b32 s42, 0
prep_rl_loop:
  s_add_u32 s28, s28, s38
  s_addc_u32 s29, s29, 0
  s_waitcnt vmcnt(0)
  ds_write_b128 v12, v[20:23]
  ds_write_b128 v12, v[24:27] offset:1152
  ds_write_b128 v12, v[28:31] offset:2304
  ds_write_b128 v12, v[32:35] offset:3456
  s_add_u32 s43, s42, 1
  s_cmp_ge_u32 s43, s32
  s_cbranch_scc1 prep_rl_nold
  global_load_dwordx4 v[20:23], v8, s[28:29]
  global_load_dwordx4 v[24:27], v9, s[28:29]
  global_load_dwordx4 v[28:31], v10, s[28:29]
  global_load_dwordx4 v[32:35], v11, s[28:29]
prep_rl_nold:
  s_waitcnt lgkmcnt(0)
""")
    for t in range(4):
        a(f"  ds_read_b64_tr_b16 v[{40+4*t}:{41+4*t}], v13 offset:{32*t}\n  ds_read_b64_tr_b16 v[{42+4*t}:{43+4*t}], v14 offset:{32*t}")
    a("""  s_waitcnt lgkmcnt(6)
  global_store_dwordx4 v16, v[40:43], s[40:41]
  s_waitcnt lgkmcnt(4)
  global_store_dwordx4 v17, v[44:47], s[40:41]
  s_waitcnt lgkmcnt(2)
  global_store_dwordx4 v18, v[48:51], s[40:41]
  s_waitcnt lgkmcnt(0)
  global_store_dwordx4 v19, v[52:55], s[40:41]
  s_add_u32 s40, s40, 0x400
  s_addc_u32 s41, s41, 0
  s_add_u32 s42, s42, 1
  s_cmp_lt_u32 s42, s32
  s_cbranch_scc1 prep_rl_loop
  s_branch prep_done""")
    a(f"""
prep_clr:
  s_sub_u32 s24, s23, {b4}
  s_cmp_lg_u32 s24, 0
  s_cbranch_scc1 prep_clr2
  v_lshlrev_b32 v16, 4, v2
  v_mov_b32 v20, 0
  v_mov_b32 v21, 0
  v_mov_b32 v22, 0
  v_mov_b32 v23, 0
  s_add_u32 s40, s6, 0x{CNT_OFF:x}
  s_addc_u32 s41, s7, 0
  global_store_dwordx4 v16, v[20:23], s[40:41]
  s_nop 1
prep_clr2:
  s_lshl_b32 s24, s24, 14
  v_lshlrev_b32 v16, 4, v2
  v_mov_b32 v20, -1
  v_mov_b32 v21, -1
  v_mov_b32 v22, -1
  v_mov_b32 v23, -1
  s_mov_b32 s39, 0
prep_clr_loop:
  s_add_u32 s25, s24, s39
  s_cmp_ge_u32 s25, {CLR_BYTES}
  s_cbranch_scc1 prep_done
  s_mov_b32 s27, 0x{P_OFF:x}
  s_cmp_lt_u32 s25, {P_BYTES}
  s_cselect_b32 s26, s27, 0x{MB_OFF - P_BYTES:x}
  s_add_u32 s25, s25, s26
  s_add_u32 s40, s6, s25
  s_addc_u32 s41, s7, 0
  global_store_dwordx4 v16, v[20:23], s[40:41]
  s_add_u32 s39, s39, 1024
  s_cmp_lt_u32 s39, 16384
  s_cbranch_scc1 prep_clr_loop
  s_branch prep_done
prep_ln:
""")
    emit_ln(a, "p", 4, 23, 6, XN_F, 2)
    a("prep_done:\n  s_endpgm")
    return kd(name, 128, 64, 128)

class Gemm:
    def __init__(s, name, MT, NT, KT, NS, WM, WN, x_off, w_off, nwg, KS=1, NSPLIT=1, KSTR=None):
        s.name, s.MT, s.NT, s.KT, s.NS, s.WM, s.WN = name, MT, NT, KT, NS, WM, WN
        s.x_off, s.w_off, s.nwg, s.KS = x_off, w_off, nwg, KS
        s.mt, s.nt = MT//WM, NT//WN
        s.T = MT+NT
        s.KSTR = KSTR or KT
        s.NSPLIT = NSPLIT; s.KTC = KT//NSPLIT
        assert s.T % 4 == 0 and KS == 1 and KT % NSPLIT == 0
        s.nd = s.T//4
        s.stage = s.T*1024*KS
        s.lds = s.stage*NS
        s.NSTEP = s.KTC//KS
    def prologue(s, a, map_code):
        n = s.name
        a(f"""
  s_cmp_ge_u32 s2, {s.nwg}
  s_cbranch_scc1 {n}_done
  s_load_dwordx2 s[6:7], s[0:1], 104
  s_load_dwordx2 s[4:5], s[0:1], 0
  s_load_dwordx2 s[8:9], s[0:1], 88
  v_lshrrev_b32 v5, 6, v0
  v_and_b32 v6, 63, v0
  s_nop 0
  v_readfirstlane_b32 s22, v5         ; wave
  v_lshlrev_b32 v1, 4, v6             ; lane*16
""")
        a(map_code)
        a(f"""
  s_waitcnt lgkmcnt(0)
  s_lshr_b32 s23, s22, {1 if s.WN==2 else (2 if s.WN==4 else 0)}   ; wm
  s_and_b32 s24, s22, {s.WN-1}        ; wn
""")
        for j in range(s.nd):
            sb = 40+2*j
            a(f"""  s_add_u32 s25, s22, {4*j}
  s_mul_i32 s26, s20, {s.MT}
  s_add_u32 s26, s26, s25
  s_mul_i32 s26, s26, {s.KSTR*1024}
  s_add_u32 s26, s26, 0x{s.x_off:x}
  s_mul_i32 s27, s21, {s.NT}
  s_add_u32 s27, s27, s25
  s_sub_u32 s27, s27, {s.MT}
  s_mul_i32 s27, s27, {s.KSTR*1024}
  s_add_u32 s27, s27, 0x{s.w_off:x}
  s_cmp_lt_u32 s25, {s.MT}
  s_cselect_b32 s26, s26, s27
  s_add_u32 s{sb}, s6, s26
  s_addc_u32 s{sb+1}, s7, 0""")
        a(f"""  s_mul_i32 s28, s22, {1024*s.KS}
  s_mul_i32 s25, s19, {s.KTC*1024 if s.NSPLIT > 1 else 0}
  v_add_u32 v2, s25, v1
  s_mul_i32 s29, s23, {s.mt*1024*s.KS}
  s_mul_i32 s30, s24, {s.nt*1024*s.KS}
  s_add_u32 s30, s30, {s.MT*1024*s.KS}
  s_mov_b32 s31, 0
  s_mov_b32 s32, 0
""")
        for st in range(s.NS):
            s.dma(a)
        for i in range(s.mt*s.nt*4):
            a(f"  v_accvgpr_write_b32 a{i}, 0")
    def dma_list(s):
        L = ["  s_add_u32 s33, s32, s28"]
        for j in range(s.nd):
            L.append(f"  s_add_u32 m0, s33, {4096*j}\n  s_nop 0\n  global_load_lds_dwordx4 v2, s[{40+2*j}:{41+2*j}]")
        L.append(f"""  v_add_u32 v2, 1024, v2
  s_add_u32 s32, s32, {s.stage}
  s_cmp_ge_u32 s32, {s.lds}
  s_cselect_b32 s32, 0, s32""")
        return L
    def dma(s, a):
        for x in s.dma_list(): a(x)
    def regs(s, k):
        nf = s.nt + s.mt
        base = 8 + 4*nf*(k % 2)
        return base, base + 4*s.nt
    def read_list(s, k):
        fb, fa = s.regs(k)
        L = [f"""  s_add_u32 s34, s31, s29
  s_add_u32 s35, s31, s30
  v_add_u32 v3, s34, v1
  v_add_u32 v4, s35, v1"""]
        for j in range(s.nt): L.append(f"  ds_read_b128 v[{fb+4*j}:{fb+4*j+3}], v4 offset:{1024*j}")
        for i in range(s.mt): L.append(f"  ds_read_b128 v[{fa+4*i}:{fa+4*i+3}], v3 offset:{1024*i}")
        L.append(f"""  s_add_u32 s31, s31, {s.stage}
  s_cmp_ge_u32 s31, {s.lds}
  s_cselect_b32 s31, 0, s31""")
        return L
    def body(s, a, par, vm, do_dma, do_read, transposed):
        if do_read:
            a(f"  s_waitcnt vmcnt({vm}) lgkmcnt(0)\n  s_barrier")
        else:
            a("  s_waitcnt lgkmcnt(0)")
        side = []
        if do_read: side += s.read_list(par ^ 1)
        if do_dma: side += s.dma_list()
        fb, fa = s.regs(par)
        mf = []
        for i in range(s.mt):
            for j in range(s.nt):
                acc = 4*(i*s.nt+j)
                X = f"v[{fa+4*i}:{fa+4*i+3}]"; W = f"v[{fb+4*j}:{fb+4*j+3}]"
                if transposed: mf.append(f"  v_mfma_f32_16x16x32_bf16 a[{acc}:{acc+3}], {W}, {X}, a[{acc}:{acc+3}]")
                else: mf.append(f"  v_mfma_f32_16x16x32_bf16 a[{acc}:{acc+3}], {X}, {W}, a[{acc}:{acc+3}]")
        n = len(mf); m = len(side); k = 0
        for i, x in enumerate(mf):
            a(x)
            while k < m and k * n < (i+1) * m:
                a(side[k]); k += 1
        while k < m: a(side[k]); k += 1
    def mainloop(s, a, transposed, tag):
        n = s.name + tag
        per = s.nd; N = s.NSTEP; NS = s.NS
        a(f"  s_waitcnt vmcnt({(NS-1)*per})\n  s_barrier")
        for x in s.read_list(0): a(x)
        steady = N - NS
        kt = 0
        if steady % 2 == 1:
            s.body(a, 0, (NS-2)*per, True, True, transposed); kt = 1
        if steady - kt > 0:
            a(f"  s_mov_b32 s36, 0\n{n}_loop:")
            s.body(a, kt % 2, (NS-2)*per, True, True, transposed)
            s.body(a, (kt+1) % 2, (NS-2)*per, True, True, transposed)
            a(f"  s_add_u32 s36, s36, 2\n  s_cmp_lt_u32 s36, {steady-kt}\n  s_cbranch_scc1 {n}_loop")
        kt = steady
        while kt < N:
            rd = kt+1 < N
            s.body(a, kt % 2, max(0, N-2-kt)*per, False, rd, transposed)
            kt += 1
        a("  s_nop 7\n  s_nop 3")
    def vgprs(s):
        nf = s.nt + s.mt
        v = 8 + 4*nf*2
        return max(64, (v+3)//4*4)

def gen_qkv(a):
    import os
    g = Gemm("qkv_kernel", MT=16, NT=8, KT=20, NS=int(os.environ.get("QNS","3")), WM=2, WN=2, x_off=XN_F, w_off=WQKV_F, nwg=768)
    khead(a, g.name)
    g.prologue(a, """
  s_and_b32 s10, s2, 7
  s_lshr_b32 s11, s2, 3
  s_mov_b32 s12, 0x15555556
  s_mul_hi_u32 s20, s11, s12          ; idx/12
  s_mul_i32 s13, s20, 12
  s_sub_u32 s13, s11, s13
  s_mul_i32 s21, s10, 12
  s_add_u32 s21, s21, s13
  s_mov_b32 s19, 0
""")
    a("""  s_lshr_b32 s37, s21, 5
  s_and_b32 s38, s21, 31
  s_cmp_eq_u32 s37, 2
  s_cbranch_scc1 qkv_v""")
    g.mainloop(a, True, "_t")
    a(f"""  s_lshl_b32 s10, s37, 24             ; type*16MB
  s_add_u32 s10, s10, 0x{Q_F:x}
  s_lshl_b32 s11, s20, 3
  s_lshl_b32 s12, s23, 2
  s_add_u32 s11, s11, s12
  s_lshl_b32 s11, s11, 5
  s_add_u32 s11, s11, s38             ; seg0*32+head
  s_lshl_b32 s11, s11, 13             ; *8192
  s_add_u32 s10, s10, s11
  s_lshl_b32 s12, s24, 12
  s_add_u32 s10, s10, s12
  s_add_u32 s14, s6, s10
  s_addc_u32 s15, s7, 0""")
    for i in range(8):
        for jp in range(2):
            a0 = 4*(i*4+2*jp); a1 = a0+4
            for r in range(4):
                a(f"  v_accvgpr_read_b32 v{8+r}, a{a0+r}\n  v_accvgpr_read_b32 v{12+r}, a{a1+r}")
            a("""  v_cvt_pk_bf16_f32 v16, v8, v9
  v_cvt_pk_bf16_f32 v17, v10, v11
  v_cvt_pk_bf16_f32 v18, v12, v13
  v_cvt_pk_bf16_f32 v19, v14, v15""")
            off = jp*2048 + (i&1)*1024
            a(f"  global_store_dwordx4 v1, v[16:19], s[14:15] offset:{off}")
            a("  s_nop 1")
        if i & 1:
            a("  s_add_u32 s14, s14, 0x40000\n  s_addc_u32 s15, s15, 0")
    a("  s_branch qkv_kernel_done\nqkv_v:")
    g.mainloop(a, False, "_n")
    a(f"""  s_lshl_b32 s11, s20, 3
  s_lshl_b32 s12, s23, 2
  s_add_u32 s11, s11, s12
  s_lshl_b32 s11, s11, 5
  s_add_u32 s11, s11, s38
  s_lshl_b32 s11, s11, 13
  s_add_u32 s10, s11, 0x{V_F:x}
  s_lshl_b32 s12, s24, 12
  s_add_u32 s10, s10, s12
  s_add_u32 s14, s6, s10
  s_addc_u32 s15, s7, 0""")
    for ip in range(4):
        for j in range(4):
            a0 = 4*((2*ip)*4+j); a1 = 4*((2*ip+1)*4+j)
            for r in range(4):
                a(f"  v_accvgpr_read_b32 v{8+r}, a{a0+r}\n  v_accvgpr_read_b32 v{12+r}, a{a1+r}")
            a("""  v_cvt_pk_bf16_f32 v16, v8, v9
  v_cvt_pk_bf16_f32 v17, v10, v11
  v_cvt_pk_bf16_f32 v18, v12, v13
  v_cvt_pk_bf16_f32 v19, v14, v15""")
            a(f"  global_store_dwordx4 v1, v[16:19], s[14:15] offset:{j*1024}")
            a("  s_nop 1")
        a("  s_add_u32 s14, s14, 0x40000\n  s_addc_u32 s15, s15, 0")
    a("qkv_kernel_done:\n  s_endpgm")
    return kd(g.name, g.vgprs()+128, 64, g.vgprs()), g

def main():
    a = A()
    kds = []
    launches = []
    body = A()
    kds.append(gen_prep(body)); launches.append(("prep_kernel", PREP_WGS, 256, PREP_LDS))
    k, g = gen_qkv(body); kds.append(k); launches.append(("qkv_kernel", g.nwg, 256, g.lds))
    import gen_chain
    import os
    kds.append(gen_chain.gen_chain(body, RS=int(os.environ.get('RS','2')), CS=int(os.environ.get('CS','6')), CS2=int(os.environ.get('CS2','2')), DIAG=bool(int(os.environ.get('DIAG','0'))), EMU=bool(int(os.environ.get('EMU','0'))), LOC=bool(int(os.environ.get('LOC','0'))), RC=int(os.environ.get('RC','22')), FORCE_SLOW=bool(int(os.environ.get('FSLOW','0'))), LD=int(os.environ.get('LD','1')))); launches.append(("chain_kernel", 256, 256, gen_chain.L_END))
    import gen_post
    import gen_awl
    kds.append(gen_awl.gen_awl(body)); launches.append(("awl_kernel", 256, 256, 65536))
    k, g = gen_post.gen_ffn1(body); kds.append(k); launches.append((g.name, g.nwg, 256, g.lds))
    k, g = gen_post.gen_ffn2(body); kds.append(k); launches.append((g.name, g.nwg, 256, g.lds))
    hdr = open('cdna_kernels/'+KNAME+'.s.ref').read().split('; Override launch')[0]
    out = hdr
    for (n, gx, bx, lds) in launches:
        out += f"; @launch kernel={n} grid=({gx},1,1) block=({bx},1,1) lds={lds}\n"
    out += '.amdgcn_target "amdgcn-amd-amdhsa--gfx950"\n.text\n' + body.text()
    out += '.section .rodata,"a"\n'
    for k in kds: out += ".p2align 6\n" + k
    path = sys.argv[1] if len(sys.argv) > 1 else 'cdna_kernels/'+KNAME+'.s'
    open(path, 'w').write(out)
    print("wrote", path, len(out))
if __name__ == '__main__':
    main()
```

```python
from common import *
from gen import A, kd, khead, Gemm, emit_ln

def gen_attn(a):
    name = "attn_kernel"
    khead(a, name)
    a(f"""
  s_cmp_ge_u32 s2, 512
  s_cbranch_scc1 attn_done
  s_load_dwordx2 s[6:7], s[0:1], 104
  v_lshrrev_b32 v2, 6, v0
  v_and_b32 v3, 63, v0
  s_nop 0
  v_readfirstlane_b32 s8, v2
  v_lshlrev_b32 v1, 4, v3
  v_lshlrev_b32 v7, 3, v3
  v_and_b32 v4, 15, v3                ; q local
  v_lshrrev_b32 v5, 4, v3             ; g
  s_lshl_b32 s9, s2, 2
  s_add_u32 s9, s9, s8
  s_waitcnt lgkmcnt(0)
  s_lshl_b32 s10, s9, 13
  s_add_u32 s11, s10, 0x{Q_F:x}
  s_add_u32 s12, s6, s11
  s_addc_u32 s13, s7, 0
  s_add_u32 s11, s10, 0x{K_F:x}
  s_add_u32 s14, s6, s11
  s_addc_u32 s15, s7, 0
  s_add_u32 s11, s10, 0x{V_F:x}
  s_add_u32 s16, s6, s11
  s_addc_u32 s17, s7, 0
  s_lshl_b32 s10, s9, 12
  s_add_u32 s11, s10, 0x{KM_F:x}
  s_add_u32 s18, s6, s11
  s_addc_u32 s19, s7, 0
  s_add_u32 s11, s10, 0x{VM_F:x}
  s_add_u32 s20, s6, s11
  s_addc_u32 s21, s7, 0
  v_add_u32 v6, 0x1000, v1
""")
    for f in range(8):
        vo = "v1" if f < 4 else "v6"
        a(f"  global_load_dwordx4 v[{16+4*f}:{19+4*f}], {vo}, s[12:13] offset:{(f%4)*1024}")
        a(f"  global_load_dwordx4 v[{48+4*f}:{51+4*f}], {vo}, s[14:15] offset:{(f%4)*1024}")
    for w in range(4):
        a(f"  global_load_dwordx4 v[{80+4*w}:{83+4*w}], v1, s[18:19] offset:{w*1024}")
    for f in range(8):
        vo = "v1" if f < 4 else "v6"
        a(f"  global_load_dwordx4 v[{96+4*f}:{99+4*f}], {vo}, s[16:17] offset:{(f%4)*1024}")
    for f in range(8):
        a(f"  global_load_dwordx2 v[{128+2*f}:{129+2*f}], v7, s[20:21] offset:{f*512}")
    a("  s_waitcnt vmcnt(16)")
    tiles = [(0,'M',144),(0,0,148),(1,'M',152),(1,0,156),(1,1,160)]
    for w in range(4):
        for (tt, kt, acc) in tiles:
            Kf = f"v[{80+4*w}:{83+4*w}]" if kt == 'M' else f"v[{48+4*(w*2+kt)}:{51+4*(w*2+kt)}]"
            Qf = f"v[{16+4*(w*2+tt)}:{19+4*(w*2+tt)}]"
            c = f"v[{acc}:{acc+3}]" if w > 0 else "0"
            a(f"  v_mfma_f32_16x16x32_bf16 v[{acc}:{acc+3}], {Kf}, {Qf}, {c}")
    a("""  s_mov_b32 s52, 0x3db504f3
  s_mov_b32 s53, 0x3fb8aa3b
  s_mov_b32 s54, 0xffff0000
  v_mov_b32 v8, 0xff800000
  v_lshlrev_b32 v9, 2, v5             ; 4g
  s_nop 4""")
    for i in range(144, 164, 2):
        a(f"""  v_cvt_pk_bf16_f32 v10, v{i}, v{i+1}
  v_lshlrev_b32 v{i}, 16, v10
  v_and_b32 v{i+1}, s54, v10
  v_mul_f32 v{i}, s52, v{i}
  v_mul_f32 v{i+1}, s52, v{i+1}
  v_cvt_pk_bf16_f32 v10, v{i}, v{i+1}
  v_lshlrev_b32 v{i}, 16, v10
  v_and_b32 v{i+1}, s54, v10""")
    a("  v_cmp_lt_u32 vcc, 31, v3\n  s_nop 1")
    for b in (144, 152):
        for r in range(4): a(f"  v_cndmask_b32 v{b+r}, v{b+r}, v8, vcc")
    for r in range(4):
        a(f"  v_add_u32 v10, {r}, v9\n  v_cmp_gt_u32 vcc, v10, v4\n  s_nop 1")
        a(f"  v_cndmask_b32 v{148+r}, v{148+r}, v8, vcc\n  v_cndmask_b32 v{160+r}, v{160+r}, v8, vcc")
    def softmax(regs, tmp):
        n = len(regs)
        a(f"  v_max3_f32 v{tmp}, v{regs[0]}, v{regs[1]}, v{regs[2]}")
        i = 3
        while i < n:
            if i+1 < n: a(f"  v_max3_f32 v{tmp}, v{tmp}, v{regs[i]}, v{regs[i+1]}"); i += 2
            else: a(f"  v_max_f32 v{tmp}, v{tmp}, v{regs[i]}"); i += 1
        for sw in ("16", "32"):
            a(f"""  s_nop 1
  v_mov_b32 v{tmp+1}, v{tmp}
  s_nop 1
  v_permlane{sw}_swap_b32 v{tmp}, v{tmp+1}
  v_max_f32 v{tmp}, v{tmp}, v{tmp+1}""")
        for r in regs: a(f"  v_sub_f32 v{r}, v{r}, v{tmp}\n  v_mul_f32 v{r}, s53, v{r}")
        for r in regs: a(f"  v_exp_f32 v{r}, v{r}")
        a(f"  s_nop 0\n  v_add_f32 v{tmp}, v{regs[0]}, v{regs[1]}")
        for r in regs[2:]: a(f"  v_add_f32 v{tmp}, v{tmp}, v{r}")
        for sw in ("16", "32"):
            a(f"""  s_nop 1
  v_mov_b32 v{tmp+1}, v{tmp}
  s_nop 1
  v_permlane{sw}_swap_b32 v{tmp}, v{tmp+1}
  v_add_f32 v{tmp}, v{tmp}, v{tmp+1}""")
        a(f"""  v_rcp_f32 v{tmp+1}, v{tmp}
  s_nop 0
  v_fma_f32 v{tmp+2}, -v{tmp}, v{tmp+1}, 1.0
  v_fma_f32 v{tmp+1}, v{tmp+2}, v{tmp+1}, v{tmp+1}""")
        for r in regs: a(f"  v_mul_f32 v{r}, v{r}, v{tmp+1}")
    softmax(list(range(144, 152)), 10)
    softmax(list(range(152, 164)), 10)
    a("""  v_cvt_pk_bf16_f32 v164, v144, v145
  v_cvt_pk_bf16_f32 v165, v146, v147
  v_cvt_pk_bf16_f32 v166, v148, v149
  v_cvt_pk_bf16_f32 v167, v150, v151
  v_mov_b32 v168, 0
  v_mov_b32 v169, 0
  v_cvt_pk_bf16_f32 v170, v152, v153
  v_cvt_pk_bf16_f32 v171, v154, v155
  v_cvt_pk_bf16_f32 v172, v156, v157
  v_cvt_pk_bf16_f32 v173, v158, v159
  v_cvt_pk_bf16_f32 v174, v160, v161
  v_cvt_pk_bf16_f32 v175, v162, v163
  s_waitcnt vmcnt(0)""")
    for tt in range(2):
        pm = "v[164:165]" if tt == 0 else "v[170:171]"
        for et in range(8):
            acc = 16+4*(tt*8+et)
            a(f"  v_mfma_f32_16x16x16_bf16 v[{acc}:{acc+3}], v[{128+2*et}:{129+2*et}], {pm}, 0")
    for tt in range(2):
        px = "v[166:169]" if tt == 0 else "v[172:175]"
        for et in range(8):
            acc = 16+4*(tt*8+et)
            a(f"  v_mfma_f32_16x16x32_bf16 v[{acc}:{acc+3}], v[{96+4*et}:{99+4*et}], {px}, v[{acc}:{acc+3}]")
    a(f"""  s_lshr_b32 s10, s9, 5
  s_and_b32 s11, s9, 31
  s_mul_i32 s10, s10, {2*OSTR*1024}
  s_lshl_b32 s11, s11, 12
  s_add_u32 s10, s10, s11
  s_add_u32 s10, s10, 0x{O_F:x}
  s_add_u32 s22, s6, s10
  s_addc_u32 s23, s7, 0
  s_add_u32 s24, s22, {OSTR*1024}
  s_addc_u32 s25, s23, 0
  s_nop 4""")
    for tt in range(2):
        for wp in range(4):
            b = 16+4*(tt*8+2*wp)
            a(f"""  v_cvt_pk_bf16_f32 v{80+4*wp}, v{b}, v{b+1}
  v_cvt_pk_bf16_f32 v{81+4*wp}, v{b+2}, v{b+3}
  v_cvt_pk_bf16_f32 v{82+4*wp}, v{b+4}, v{b+5}
  v_cvt_pk_bf16_f32 v{83+4*wp}, v{b+6}, v{b+7}
  global_store_dwordx4 v1, v[{80+4*wp}:{83+4*wp}], s[{22+2*tt}:{23+2*tt}] offset:{wp*1024}""")
        a("  s_nop 1")
    a("attn_done:\n  s_endpgm")
    return kd(name, 176, 64, 176)

def resid_epilogue(a, g, s_res, s_dst):
    a(f"""  v_and_b32 v5, 15, v0
  v_bfe_u32 v6, v0, 4, 2              ; g
  s_mul_i32 s10, s20, {g.MT}
  s_mul_i32 s11, s23, {g.mt}
  s_add_u32 s10, s10, s11
  s_lshl_b32 s10, s10, 4              ; token0
  v_add_u32 v5, s10, v5
  v_mul_u32_u24 v5, 0x500, v5
  s_mul_i32 s10, s21, {g.NT}
  s_mul_i32 s11, s24, {g.nt}
  s_add_u32 s10, s10, s11
  s_lshl_b32 s10, s10, 5
  v_lshl_add_u32 v5, v6, 3, v5
  v_add_u32 v5, s10, v5
  s_mov_b32 s54, 0xffff0000""")
    k = 0
    for i in range(g.mt):
        for j in range(g.nt):
            a(f"  global_load_dwordx2 v[{32+2*k}:{33+2*k}], v5, s[{s_res}:{s_res+1}] offset:{j*32}")
            k += 1
        if i+1 < g.mt: a(f"  v_add_u32 v5, {16*1280}, v5")
    a(f"  v_subrev_u32 v5, {16*1280*(g.mt-1)}, v5")
    k = 0; n = g.mt*g.nt
    for i in range(g.mt):
        for j in range(g.nt):
            acc = 4*(i*g.nt+j)
            for r in range(4): a(f"  v_accvgpr_read_b32 v{8+r}, a{acc+r}")
            a(f"""  v_cvt_pk_bf16_f32 v12, v8, v9
  v_cvt_pk_bf16_f32 v13, v10, v11
  v_lshlrev_b32 v8, 16, v12
  v_and_b32 v9, s54, v12
  v_lshlrev_b32 v10, 16, v13
  v_and_b32 v11, s54, v13
  s_waitcnt vmcnt({n-1-k})
  v_lshlrev_b32 v14, 16, v{32+2*k}
  v_and_b32 v15, s54, v{32+2*k}
  v_lshlrev_b32 v16, 16, v{33+2*k}
  v_and_b32 v17, s54, v{33+2*k}
  v_add_f32 v8, v8, v14
  v_add_f32 v9, v9, v15
  v_add_f32 v10, v10, v16
  v_add_f32 v11, v11, v17
  v_cvt_pk_bf16_f32 v{20+2*(k%4)}, v8, v9
  v_cvt_pk_bf16_f32 v{21+2*(k%4)}, v10, v11
  global_store_dwordx2 v5, v[{20+2*(k%4)}:{21+2*(k%4)}], s[{s_dst}:{s_dst+1}] offset:{j*32}""")
            k += 1; n += 1
        if i+1 < g.mt: a(f"  v_add_u32 v5, {16*1280}, v5")

MAP64 = """
  s_and_b32 s10, s2, 7
  s_lshr_b32 s11, s2, 3
  s_and_b32 s12, s11, 1
  s_lshl_b32 s20, s10, 1
  s_add_u32 s20, s20, s12
  s_lshr_b32 s21, s11, 1
  s_mov_b32 s19, 0
"""
MAPSK = """
  s_and_b32 s10, s2, 7
  s_lshr_b32 s11, s2, 3
  s_and_b32 s12, s11, 1
  s_lshl_b32 s20, s10, 1
  s_add_u32 s20, s20, s12
  s_lshr_b32 s13, s11, 1              ; rest
  s_mul_i32 s19, s13, 52429
  s_lshr_b32 s19, s19, 18
  s_mul_i32 s14, s19, 5
  s_sub_u32 s21, s13, s14             ; nb = rest%5
"""
def splitk_reduce(a, g, cnt_base):
    n = g.name; nacc = g.mt*g.nt
    a(f"""  s_mul_i32 s10, s20, 5
  s_add_u32 s10, s10, s21             ; tile
  s_mul_i32 s11, s10, {g.NSPLIT*4*nacc*1024}
  s_mul_i32 s12, s22, {nacc*1024}
  s_add_u32 s11, s11, s12
  s_add_u32 s11, s11, 0x{PART_OFF:x}
  s_add_u32 s14, s6, s11
  s_addc_u32 s15, s7, 0
  s_mul_i32 s12, s19, {4*nacc*1024}
  s_add_u32 s16, s14, s12
  s_addc_u32 s17, s15, 0
  v_mov_b32 v5, v1""")
    for t in range(nacc):
        a(f"  global_store_dwordx4 v5, a[{4*t}:{4*t+3}], s[16:17] offset:{(t%4)*1024} sc1")
        if t % 4 == 3: a("  v_add_u32 v5, 0x1000, v5")
    a(f"""  s_waitcnt vmcnt(0)
  s_barrier
  s_cmp_lg_u32 s22, 0
  s_cbranch_scc1 {n}_skw
  s_lshl_b32 s12, s10, 2
  s_add_u32 s12, s12, 0x{CNT_OFF + cnt_base:x}
  s_add_u32 s16, s6, s12
  s_addc_u32 s17, s7, 0
  v_mov_b32 v8, 0
  v_mov_b32 v9, 1
  s_mov_b64 s[56:57], exec
  s_mov_b64 exec, 1
  global_atomic_add v10, v8, v9, s[16:17] sc0
  s_waitcnt vmcnt(0)
  ds_write_b32 v8, v10
  s_waitcnt lgkmcnt(0)
  s_mov_b64 exec, s[56:57]
{n}_skw:
  s_barrier
  v_mov_b32 v8, 0
  ds_read_b32 v10, v8
  s_waitcnt lgkmcnt(0)
  s_nop 0
  v_readfirstlane_b32 s12, v10
  s_nop 3
  s_cmp_lg_u32 s12, {g.NSPLIT-1}
  s_cbranch_scc1 {n}_done""")
    for t0 in range(0, nacc, 4):
        a(f"  v_add_u32 v5, {t0*1024}, v1")
        for sp in range(g.NSPLIT):
            a(f"  s_add_u32 s16, s14, {sp*4*nacc*1024}\n  s_addc_u32 s17, s15, 0")
            for t in range(4):
                r = 8 + 16*sp + 4*t
                a(f"  global_load_dwordx4 v[{r}:{r+3}], v5, s[16:17] offset:{t*1024} sc1")
        a("  s_waitcnt vmcnt(0)")
        for sp in range(1, g.NSPLIT):
            for i in range(0, 16, 2):
                a(f"  v_pk_add_f32 v[{8+i}:{9+i}], v[{8+i}:{9+i}], v[{8+16*sp+i}:{9+16*sp+i}]")
        for i in range(16):
            a(f"  v_accvgpr_write_b32 a{4*t0+i}, v{8+i}")
    a("  s_nop 1")

def gen_wo(a):
    g = Gemm("wo_kernel", MT=8, NT=8, KT=128, NS=4, WM=2, WN=2, x_off=O_F, w_off=WO_F, nwg=320, KS=1, NSPLIT=4, KSTR=OSTR)
    khead(a, g.name); g.prologue(a, MAPSK)
    g.mainloop(a, True, "")
    splitk_reduce(a, g, 0)
    a(f"  s_add_u32 s14, s6, 0x{H_RM:x}\n  s_addc_u32 s15, s7, 0")
    resid_epilogue(a, g, 4, 14)
    a("wo_kernel_done:\n  s_endpgm")
    return kd(g.name, 80+64, 64, 80), g

def gen_ffn2(a):
    import os
    g = Gemm("ffn2_kernel", MT=8, NT=8, KT=54, NS=int(os.environ.get("F2NS","4")), WM=2, WN=2, x_off=ACT_F, w_off=WD_F, nwg=240, KS=1, NSPLIT=3)
    khead(a, g.name); g.prologue(a, MAPSK)
    g.mainloop(a, True, "")
    splitk_reduce(a, g, 512)
    a(f"  s_add_u32 s14, s6, 0x{H_RM:x}\n  s_addc_u32 s15, s7, 0")
    resid_epilogue(a, g, 14, 8)
    a("ffn2_kernel_done:\n  s_endpgm")
    return kd(g.name, 80+64, 64, 80), g

def gen_ln2(a):
    name = "ln2_kernel"
    khead(a, name)
    a(f"""
  s_cmp_ge_u32 s2, 32
  s_cbranch_scc1 ln2_done
  s_load_dwordx2 s[6:7], s[0:1], 104
  v_lshrrev_b32 v1, 6, v0
  v_and_b32 v2, 63, v0
  s_nop 0
  v_readfirstlane_b32 s22, v1
  s_lshl_b32 s23, s2, 2
  s_nop 2
  s_add_u32 s23, s23, s22
  s_waitcnt lgkmcnt(0)
  s_add_u32 s4, s6, 0x{H_RM:x}
  s_addc_u32 s5, s7, 0""")
    emit_ln(a, "l", 4, 23, 6, HN_F, 2)
    a("ln2_done:\n  s_endpgm")
    return kd(name, 128, 64, 128)

def gen_ffn1(a):
    import os
    g = Gemm("ffn1_kernel", MT=8, NT=8, KT=20, NS=int(os.environ.get("F1NS","4")), WM=2, WN=2, x_off=HN_F, w_off=WGU_F, nwg=432)
    khead(a, g.name)
    g.prologue(a, MAP64)
    g.mainloop(a, True, "")
    a(f"""  s_lshl_b32 s10, s20, 3
  s_lshl_b32 s11, s23, 2
  s_add_u32 s10, s10, s11
  s_mul_i32 s10, s10, 54
  s_lshl_b32 s11, s21, 1
  s_add_u32 s10, s10, s11
  s_add_u32 s10, s10, s24
  s_lshl_b32 s10, s10, 10
  s_add_u32 s10, s10, 0x{ACT_F:x}
  s_add_u32 s14, s6, s10
  s_addc_u32 s15, s7, 0
  s_mov_b32 s54, 0xffff0000""")
    for i in range(4):
        for t in range(2):
            ag = 4*(i*4+t); au = 4*(i*4+2+t)
            for r in range(4): a(f"  v_accvgpr_read_b32 v{8+r}, a{ag+r}\n  v_accvgpr_read_b32 v{12+r}, a{au+r}")
            a(f"""  v_cvt_pk_bf16_f32 v16, v8, v9
  v_cvt_pk_bf16_f32 v17, v10, v11
  v_cvt_pk_bf16_f32 v18, v12, v13
  v_cvt_pk_bf16_f32 v19, v14, v15
  v_lshlrev_b32 v8, 16, v16
  v_and_b32 v9, s54, v16
  v_lshlrev_b32 v10, 16, v17
  v_and_b32 v11, s54, v17
  v_lshlrev_b32 v12, 16, v18
  v_and_b32 v13, s54, v18
  v_lshlrev_b32 v14, 16, v19
  v_and_b32 v15, s54, v19
  v_max_f32 v8, 0, v8
  v_max_f32 v9, 0, v9
  v_max_f32 v10, 0, v10
  v_max_f32 v11, 0, v11
  v_mul_f32 v8, v8, v12
  v_mul_f32 v9, v9, v13
  v_mul_f32 v10, v10, v14
  v_mul_f32 v11, v11, v15
  v_cvt_pk_bf16_f32 v{20+4*(i%2)+2*t}, v8, v9
  v_cvt_pk_bf16_f32 v{21+4*(i%2)+2*t}, v10, v11""")
        a(f"  global_store_dwordx4 v1, v[{20+4*(i%2)}:{23+4*(i%2)}], s[14:15]")
        a(f"  s_add_u32 s14, s14, {54*1024}\n  s_addc_u32 s15, s15, 0")
    a("ffn1_kernel_done:\n  s_endpgm")
    return kd(g.name, g.vgprs()+64, 64, g.vgprs()), g
```

```python
from common import *
from gen import A, kd, khead

L_WV   = 0
L_WO   = 81920
L_MEM  = 114688
L_SC   = 124928
L_O    = 137216
L_KV   = 141312
L_END  = 157696

class LK:
    def __init__(s, a): s.a = a; s.n = 0; s.done = 0
    def op(s, txt): s.a("  " + txt); s.n += 1; return s.n
    def wait(s, idn):
        if idn <= s.done: return
        c = s.n - idn
        s.a(f"  s_waitcnt lgkmcnt({min(c,15)})")
        s.done = idn if c <= 15 else s.n - 15
    def waitall(s):
        s.a("  s_waitcnt lgkmcnt(0)"); s.done = s.n

def wreg(n):
    return f"a[{4*n}:{4*n+3}]" if n < 64 else f"v[{112+4*(n-64)}:{112+4*(n-64)+3}]"

DBG_OFF = 0x9000000
def gen_chain(a, RS=10, CS=40, CS2=2, LIMIT=30000, DIAG=False, EMU=True, LOC=False, RC=15, FORCE_SLOW=False, LD=10):
    PSC = '' if LOC else ' sc1'
    name = "chain_kernel"
    def cyc(k):
        if DIAG: a(f"  s_memtime s[{72+2*k}:{73+2*k}]")
    def cycdump():
        if not DIAG: return
        a(f"""  s_lshl_b32 s64, s49, 8
  s_add_u32 s64, s64, s2
  s_lshl_b32 s64, s64, 2
  s_add_u32 s64, s64, s8
  s_lshl_b32 s64, s64, 6
  s_add_u32 s64, s64, 0x{DBG_OFF + 0x1000000:x}
  s_add_u32 s66, s6, s64
  s_addc_u32 s67, s7, 0
  s_waitcnt lgkmcnt(0)
  v_mov_b32 v97, 0
  s_mov_b64 s[68:69], exec
  s_mov_b64 exec, 1""")
        for k in range(10):
            a(f"  v_mov_b32 v110, s{72+2*k}\n  global_store_dword v97, v110, s[66:67] offset:{4*k}\n  s_nop 1")
        a("  s_mov_b64 exec, s[68:69]")
    def stamp(k, extra=None):
        if not DIAG: return
        a(f"""  s_memrealtime s[62:63]
  s_lshl_b32 s64, s49, 8
  s_add_u32 s64, s64, s2
  s_lshl_b32 s64, s64, 2
  s_add_u32 s64, s64, s8
  s_lshl_b32 s64, s64, 6
  s_add_u32 s64, s64, 0x{DBG_OFF + 0:x}
  s_add_u32 s66, s6, s64
  s_addc_u32 s67, s7, 0
  s_waitcnt lgkmcnt(0)
  v_mov_b32 v110, s62
  v_mov_b32 v111, {'s60' if extra else 's63'}
  v_mov_b32 v97, 0
  s_mov_b64 s[68:69], exec
  s_mov_b64 exec, 1
  global_store_dwordx2 v97, v[110:111], s[66:67] offset:{8*k}
  s_mov_b64 exec, s[68:69]""")
    khead(a, name)
    a(f"""
  s_cmp_ge_u32 s2, 256
  s_cbranch_scc1 chain_done
  s_load_dwordx2 s[4:5], s[0:1], 8       ; mem0
  s_load_dwordx2 s[6:7], s[0:1], 104     ; ws
  v_lshrrev_b32 v2, 6, v0
  v_and_b32 v3, 63, v0                   ; lane
  s_nop 0
  v_readfirstlane_b32 s8, v2             ; wave
  v_lshlrev_b32 v1, 4, v3                ; lane*16
  v_and_b32 v4, 15, v3                   ; m
  v_lshrrev_b32 v5, 4, v3                ; g
  s_load_dwordx2 s[70:71], s[0:1], 96
  s_getreg_b32 s61, hwreg(HW_REG_XCC_ID)
  s_and_b32 s61, s61, 15
  s_waitcnt lgkmcnt(0)
  s_cmp_lg_u32 s8, 0
  s_cbranch_scc1 chain_tk_wait
  s_min_u32 s11, s61, 8
  s_lshl_b32 s11, s11, 2
  v_mov_b32 v16, s11
  v_mov_b32 v17, 1
  v_mov_b32 v19, 64
  s_mov_b64 s[56:57], exec
  s_mov_b64 exec, 1
  global_atomic_add v18, v16, v17, s[70:71] sc0
  s_waitcnt vmcnt(0)
  global_atomic_add v19, v17, s[70:71]
  v_mov_b32 v16, {L_O}
  ds_write_b32 v16, v18
  s_waitcnt vmcnt(0) lgkmcnt(0)
  s_mov_b64 exec, s[56:57]
chain_tk_wait:
  s_barrier
  v_mov_b32 v16, {L_O}
  ds_read_b32 v18, v16
  s_waitcnt lgkmcnt(0)
  s_nop 0
  v_readfirstlane_b32 s9, v18            ; h = ticket
  s_mov_b32 s10, s61                     ; j = xcc
  s_mov_b32 s65, 0
  s_mov_b32 s51, 1
  s_cmp_lt_u32 s9, 32
  s_cselect_b32 s11, 1, 0
  s_cmp_lt_u32 s10, 8
  s_cselect_b32 s11, s11, 0
  s_cmp_eq_u32 s11, 1
  s_cbranch_scc1 chain_setup
chain_slow:
  s_mov_b32 s11, 0x33333334
  s_mul_hi_u32 s9, s2, s11
  s_mul_i32 s11, s9, 5
  s_sub_u32 s10, s2, s11                 ; j = wg%5
  s_mov_b32 s51, 0
  s_cmp_lt_u32 s2, 160
  s_cbranch_scc1 chain_setup
  s_sub_u32 s11, s2, 160
  s_lshr_b32 s10, s11, 5
  s_add_u32 s10, s10, 5
  s_and_b32 s9, s11, 31
chain_setup:
  s_cmp_ge_u32 s10, 5
  s_cbranch_scc1 chain_verify
  s_lshl_b32 s11, s9, 3
  s_lshl_b32 s12, s8, 1
  s_add_u32 s11, s11, s12
  s_mul_i32 s11, s11, 20480
  s_add_u32 s11, s11, 0x{WQKV_F:x}
  s_add_u32 s14, s6, s11
  s_addc_u32 s15, s7, 0                  ; q t0
  s_add_u32 s16, s14, 20480
  s_addc_u32 s17, s15, 0                 ; q t1
  s_add_u32 s18, s14, {256*20480}
  s_addc_u32 s19, s15, 0                 ; k t0
  s_add_u32 s20, s18, 20480
  s_addc_u32 s21, s19, 0
  s_add_u32 s22, s18, {256*20480}
  s_addc_u32 s23, s19, 0                 ; v t0
  s_add_u32 s24, s22, 20480
  s_addc_u32 s25, s23, 0
  v_mov_b32 v6, v1
""")
    for kt in range(20):
        for q in range(4):
            a(f"  global_load_dwordx4 {wreg(kt*4+q)}, v6, s[{14+2*q}:{15+2*q}]")
        if kt < 10:
            for t in range(2):
                a(f"  global_load_dwordx4 {wreg(80+kt*2+t)}, v6, s[{22+2*t}:{23+2*t}]")
        else:
            for t in range(2):
                a(f"""  s_mul_i32 s26, s8, 20480
  s_add_u32 m0, s26, {L_WV + ((kt-10)*2+t)*1024}
  s_nop 0
  global_load_lds_dwordx4 v6, s[{22+2*t}:{23+2*t}]""")
        a("  v_add_u32 v6, 0x400, v6")
    a(f"""
  s_mul_i32 s11, s10, {8*OSTR}
  s_lshl_b32 s12, s9, 2
  s_add_u32 s11, s11, s12
  s_add_u32 s11, s11, s8
  s_lshl_b32 s11, s11, 10
  s_add_u32 s11, s11, 0x{WO_F:x}
  s_add_u32 s26, s6, s11
  s_addc_u32 s27, s7, 0
  s_lshl_b32 s12, s8, 10""")
    for c in range(8):
        a(f"""  s_add_u32 m0, s12, {L_WO + c*4096}
  s_nop 0
  global_load_lds_dwordx4 v1, s[26:27]
  s_add_u32 s26, s26, {OSTR*1024}
  s_addc_u32 s27, s27, 0""")
    a(f"""
  s_mul_i32 s11, s8, 160
  v_add_u32 v8, s11, v3                  ; c0
  v_lshlrev_b32 v9, 4, v8
  v_add_u32 v10, {L_MEM}, v9
  v_and_b32 v11, 7, v8
  v_mul_u32_u24 v11, 0x500, v11
  v_lshrrev_b32 v12, 5, v8
  v_lshl_add_u32 v11, v12, 6, v11
  v_bfe_u32 v12, v8, 3, 2
  v_lshl_add_u32 v11, v12, 4, v11
  v_lshrrev_b32 v12, 1, v5
  v_lshlrev_b32 v12, 13, v12
  v_lshrrev_b32 v13, 2, v4
  v_lshl_add_u32 v12, v13, 12, v12
  v_and_b32 v13, 3, v4
  v_lshl_add_u32 v12, v13, 5, v12
  v_and_b32 v13, 1, v5
  v_lshl_add_u32 v12, v13, 4, v12
  v_lshlrev_b32 v13, 3, v3               ; lane*8
  s_lshl_b32 s11, s10, 17
  s_lshl_b32 s12, s9, 7
  s_add_u32 s11, s11, s12
  s_lshl_b32 s12, s8, 15
  s_add_u32 s11, s11, s12
  s_add_u32 s11, s11, 0x{P_OFF:x}
  s_add_u32 s28, s6, s11
  s_addc_u32 s29, s7, 0
  s_lshl_b32 s11, s10, 5
  s_add_u32 s11, s11, s9                 ; r = 32*j + h
  s_lshl_b32 s12, s11, 12
  s_add_u32 s12, s12, 0x{P_OFF:x}
  s_add_u32 s30, s6, s12
  s_addc_u32 s31, s7, 0
  s_lshl_b32 s12, s11, 6
  s_add_u32 s12, s12, 0x{MB_OFF + 10240:x}
  s_add_u32 s32, s6, s12
  s_addc_u32 s33, s7, 0
  s_mul_i32 s12, s10, {MB_STRIDE}
  s_add_u32 s12, s12, 0x{MB_OFF + 10240:x}
  s_add_u32 s34, s6, s12
  s_addc_u32 s35, s7, 0
  v_lshrrev_b32 v2, 3, v3
  v_mul_u32_u24 v2, {MB_STRIDE}, v2
  v_and_b32 v7, 7, v3
  v_lshl_add_u32 v2, v7, 3, v2
  s_lshl_b32 s12, s10, 7
  s_add_u32 s12, s12, 0x{LF_OFF:x}
  s_add_u32 s92, s6, s12
  s_addc_u32 s93, s7, 0
  s_lshl_b32 s94, s9, 2
  s_mov_b32 s36, 1
  s_cmp_eq_u32 s8, 3
  s_cselect_b32 s36, s36, 0
  s_lshl_b32 s11, s9, 13
  s_lshl_b32 s12, s8, 11
  s_add_u32 s11, s11, s12
  s_add_u32 s12, s11, 0x{K_F:x}
  s_add_u32 s38, s6, s12
  s_addc_u32 s39, s7, 0
  s_add_u32 s12, s11, 0x{V_F:x}
  s_add_u32 s40, s6, s12
  s_addc_u32 s41, s7, 0
  s_lshl_b32 s11, s9, 12
  s_lshl_b32 s12, s8, 10
  s_add_u32 s11, s11, s12
  s_add_u32 s12, s11, 0x{KM_F:x}
  s_add_u32 s42, s6, s12
  s_addc_u32 s43, s7, 0
  s_add_u32 s12, s11, 0x{VM_F:x}
  s_add_u32 s44, s6, s12
  s_addc_u32 s45, s7, 0
  v_lshrrev_b32 v7, 3, v4
  v_mul_u32_u24 v7, 6144, v7
  v_and_b32 v14, 7, v4
  v_lshl_add_u32 v7, v14, 4, v7
  v_lshl_add_u32 v7, v5, 8, v7
  v_add_u32 v7, {L_SC}, v7
  v_and_b32 v14, 7, v4
  v_lshlrev_b32 v14, 4, v14
  v_lshl_add_u32 v14, v5, 7, v14
  v_add_u32 v14, {L_MEM}, v14
  s_mul_i32 s11, s8, 20480
  v_add_u32 v15, s11, v1
  s_mul_i32 s46, s8, 3072
  s_add_u32 s46, s46, {L_SC}
  s_lshl_b32 s47, s8, 10
  s_add_u32 s47, s47, {L_O}
  s_lshl_b32 s48, s8, 13
  s_add_u32 s48, s48, {L_WO}
  s_mov_b32 s49, 0                       ; step
  s_mov_b32 s50, 0
  s_mov_b32 s52, 0x3db504f3              ; scale
  s_mov_b32 s53, {0x3fb8aa3b if EMU else 0x3e0293ee}
  s_mov_b32 s54, 0xffff0000
  s_lshl_b32 s95, s8, 12
  s_add_u32 s95, s95, {L_KV}
  v_add_u32 v6, s95, v1
  s_mov_b32 m0, s95
  s_nop 0
  global_load_lds_dwordx4 v1, s[38:39]
  global_load_lds_dwordx4 v1, s[38:39] offset:1024
  s_add_u32 m0, s95, 2048
  s_nop 0
  global_load_lds_dwordx4 v1, s[40:41]
  global_load_lds_dwordx4 v1, s[40:41] offset:1024
  v_mov_b32 v24, 0
  v_mov_b32 v25, 0
  v_mov_b32 v26, 0
  v_mov_b32 v27, 0
  global_load_dwordx4 v[16:19], v11, s[4:5]
  global_load_dwordx4 v[20:23], v11, s[4:5] offset:128
  v_cmp_gt_u32 vcc, 32, v3
  s_and_saveexec_b64 s[56:57], vcc
  global_load_dwordx4 v[24:27], v11, s[4:5] offset:256
  s_mov_b64 exec, s[56:57]
chain_verify:
  s_waitcnt vmcnt(0) lgkmcnt(0)
  s_cmp_eq_u32 s65, 1
  s_cbranch_scc1 chain_verified
  s_mov_b32 s60, 0
  v_lshlrev_b32 v28, 2, v3
  s_cmp_lg_u32 s8, 0
  s_cbranch_scc1 chain_vwait
chain_vpoll:
  s_sleep 4
  v_mov_b32 v29, 32
  v_cmp_gt_u32 vcc, 17, v3
  s_and_saveexec_b64 s[56:57], vcc
  global_load_dword v29, v28, s[70:71] sc1
  s_mov_b64 exec, s[56:57]
  s_waitcnt vmcnt(0)
  v_readlane_b32 s11, v29, 16
  s_add_u32 s60, s60, 1
  s_cmp_gt_u32 s60, {LIMIT}
  s_cbranch_scc1 chain_vdone
  s_cmp_lt_u32 s11, 256
  s_cbranch_scc1 chain_vpoll
chain_vdone:
  v_mov_b32 v29, {33 if FORCE_SLOW else 32}
  v_cmp_gt_u32 vcc, 8, v3
  s_and_saveexec_b64 s[56:57], vcc
  global_load_dword v29, v28, s[70:71] sc1
  s_mov_b64 exec, s[56:57]
  s_waitcnt vmcnt(0)
  v_cmp_ne_u32 vcc, 32, v29
  s_mov_b32 s11, 0
  s_cbranch_vccz chain_vok
  s_mov_b32 s11, 1
chain_vok:
  v_mov_b32 v29, s11
  v_mov_b32 v30, {L_O + 64}
  ds_write_b32 v30, v29
  s_waitcnt lgkmcnt(0)
chain_vwait:
  s_barrier
  v_mov_b32 v30, {L_O + 64}
  ds_read_b32 v29, v30
  s_waitcnt lgkmcnt(0)
  s_nop 0
  v_readfirstlane_b32 s11, v29
  s_mov_b32 s65, 1
  s_nop 2
  s_cmp_eq_u32 s11, 0
  s_cbranch_scc1 chain_verified
  s_barrier
  s_branch chain_slow
chain_verified:
  s_barrier
  s_cmp_ge_u32 s10, 5
  s_cbranch_scc1 chain_bulk
chain_step:
""")
    stamp(0)
    a("""
  ds_read_b128 v[72:75], v6
  ds_read_b128 v[76:79], v6 offset:1024
  ds_read_b128 v[80:83], v6 offset:2048
  ds_read_b128 v[84:87], v6 offset:3072
  ds_write_b128 v10, v[16:19]
  ds_write_b128 v10, v[20:23] offset:1024
  v_cmp_gt_u32 vcc, 32, v3
  s_and_saveexec_b64 s[56:57], vcc
  ds_write_b128 v10, v[24:27] offset:2048
  s_mov_b64 exec, s[56:57]
  s_add_u32 s38, s38, 0x40000
  s_addc_u32 s39, s39, 0
  s_add_u32 s40, s40, 0x40000
  s_addc_u32 s41, s41, 0
  s_waitcnt lgkmcnt(0)
  s_barrier
  s_cmp_eq_u32 s49, 63
  s_cbranch_scc1 chain_nokv
  s_mov_b32 m0, s95
  s_nop 0
  global_load_lds_dwordx4 v1, s[38:39]
  global_load_lds_dwordx4 v1, s[38:39] offset:1024
  s_add_u32 m0, s95, 2048
  s_nop 0
  global_load_lds_dwordx4 v1, s[40:41]
  global_load_lds_dwordx4 v1, s[40:41] offset:1024
chain_nokv:
""")
    cyc(0)
    lk = LK(a)
    MB = lambda b: f"v[{16+4*b}:{19+4*b}]"
    QA = ["v[48:51]", "v[52:55]", "v[56:59]", "v[60:63]"]
    VA = ["v[64:67]", "v[68:71]"]
    WB = lambda b, t: f"v[{32+8*b+4*t}:{35+8*b+4*t}]"
    ids = {}; wid = {}
    for kt in range(3): ids[kt] = lk.op(f"ds_read_b128 {MB(kt%4)}, v14 offset:{kt*512}")
    for kt in range(20):
        if kt+3 < 20: ids[kt+3] = lk.op(f"ds_read_b128 {MB((kt+3)%4)}, v14 offset:{(kt+3)*512}")
        if kt in (8, 9):
            for t in range(2): wid[(kt+2,t)] = lk.op(f"ds_read_b128 {WB((kt+2)%2,t)}, v15 offset:{((kt+2-10)*2+t)*1024}")
        lk.wait(ids[kt])
        for q in range(4):
            c = QA[q] if kt > 0 else "0"
            a(f"  v_mfma_f32_16x16x32_bf16 {QA[q]}, {wreg(kt*4+q)}, {MB(kt%4)}, {c}")
        if kt >= 10:
            lk.wait(wid[(kt,1)])
            for t in range(2):
                c = VA[t] if kt > 10 else "0"
                a(f"  v_mfma_f32_16x16x32_bf16 {VA[t]}, {MB(kt%4)}, {WB(kt%2,t)}, {c}")
            if kt+2 < 20:
                for t in range(2): wid[(kt+2,t)] = lk.op(f"ds_read_b128 {WB((kt+2)%2,t)}, v15 offset:{((kt+2-10)*2+t)*1024}")
        if kt >= 17:
            pass
    cyc(1)
    ids2 = {}
    MB2 = lambda kt: f"v[{32+4*(kt%4)}:{35+4*(kt%4)}]"
    def issue2(kt):
        if kt >= 10: return
        ids2[kt] = lk.op(f"ds_read_b128 {MB2(kt)}, v14 offset:{kt*512}")
    state = {'k': 0}
    def fill(n=1):
        for _ in range(n):
            k = state['k']
            if k >= 20: return
            kt, t = k//2, k%2
            lk.wait(ids2[kt])
            a(f"  v_mfma_f32_16x16x32_bf16 {VA[t]}, {MB2(kt)}, {wreg(80+kt*2+t)}, {VA[t]}")
            if t == 1: issue2(kt+3)
            state['k'] += 1
    def crit(txt, every=4):
        n = 0
        for ln in txt.strip('\n').split('\n'):
            a(ln); n += 1
            if n % every == 0: fill(1)
    issue2(0); issue2(1); issue2(2)
    a("  s_nop 4")
    a("""  v_cvt_pk_bf16_f32 v88, v48, v49
  v_cvt_pk_bf16_f32 v89, v50, v51
  v_cvt_pk_bf16_f32 v90, v52, v53
  v_cvt_pk_bf16_f32 v91, v54, v55
  v_cvt_pk_bf16_f32 v92, v56, v57
  v_cvt_pk_bf16_f32 v93, v58, v59
  v_cvt_pk_bf16_f32 v94, v60, v61
  v_cvt_pk_bf16_f32 v95, v62, v63
  s_cmp_eq_u32 s49, 63
  s_cbranch_scc1 chain_last
  v_mfma_f32_16x16x32_bf16 v[48:51], v[92:95], v[88:91], 0
  v_mfma_f32_16x16x32_bf16 v[52:55], v[72:75], v[88:91], 0
  v_mfma_f32_16x16x32_bf16 v[56:59], v[76:79], v[88:91], 0""")
    fill(2)
    a(f"""  v_add_u32 v96, s46, v1
  v_add_u32 v97, {L_SC}, v1
  v_mov_b32 v98, s52
  v_mov_b32 v99, s52
  s_nop 1""")
    lk.op("ds_write_b128 v96, v[48:51]")
    lk.op("ds_write_b128 v96, v[52:55] offset:1024")
    lk.op("ds_write_b128 v96, v[56:59] offset:2048")
    fill(2)
    cyc(2)
    lk.waitall()
    a("  s_barrier")
    cyc(3)
    r0 = [lk.op(f"ds_read_b128 v[{48+4*t}:{51+4*t}], v7 offset:{t*1024}") for t in range(3)]
    r1 = [lk.op(f"ds_read_b128 v[{100+4*t}:{103+4*t}], v7 offset:{3072+t*1024}") for t in range(3)]
    fill(3)
    lk.wait(r1[2])
    crit("\n".join(f"  v_pk_add_f32 v[{48+i}:{49+i}], v[{48+i}:{49+i}], v[{100+i}:{101+i}]" for i in range(0, 12, 2)), 3)
    crit("\n".join(f"  v_add_f32_dpp v{48+i}, v{48+i}, v{48+i} row_ror:8 row_mask:0xf bank_mask:0xf" for i in range(12)), 4)
    cyc(4)
    t = ""
    if EMU:
        for i in range(0, 12, 2): t += f"  v_cvt_pk_bf16_f32 v{100+i//2}, v{48+i}, v{49+i}\n"
        for i in range(0, 12, 2): t += f"  v_lshlrev_b32 v{48+i}, 16, v{100+i//2}\n  v_and_b32 v{49+i}, s54, v{100+i//2}\n"
        for i in range(0, 12, 2): t += f"  v_pk_mul_f32 v[{48+i}:{49+i}], v[{48+i}:{49+i}], v[98:99]\n"
        for i in range(0, 12, 2): t += f"  v_cvt_pk_bf16_f32 v{100+i//2}, v{48+i}, v{49+i}\n"
        for i in range(0, 12, 2): t += f"  v_lshlrev_b32 v{48+i}, 16, v{100+i//2}\n  v_and_b32 v{49+i}, s54, v{100+i//2}\n"
    t += """  v_mov_b32 v101, 0xff800000
  v_cmp_lt_u32 vcc, 31, v3
  v_max3_f32 v100, v52, v53, v54
  v_max3_f32 v102, v55, v56, v57
  v_cndmask_b32 v48, v48, v101, vcc
  v_cndmask_b32 v49, v49, v101, vcc
  v_cndmask_b32 v50, v50, v101, vcc
  v_cndmask_b32 v51, v51, v101, vcc
  v_max3_f32 v100, v100, v58, v59
  v_max3_f32 v102, v102, v48, v49
  v_max3_f32 v100, v100, v50, v51
  v_max_f32 v100, v100, v102
  s_nop 0
  v_mov_b32 v101, v100
  s_nop 1
  v_permlane16_swap_b32 v100, v101
  v_max_f32 v100, v100, v101
  s_nop 0
  v_mov_b32 v101, v100
  s_nop 1
  v_permlane32_swap_b32 v100, v101
  v_max_f32 v100, v100, v101
  v_mul_f32 v100, s53, v100
  v_mov_b32 v102, s53
"""
    for i in range(12): t += f"  v_fma_f32 v{48+i}, v{48+i}, v102, -v100\n"
    for i in range(12): t += f"  v_exp_f32 v{48+i}, v{48+i}\n"
    t += """  v_pk_add_f32 v[100:101], v[48:49], v[50:51]
  v_pk_add_f32 v[102:103], v[52:53], v[54:55]
  v_pk_add_f32 v[104:105], v[56:57], v[58:59]
  v_pk_add_f32 v[100:101], v[100:101], v[102:103]
  v_pk_add_f32 v[100:101], v[100:101], v[104:105]
  v_add_f32 v100, v100, v101
  s_nop 0
  v_mov_b32 v101, v100
  s_nop 1
  v_permlane16_swap_b32 v100, v101
  v_add_f32 v100, v100, v101
  s_nop 0
  v_mov_b32 v101, v100
  s_nop 1
  v_permlane32_swap_b32 v100, v101
  v_add_f32 v100, v100, v101
  v_rcp_f32 v102, v100
  s_nop 0
  v_fma_f32 v103, -v100, v102, 1.0
  v_fma_f32 v102, v103, v102, v102
  v_mov_b32 v103, v102
"""
    crit(t, 4)
    cyc(5)
    fill(40)
    cyc(6)
    t = ""
    for i in range(0, 12, 2): t += f"  v_pk_mul_f32 v[{48+i}:{49+i}], v[{48+i}:{49+i}], v[102:103]\n"
    a(t)
    a("""  v_cvt_pk_bf16_f32 v100, v48, v49
  v_cvt_pk_bf16_f32 v101, v50, v51
  v_cvt_pk_bf16_f32 v104, v52, v53
  v_cvt_pk_bf16_f32 v105, v54, v55
  v_cvt_pk_bf16_f32 v106, v56, v57
  v_cvt_pk_bf16_f32 v107, v58, v59
  v_add_u32 v108, s47, v1
  v_add_u32 v109, s48, v1
  ds_read_b128 v[16:19], v109
  ds_read_b128 v[20:23], v109 offset:1024
  v_mfma_f32_16x16x32_bf16 v[48:51], v[80:83], v[104:107], 0
  v_mfma_f32_16x16x32_bf16 v[52:55], v[84:87], v[104:107], 0
  ds_read_b128 v[24:27], v109 offset:2048
  ds_read_b128 v[28:31], v109 offset:3072
  v_cvt_pk_bf16_f32 v96, v64, v65
  v_cvt_pk_bf16_f32 v97, v66, v67
  v_cvt_pk_bf16_f32 v98, v68, v69
  v_cvt_pk_bf16_f32 v99, v70, v71
  s_nop 3
  v_mfma_f32_16x16x16_bf16 v[48:51], v[96:97], v[100:101], v[48:51]
  v_mfma_f32_16x16x16_bf16 v[52:55], v[98:99], v[100:101], v[52:55]
  s_nop 7
  v_cvt_pk_bf16_f32 v56, v48, v49
  v_cvt_pk_bf16_f32 v57, v50, v51
  v_cvt_pk_bf16_f32 v58, v52, v53
  v_cvt_pk_bf16_f32 v59, v54, v55
  ds_write_b128 v108, v[56:59]
""")
    cyc(7)
    a("""  s_waitcnt lgkmcnt(0)
  s_barrier
""")
    cyc(8)
    a(f"""  v_add_u32 v108, {L_O}, v1
  ds_read_b128 v[32:35], v108
  ds_read_b128 v[36:39], v108 offset:1024
  ds_read_b128 v[40:43], v108 offset:2048
  ds_read_b128 v[44:47], v108 offset:3072
  ds_read_b128 v[48:51], v109 offset:4096
  ds_read_b128 v[52:55], v109 offset:5120
  ds_read_b128 v[56:59], v109 offset:6144
  ds_read_b128 v[60:63], v109 offset:7168
  s_waitcnt lgkmcnt(4)
  v_mfma_f32_16x16x32_bf16 v[100:103], v[16:19], v[32:35], 0
  v_mfma_f32_16x16x32_bf16 v[100:103], v[20:23], v[36:39], v[100:103]
  v_mfma_f32_16x16x32_bf16 v[100:103], v[24:27], v[40:43], v[100:103]
  v_mfma_f32_16x16x32_bf16 v[100:103], v[28:31], v[44:47], v[100:103]
  s_waitcnt lgkmcnt(0)
  v_mfma_f32_16x16x32_bf16 v[104:107], v[48:51], v[32:35], 0
  v_mfma_f32_16x16x32_bf16 v[104:107], v[52:55], v[36:39], v[104:107]
  v_mfma_f32_16x16x32_bf16 v[104:107], v[56:59], v[40:43], v[104:107]
  v_mfma_f32_16x16x32_bf16 v[104:107], v[60:63], v[44:47], v[104:107]
chain_wo1:
  s_add_u32 s58, s28, s50
  s_addc_u32 s59, s29, 0
  v_cmp_gt_u32 vcc, 8, v4
  s_and_saveexec_b64 s[56:57], vcc
  s_nop 7
  s_add_u32 s96, s58, 16384
  s_addc_u32 s97, s59, 0
  s_cmp_eq_u32 s51, 0
  s_cbranch_scc1 chain_st_slow
  global_store_dwordx4 v12, v[100:103], s[58:59]
  global_store_dwordx4 v12, v[104:107], s[96:97]
  s_branch chain_st1
chain_st_slow:
  global_store_dwordx4 v12, v[100:103], s[58:59] sc1
  global_store_dwordx4 v12, v[104:107], s[96:97] sc1
chain_st1:
  s_mov_b64 exec, s[56:57]
""")
    cyc(9)
    stamp(3)
    cycdump()
    a(f"""
  s_cmp_lg_u32 s10, 0
  s_cbranch_scc1 chain_nokm
  global_store_dwordx4 v1, v[92:95], s[42:43]
  global_store_dwordx2 v13, v[96:97], s[44:45]
  global_store_dwordx2 v13, v[98:99], s[44:45] offset:512
chain_nokm:
  s_add_u32 s42, s42, 0x20000
  s_addc_u32 s43, s43, 0
  s_add_u32 s44, s44, 0x20000
  s_addc_u32 s45, s45, 0
  ; ---- reducer
  s_cmp_eq_u32 s36, 0
  s_cbranch_scc1 chain_cons
  s_add_u32 s58, s30, s50
  s_addc_u32 s59, s31, 0
  s_mov_b32 s60, 0
  s_cmp_eq_u32 s51, 1
  s_cbranch_scc1 chain_rpoll
  s_sleep 16
chain_rpoll:
  s_sleep {RS}
  global_load_dwordx4 v[16:19], v1, s[58:59] sc1
  global_load_dwordx4 v[20:23], v1, s[58:59] offset:1024 sc1
  global_load_dwordx4 v[24:27], v1, s[58:59] offset:2048 sc1
  global_load_dwordx4 v[28:31], v1, s[58:59] offset:3072 sc1
  s_waitcnt vmcnt(0)
  v_max3_u32 v32, v16, v17, v18
  v_max3_u32 v33, v19, v20, v21
  v_max3_u32 v34, v22, v23, v24
  v_max3_u32 v35, v25, v26, v27
  v_max3_u32 v32, v32, v28, v29
  v_max3_u32 v33, v33, v30, v31
  v_max3_u32 v32, v32, v34, v35
  v_max_u32 v32, v32, v33
  v_cmp_eq_u32 vcc, -1, v32
  s_add_u32 s60, s60, 1
  s_cmp_gt_u32 s60, {LIMIT}
  s_cbranch_scc1 chain_rdone
  s_cbranch_vccnz chain_rpoll
chain_rdone:
  v_add_f32 v16, v16, v20
  v_add_f32 v17, v17, v21
  v_add_f32 v18, v18, v22
  v_add_f32 v19, v19, v23
  v_add_f32 v24, v24, v28
  v_add_f32 v25, v25, v29
  v_add_f32 v26, v26, v30
  v_add_f32 v27, v27, v31
  v_add_f32 v16, v16, v24
  v_add_f32 v17, v17, v25
  v_add_f32 v18, v18, v26
  v_add_f32 v19, v19, v27
  s_nop 1
  v_add_f32_dpp v16, v16, v16 row_ror:8 row_mask:0xf bank_mask:0xf
  v_add_f32_dpp v17, v17, v17 row_ror:8 row_mask:0xf bank_mask:0xf
  v_add_f32_dpp v18, v18, v18 row_ror:8 row_mask:0xf bank_mask:0xf
  v_add_f32_dpp v19, v19, v19 row_ror:8 row_mask:0xf bank_mask:0xf
  v_mov_b32 v20, v16
  v_mov_b32 v21, v17
  v_mov_b32 v22, v18
  v_mov_b32 v23, v19
  s_nop 1
  v_permlane16_swap_b32 v16, v20
  v_permlane16_swap_b32 v17, v21
  v_permlane16_swap_b32 v18, v22
  v_permlane16_swap_b32 v19, v23
  v_add_f32 v16, v16, v20
  v_add_f32 v17, v17, v21
  v_add_f32 v18, v18, v22
  v_add_f32 v19, v19, v23
  v_mov_b32 v20, v16
  v_mov_b32 v21, v17
  v_mov_b32 v22, v18
  v_mov_b32 v23, v19
  s_nop 1
  v_permlane32_swap_b32 v16, v20
  v_permlane32_swap_b32 v17, v21
  v_permlane32_swap_b32 v18, v22
  v_permlane32_swap_b32 v19, v23
  v_add_f32 v16, v16, v20
  v_add_f32 v17, v17, v21
  v_add_f32 v18, v18, v22
  v_add_f32 v19, v19, v23
  v_cvt_pk_bf16_f32 v20, v16, v17
  v_cvt_pk_bf16_f32 v21, v18, v19
  global_store_dwordx2 v2, v[20:21], s[32:33] sc1
  v_mov_b32 v24, -1
  v_mov_b32 v25, -1
  v_mov_b32 v26, -1
  v_mov_b32 v27, -1
  s_cmp_eq_u32 s51, 0
  s_cbranch_scc1 chain_rc_slow
  v_mov_b32 v28, s94
  v_mov_b32 v29, 1
  s_mov_b64 s[56:57], exec
  s_mov_b64 exec, 1
  global_store_dword v28, v29, s[92:93]
  s_mov_b64 exec, s[56:57]
  global_store_dwordx4 v1, v[24:27], s[58:59]
  global_store_dwordx4 v1, v[24:27], s[58:59] offset:1024
  global_store_dwordx4 v1, v[24:27], s[58:59] offset:2048
  global_store_dwordx4 v1, v[24:27], s[58:59] offset:3072
  s_branch chain_rc_done
chain_rc_slow:
  global_store_dwordx4 v1, v[24:27], s[58:59] sc1
  global_store_dwordx4 v1, v[24:27], s[58:59] offset:1024 sc1
  global_store_dwordx4 v1, v[24:27], s[58:59] offset:2048 sc1
  global_store_dwordx4 v1, v[24:27], s[58:59] offset:3072 sc1
chain_rc_done:
  s_add_u32 s32, s32, 10240
  s_addc_u32 s33, s33, 0
""")
    stamp(4, True)
    a(f"""
  s_mov_b32 s60, 0
  s_cmp_eq_u32 s51, 1
  s_cbranch_scc1 chain_lf
  s_sleep 22
  s_branch chain_cpoll2
chain_cons:
  s_mov_b32 s60, 0
  s_cmp_eq_u32 s51, 1
  s_cbranch_scc1 chain_lf0
  s_sleep 58
  s_branch chain_cpoll2
chain_lf0:
  s_sleep {CS}
chain_lf:
  v_lshlrev_b32 v28, 2, v3
chain_lfpoll:
  s_sleep 1
  v_mov_b32 v29, 0
  v_cmp_gt_u32 vcc, 32, v3
  s_and_saveexec_b64 s[56:57], vcc
  global_load_dword v29, v28, s[92:93] sc1
  s_mov_b64 exec, s[56:57]
  s_waitcnt vmcnt(0)
  v_cmp_eq_u32 vcc, -1, v29
  s_add_u32 s60, s60, 1
  s_cmp_gt_u32 s60, {LIMIT}
  s_cbranch_scc1 chain_lfdone
  s_cbranch_vccnz chain_lfpoll
chain_lfdone:
  s_mov_b32 s60, 0
  s_sleep {LD}
chain_cpoll2:
  v_mov_b32 v24, 0
  v_mov_b32 v25, 0
  v_mov_b32 v26, 0
  v_mov_b32 v27, 0
chain_cpoll:
  s_sleep {CS2}
  global_load_dwordx4 v[16:19], v9, s[34:35] sc1
  global_load_dwordx4 v[20:23], v9, s[34:35] offset:1024 sc1
  v_cmp_gt_u32 vcc, 32, v3
  s_and_saveexec_b64 s[56:57], vcc
  global_load_dwordx4 v[24:27], v9, s[34:35] offset:2048 sc1
  s_mov_b64 exec, s[56:57]
  s_waitcnt vmcnt(0)
  v_max3_u32 v32, v16, v17, v18
  v_max3_u32 v33, v19, v20, v21
  v_max3_u32 v34, v22, v23, v24
  v_max3_u32 v32, v32, v25, v26
  v_max3_u32 v33, v33, v27, v34
  v_max_u32 v32, v32, v33
  v_cmp_eq_u32 vcc, -1, v32
  s_add_u32 s60, s60, 1
  s_cmp_gt_u32 s60, {LIMIT}
  s_cbranch_scc1 chain_cdone
  s_cbranch_vccnz chain_cpoll
chain_cdone:
""")
    stamp(5, True)
    a(f"""
  s_add_u32 s34, s34, 10240
  s_addc_u32 s35, s35, 0
  s_add_u32 s92, s92, 1024
  s_addc_u32 s93, s93, 0
  s_xor_b32 s50, s50, 655360
  s_add_u32 s49, s49, 1
  s_branch chain_step
chain_last:
""")
    lk2 = lk
    a("  s_waitcnt lgkmcnt(0)")
    for kt in range(0, 10):
        a(f"  ds_read_b128 {MB(0)}, v14 offset:{kt*512}")
        a("  s_waitcnt lgkmcnt(0)")
        for t in range(2):
            a(f"  v_mfma_f32_16x16x32_bf16 {VA[t]}, {MB(0)}, {wreg(80+kt*2+t)}, {VA[t]}")
        a("  s_nop 7")
    a("""  s_nop 7
  v_cvt_pk_bf16_f32 v96, v64, v65
  v_cvt_pk_bf16_f32 v97, v66, v67
  v_cvt_pk_bf16_f32 v98, v68, v69
  v_cvt_pk_bf16_f32 v99, v70, v71
  s_cmp_lg_u32 s10, 0
  s_cbranch_scc1 chain_done
  global_store_dwordx4 v1, v[92:95], s[42:43]
  global_store_dwordx2 v13, v[96:97], s[44:45]
  global_store_dwordx2 v13, v[98:99], s[44:45] offset:512
  s_branch chain_done
chain_bulk:""")
    from gen import emit_q_bulk
    emit_q_bulk(a)
    a("""chain_done:
  s_endpgm""")
    return kd(name, 512, 100, 256)
```

```python
import sys
from common import *

class A:
    def __init__(s): s.l = []
    def __call__(s, t):
        for x in t.strip('\n').split('\n'): s.l.append(x)
    def text(s): return '\n'.join(s.l) + '\n'

def kd(name, vgpr, sgpr, accum):
    return f""".amdhsa_kernel {name}
  .amdhsa_next_free_vgpr {vgpr}
  .amdhsa_next_free_sgpr {sgpr}
  .amdhsa_accum_offset {accum}
  .amdhsa_group_segment_fixed_size 0
  .amdhsa_kernarg_size 112
  .amdhsa_user_sgpr_count 2
  .amdhsa_user_sgpr_kernarg_segment_ptr 1
  .amdhsa_system_sgpr_workgroup_id_x 1
.end_amdhsa_kernel
"""

def khead(a, name):
    a(f""".globl {name}
.p2align 8
.type {name},@function
{name}:""")

def emit_ln(a, tag, s_src, s_rt, s_ws, dst_off, v_lane):
    a(f"""
  v_and_b32 v4, 15, v{v_lane}          ; r
  v_lshrrev_b32 v5, 4, v{v_lane}       ; g
  s_lshl_b32 s40, s{s_rt}, 4
  v_add_u32 v4, s40, v4                ; row
  v_mul_u32_u24 v4, 0x500, v4          ; row*1280
  v_lshl_add_u32 v4, v5, 4, v4         ; + g*16
""")
    for kt in range(20):
        a(f"  global_load_dwordx4 v[{16+4*kt}:{19+4*kt}], v4, s[{s_src}:{s_src+1}] offset:{kt*64}")
    a("  v_mov_b32 v6, 0\n  v_mov_b32 v7, 0")
    a("  s_mov_b32 s41, 0xffff0000")
    for kt in range(20):
        a(f"  s_waitcnt vmcnt({19-kt})")
        for j in range(4):
            r = 16+4*kt+j
            a(f"""  v_lshlrev_b32 v8, 16, v{r}
  v_and_b32 v9, s41, v{r}
  v_add_f32 v6, v6, v8
  v_add_f32 v7, v7, v9""")
    a("""  v_add_f32 v6, v6, v7
  s_nop 1
  v_mov_b32 v7, v6
  s_nop 1
  v_permlane16_swap_b32 v6, v7
  v_add_f32 v6, v6, v7
  s_nop 1
  v_mov_b32 v7, v6
  s_nop 1
  v_permlane32_swap_b32 v6, v7
  v_add_f32 v6, v6, v7
  v_mul_f32 v6, 0x3acccccd, v6
  v_mov_b32 v10, 0
  v_mov_b32 v11, 0""")
    for kt in range(20):
        for j in range(4):
            r = 16+4*kt+j
            a(f"""  v_lshlrev_b32 v8, 16, v{r}
  v_and_b32 v9, s41, v{r}
  v_sub_f32 v8, v8, v6
  v_sub_f32 v9, v9, v6
  v_fmac_f32 v10, v8, v8
  v_fmac_f32 v11, v9, v9""")
    a("""  v_add_f32 v10, v10, v11
  s_nop 1
  v_mov_b32 v11, v10
  s_nop 1
  v_permlane16_swap_b32 v10, v11
  v_add_f32 v10, v10, v11
  s_nop 1
  v_mov_b32 v11, v10
  s_nop 1
  v_permlane32_swap_b32 v10, v11
  v_add_f32 v10, v10, v11
  v_mul_f32 v10, 0x3acccccd, v10       ; var
  v_cvt_pk_bf16_f32 v12, v6, v10
  v_lshlrev_b32 v6, 16, v12            ; mean_b
  v_and_b32 v10, s41, v12              ; var_b
  v_add_f32 v10, 0x3727c5ac, v10       ; + 1e-5
  v_cvt_pk_bf16_f32 v12, v10, v10
  v_lshlrev_b32 v10, 16, v12
  v_sqrt_f32 v10, v10
  s_nop 0
  v_cvt_pk_bf16_f32 v12, v10, v10
  v_lshlrev_b32 v10, 16, v12
  v_rcp_f32 v11, v10
  s_nop 0
  v_fma_f32 v12, -v10, v11, 1.0
  v_fma_f32 v11, v12, v11, v11         ; 1/den
""")
    a(f"""  s_mul_i32 s42, s{s_rt}, 20480
  s_add_u32 s42, s42, 0x{dst_off:x}
  s_add_u32 s44, s{s_ws}, s42
  s_addc_u32 s45, s{s_ws+1}, 0
  v_lshlrev_b32 v13, 4, v{v_lane}""")
    for kt in range(20):
        for j in range(4):
            r = 16+4*kt+j
            a(f"""  v_lshlrev_b32 v8, 16, v{r}
  v_and_b32 v9, s41, v{r}
  v_sub_f32 v8, v8, v6
  v_sub_f32 v9, v9, v6
  v_cvt_pk_bf16_f32 v14, v8, v9
  v_lshlrev_b32 v8, 16, v14
  v_and_b32 v9, s41, v14
  v_mul_f32 v8, v8, v11
  v_mul_f32 v9, v9, v11
  v_cvt_pk_bf16_f32 v{r}, v8, v9""")
        off = kt*1024
        if off < 4096:
            a(f"  global_store_dwordx4 v13, v[{16+4*kt}:{19+4*kt}], s[44:45] offset:{off}")
        else:
            if off % 4096 == 0:
                a("  s_add_u32 s44, s44, 0x1000\n  s_addc_u32 s45, s45, 0")
            a(f"  global_store_dwordx4 v13, v[{16+4*kt}:{19+4*kt}], s[44:45] offset:{off % 4096}")

NJ_LN, NJ_QKV, NJ_WO, NJ_GU, NJ_WD = 128, 192*4, 160, 54*4, 90
CLR_BYTES = P_BYTES + 8*MB_STRIDE + LF_BYTES
NJ_CLR = (CLR_BYTES + 16383)//16384
PREP_WAVES = NJ_LN+NJ_QKV+NJ_WO+NJ_GU+NJ_WD+NJ_CLR
PREP_WGS = (PREP_WAVES+3)//4
PREP_LDS = 4*2*4608

def gen_prep(a):
    name = "prep_kernel"
    khead(a, name)
    b0 = NJ_LN; b1 = b0+NJ_QKV; b2 = b1+NJ_WO; b3 = b2+NJ_GU; b4 = b3+NJ_WD; b5 = b4+NJ_CLR
    a(f"""
  s_load_dwordx2 s[4:5], s[0:1], 0
  s_load_dwordx2 s[6:7], s[0:1], 104
  s_load_dwordx4 s[8:11], s[0:1], 16
  s_load_dwordx4 s[12:15], s[0:1], 32
  s_load_dwordx4 s[16:19], s[0:1], 64
  s_load_dwordx2 s[20:21], s[0:1], 80
  v_lshrrev_b32 v1, 6, v0
  v_and_b32 v2, 63, v0
  s_nop 0
  v_readfirstlane_b32 s22, v1
  s_lshl_b32 s23, s2, 2
  s_nop 2
  s_add_u32 s23, s23, s22
  s_waitcnt lgkmcnt(0)
  s_cmp_ge_u32 s23, {b5}
  s_cbranch_scc1 prep_done
  s_cmp_lt_u32 s23, {b0}
  s_cbranch_scc1 prep_ln
  s_cmp_ge_u32 s23, {b4}
  s_cbranch_scc1 prep_clr
  s_cmp_lt_u32 s23, {b1}
  s_cbranch_scc1 prep_qkv
  s_cmp_lt_u32 s23, {b2}
  s_cbranch_scc1 prep_wo
  s_cmp_lt_u32 s23, {b3}
  s_cbranch_scc1 prep_gu
  ; Wd: j: cg=j/3 chunk=j%3
  s_sub_u32 s24, s23, {b3}
  s_mov_b32 s25, 0x1c71c71d
  s_mul_hi_u32 s26, s24, s25
  s_mul_i32 s27, s26, 9
  s_sub_u32 s27, s24, s27
  s_mul_i32 s27, s27, 6
  s_mov_b32 s28, s20
  s_mov_b32 s29, s21
  s_mov_b32 s30, 1280
  s_lshl_b32 s31, s26, 6
  s_mov_b32 s32, 6
  s_mul_i32 s33, s26, {4*54}
  s_add_u32 s33, s33, s27
  s_lshl_b32 s33, s33, 10
  s_add_u32 s33, s33, 0x{WD_F:x}
  s_mov_b32 s44, {54*1024}
  s_mov_b32 s45, {2*54*1024}
  s_mov_b32 s46, {3*54*1024}
  s_mov_b32 s34, 4
  s_mov_b32 s35, 16
  s_branch prep_rl
prep_gu:
  s_sub_u32 s24, s23, {b2}
  s_and_b32 s27, s24, 3
  s_mul_i32 s27, s27, 5
  s_lshr_b32 s26, s24, 3
  s_bitcmp1_b32 s24, 2
  s_cselect_b32 s28, s18, s16
  s_cselect_b32 s29, s19, s17
  s_cselect_b32 s25, 2, 0
  s_mov_b32 s30, {F*2}
  s_lshl_b32 s31, s26, 6
  s_mov_b32 s32, 5
  s_lshl_b32 s33, s26, 3
  s_add_u32 s33, s33, s25
  s_mul_i32 s33, s33, 20
  s_add_u32 s33, s33, s27
  s_lshl_b32 s33, s33, 10
  s_add_u32 s33, s33, 0x{WGU_F:x}
  s_mov_b32 s44, {20480}
  s_mov_b32 s45, {4*20480}
  s_mov_b32 s46, {5*20480}
  s_mov_b32 s34, 8
  s_mov_b32 s35, 4
  s_branch prep_rl
prep_wo:
  s_sub_u32 s24, s23, {b1}
  s_lshr_b32 s26, s24, 4              ; cg
  s_and_b32 s27, s24, 15
  s_lshl_b32 s27, s27, 3
  s_mov_b32 s28, s14
  s_mov_b32 s29, s15
  s_mov_b32 s30, 1280
  s_lshl_b32 s31, s26, 6
  s_mov_b32 s32, 8
  s_mul_i32 s33, s26, {4*OSTR}
  s_add_u32 s33, s33, s27
  s_lshl_b32 s33, s33, 10
  s_add_u32 s33, s33, 0x{WO_F:x}
  s_mov_b32 s44, {OSTR*1024}
  s_mov_b32 s45, {2*OSTR*1024}
  s_mov_b32 s46, {3*OSTR*1024}
  s_mov_b32 s34, 4
  s_mov_b32 s35, 16
  s_branch prep_rl
prep_qkv:
  s_sub_u32 s24, s23, {b0}
  s_and_b32 s27, s24, 3
  s_mul_i32 s27, s27, 5
  s_lshr_b32 s24, s24, 2
  s_lshr_b32 s26, s24, 6
  s_and_b32 s25, s24, 63
  s_mov_b32 s28, s8
  s_mov_b32 s29, s9
  s_cmp_eq_u32 s26, 1
  s_cselect_b32 s28, s10, s28
  s_cselect_b32 s29, s11, s29
  s_cmp_eq_u32 s26, 2
  s_cselect_b32 s28, s12, s28
  s_cselect_b32 s29, s13, s29
  s_mov_b32 s30, 8192
  s_lshl_b32 s31, s25, 6
  s_mov_b32 s32, 5
  s_mul_i32 s33, s24, 80
  s_add_u32 s33, s33, s27
  s_lshl_b32 s33, s33, 10
  s_add_u32 s33, s33, 0x{WQKV_F:x}
  s_mov_b32 s44, {20480}
  s_mov_b32 s45, {2*20480}
  s_mov_b32 s46, {3*20480}
  s_mov_b32 s34, 8
  s_mov_b32 s35, 4
prep_rl:
  v_lshrrev_b32 v4, 3, v2
  v_and_b32 v5, 7, v2
  s_lshl_b32 s36, s27, 5
  v_add_u32 v6, s36, v4
  v_mul_lo_u32 v6, v6, s30
  s_lshl_b32 s37, s31, 1
  v_lshl_add_u32 v6, v5, 4, v6
  v_add_u32 v8, s37, v6
  s_lshl_b32 s38, s30, 3
  v_add_u32 v9, s38, v8
  v_add_u32 v10, s38, v9
  v_add_u32 v11, s38, v10
  s_lshl_b32 s38, s30, 5
  s_mul_i32 s39, s22, 9216
  v_mul_u32_u24 v12, 144, v4
  v_lshl_add_u32 v12, v5, 4, v12
  v_add_u32 v12, s39, v12
  v_lshrrev_b32 v13, 4, v2
  v_mul_lo_u32 v13, v13, s34
  v_bfe_u32 v14, v2, 2, 2
  v_add_u32 v13, v13, v14
  v_mul_u32_u24 v13, 144, v13
  v_and_b32 v14, 3, v2
  v_lshl_add_u32 v13, v14, 3, v13
  v_add_u32 v13, s39, v13
  s_mul_i32 s40, s35, 144
  v_add_u32 v14, s40, v13
  v_lshlrev_b32 v16, 4, v2
  v_add_u32 v17, s44, v16
  v_add_u32 v18, s45, v16
  v_add_u32 v19, s46, v16
  s_add_u32 s40, s6, s33
  s_addc_u32 s41, s7, 0
  global_load_dwordx4 v[20:23], v8, s[28:29]
  global_load_dwordx4 v[24:27], v9, s[28:29]
  global_load_dwordx4 v[28:31], v10, s[28:29]
  global_load_dwordx4 v[32:35], v11, s[28:29]
  s_mov_b32 s42, 0
prep_rl_loop:
  s_add_u32 s28, s28, s38
  s_addc_u32 s29, s29, 0
  s_waitcnt vmcnt(0)
  ds_write_b128 v12, v[20:23]
  ds_write_b128 v12, v[24:27] offset:1152
  ds_write_b128 v12, v[28:31] offset:2304
  ds_write_b128 v12, v[32:35] offset:3456
  s_add_u32 s43, s42, 1
  s_cmp_ge_u32 s43, s32
  s_cbranch_scc1 prep_rl_nold
  global_load_dwordx4 v[20:23], v8, s[28:29]
  global_load_dwordx4 v[24:27], v9, s[28:29]
  global_load_dwordx4 v[28:31], v10, s[28:29]
  global_load_dwordx4 v[32:35], v11, s[28:29]
prep_rl_nold:
  s_waitcnt lgkmcnt(0)
""")
    for t in range(4):
        a(f"  ds_read_b64_tr_b16 v[{40+4*t}:{41+4*t}], v13 offset:{32*t}\n  ds_read_b64_tr_b16 v[{42+4*t}:{43+4*t}], v14 offset:{32*t}")
    a("""  s_waitcnt lgkmcnt(6)
  global_store_dwordx4 v16, v[40:43], s[40:41]
  s_waitcnt lgkmcnt(4)
  global_store_dwordx4 v17, v[44:47], s[40:41]
  s_waitcnt lgkmcnt(2)
  global_store_dwordx4 v18, v[48:51], s[40:41]
  s_waitcnt lgkmcnt(0)
  global_store_dwordx4 v19, v[52:55], s[40:41]
  s_add_u32 s40, s40, 0x400
  s_addc_u32 s41, s41, 0
  s_add_u32 s42, s42, 1
  s_cmp_lt_u32 s42, s32
  s_cbranch_scc1 prep_rl_loop
  s_branch prep_done""")
    a(f"""
prep_clr:
  s_sub_u32 s24, s23, {b4}
  s_cmp_lg_u32 s24, 0
  s_cbranch_scc1 prep_clr2
  v_lshlrev_b32 v16, 4, v2
  v_mov_b32 v20, 0
  v_mov_b32 v21, 0
  v_mov_b32 v22, 0
  v_mov_b32 v23, 0
  s_add_u32 s40, s6, 0x{CNT_OFF:x}
  s_addc_u32 s41, s7, 0
  global_store_dwordx4 v16, v[20:23], s[40:41]
  s_nop 1
prep_clr2:
  s_lshl_b32 s24, s24, 14
  v_lshlrev_b32 v16, 4, v2
  v_mov_b32 v20, -1
  v_mov_b32 v21, -1
  v_mov_b32 v22, -1
  v_mov_b32 v23, -1
  s_mov_b32 s39, 0
prep_clr_loop:
  s_add_u32 s25, s24, s39
  s_cmp_ge_u32 s25, {CLR_BYTES}
  s_cbranch_scc1 prep_done
  s_mov_b32 s27, 0x{P_OFF:x}
  s_cmp_lt_u32 s25, {P_BYTES}
  s_cselect_b32 s26, s27, 0x{MB_OFF - P_BYTES:x}
  s_add_u32 s25, s25, s26
  s_add_u32 s40, s6, s25
  s_addc_u32 s41, s7, 0
  global_store_dwordx4 v16, v[20:23], s[40:41]
  s_add_u32 s39, s39, 1024
  s_cmp_lt_u32 s39, 16384
  s_cbranch_scc1 prep_clr_loop
  s_branch prep_done
prep_ln:
""")
    emit_ln(a, "p", 4, 23, 6, XN_F, 2)
    a("prep_done:\n  s_endpgm")
    return kd(name, 128, 64, 128)

class Gemm:
    def __init__(s, name, MT, NT, KT, NS, WM, WN, x_off, w_off, nwg, KS=1, NSPLIT=1, KSTR=None):
        s.name, s.MT, s.NT, s.KT, s.NS, s.WM, s.WN = name, MT, NT, KT, NS, WM, WN
        s.x_off, s.w_off, s.nwg, s.KS = x_off, w_off, nwg, KS
        s.mt, s.nt = MT//WM, NT//WN
        s.T = MT+NT
        s.KSTR = KSTR or KT
        s.NSPLIT = NSPLIT; s.KTC = KT//NSPLIT
        assert s.T % 4 == 0 and KS == 1 and KT % NSPLIT == 0
        s.nd = s.T//4
        s.stage = s.T*1024*KS
        s.lds = s.stage*NS
        s.NSTEP = s.KTC//KS
    def prologue(s, a, map_code, entry=True):
        n = s.name
        if entry: a(f"""
  s_cmp_ge_u32 s2, {s.nwg}
  s_cbranch_scc1 {n}_done""")
        a(f"""
  s_load_dwordx2 s[6:7], s[0:1], 104
  s_load_dwordx2 s[4:5], s[0:1], 0
  s_load_dwordx2 s[8:9], s[0:1], 88
  v_lshrrev_b32 v5, 6, v0
  v_and_b32 v6, 63, v0
  s_nop 0
  v_readfirstlane_b32 s22, v5         ; wave
  v_lshlrev_b32 v1, 4, v6             ; lane*16
""")
        a(map_code)
        a(f"""
  s_waitcnt lgkmcnt(0)
  s_lshr_b32 s23, s22, {1 if s.WN==2 else (2 if s.WN==4 else 0)}   ; wm
  s_and_b32 s24, s22, {s.WN-1}        ; wn
""")
        for j in range(s.nd):
            sb = 40+2*j
            a(f"""  s_add_u32 s25, s22, {4*j}
  s_mul_i32 s26, s20, {s.MT}
  s_add_u32 s26, s26, s25
  s_mul_i32 s26, s26, {s.KSTR*1024}
  s_add_u32 s26, s26, 0x{s.x_off:x}
  s_mul_i32 s27, s21, {s.NT}
  s_add_u32 s27, s27, s25
  s_sub_u32 s27, s27, {s.MT}
  s_mul_i32 s27, s27, {s.KSTR*1024}
  s_add_u32 s27, s27, 0x{s.w_off:x}
  s_cmp_lt_u32 s25, {s.MT}
  s_cselect_b32 s26, s26, s27
  s_add_u32 s{sb}, s6, s26
  s_addc_u32 s{sb+1}, s7, 0""")
        a(f"""  s_mul_i32 s28, s22, {1024*s.KS}
  s_mul_i32 s25, s19, {s.KTC*1024 if s.NSPLIT > 1 else 0}
  v_add_u32 v2, s25, v1
  s_mul_i32 s29, s23, {s.mt*1024*s.KS}
  s_mul_i32 s30, s24, {s.nt*1024*s.KS}
  s_add_u32 s30, s30, {s.MT*1024*s.KS}
  s_mov_b32 s31, 0
  s_mov_b32 s32, 0
""")
        for st in range(s.NS):
            s.dma(a)
        for i in range(s.mt*s.nt*4):
            a(f"  v_accvgpr_write_b32 a{i}, 0")
    def dma_list(s):
        L = ["  s_add_u32 s33, s32, s28"]
        for j in range(s.nd):
            L.append(f"  s_add_u32 m0, s33, {4096*j}\n  s_nop 0\n  global_load_lds_dwordx4 v2, s[{40+2*j}:{41+2*j}]")
        L.append(f"""  v_add_u32 v2, 1024, v2
  s_add_u32 s32, s32, {s.stage}
  s_cmp_ge_u32 s32, {s.lds}
  s_cselect_b32 s32, 0, s32""")
        return L
    def dma(s, a):
        for x in s.dma_list(): a(x)
    def regs(s, k):
        nf = s.nt + s.mt
        base = 8 + 4*nf*(k % 2)
        return base, base + 4*s.nt
    def read_list(s, k):
        fb, fa = s.regs(k)
        L = [f"""  s_add_u32 s34, s31, s29
  s_add_u32 s35, s31, s30
  v_add_u32 v3, s34, v1
  v_add_u32 v4, s35, v1"""]
        for j in range(s.nt): L.append(f"  ds_read_b128 v[{fb+4*j}:{fb+4*j+3}], v4 offset:{1024*j}")
        for i in range(s.mt): L.append(f"  ds_read_b128 v[{fa+4*i}:{fa+4*i+3}], v3 offset:{1024*i}")
        L.append(f"""  s_add_u32 s31, s31, {s.stage}
  s_cmp_ge_u32 s31, {s.lds}
  s_cselect_b32 s31, 0, s31""")
        return L
    def body(s, a, par, vm, do_dma, do_read, transposed):
        if do_read:
            a(f"  s_waitcnt vmcnt({vm}) lgkmcnt(0)\n  s_barrier")
        else:
            a("  s_waitcnt lgkmcnt(0)")
        side = []
        if do_read: side += s.read_list(par ^ 1)
        if do_dma: side += s.dma_list()
        fb, fa = s.regs(par)
        mf = []
        for i in range(s.mt):
            for j in range(s.nt):
                acc = 4*(i*s.nt+j)
                X = f"v[{fa+4*i}:{fa+4*i+3}]"; W = f"v[{fb+4*j}:{fb+4*j+3}]"
                if transposed: mf.append(f"  v_mfma_f32_16x16x32_bf16 a[{acc}:{acc+3}], {W}, {X}, a[{acc}:{acc+3}]")
                else: mf.append(f"  v_mfma_f32_16x16x32_bf16 a[{acc}:{acc+3}], {X}, {W}, a[{acc}:{acc+3}]")
        n = len(mf); m = len(side); k = 0
        for i, x in enumerate(mf):
            a(x)
            while k < m and k * n < (i+1) * m:
                a(side[k]); k += 1
        while k < m: a(side[k]); k += 1
    def mainloop(s, a, transposed, tag):
        n = s.name + tag
        per = s.nd; N = s.NSTEP; NS = s.NS
        a(f"  s_waitcnt vmcnt({(NS-1)*per})\n  s_barrier")
        for x in s.read_list(0): a(x)
        steady = N - NS
        kt = 0
        if steady % 2 == 1:
            s.body(a, 0, (NS-2)*per, True, True, transposed); kt = 1
        if steady - kt > 0:
            a(f"  s_mov_b32 s36, 0\n{n}_loop:")
            s.body(a, kt % 2, (NS-2)*per, True, True, transposed)
            s.body(a, (kt+1) % 2, (NS-2)*per, True, True, transposed)
            a(f"  s_add_u32 s36, s36, 2\n  s_cmp_lt_u32 s36, {steady-kt}\n  s_cbranch_scc1 {n}_loop")
        kt = steady
        while kt < N:
            rd = kt+1 < N
            s.body(a, kt % 2, max(0, N-2-kt)*per, False, rd, transposed)
            kt += 1
        a("  s_nop 7\n  s_nop 3")
    def vgprs(s):
        nf = s.nt + s.mt
        v = 8 + 4*nf*2
        return max(64, (v+3)//4*4)

def qk_epilogue(a):
    a(f"""  s_lshl_b32 s10, s37, 24             ; type*16MB
  s_add_u32 s10, s10, 0x{Q_F:x}
  s_lshl_b32 s11, s20, 3
  s_lshl_b32 s12, s23, 2
  s_add_u32 s11, s11, s12
  s_lshl_b32 s11, s11, 5
  s_add_u32 s11, s11, s38             ; seg0*32+head
  s_lshl_b32 s11, s11, 13             ; *8192
  s_add_u32 s10, s10, s11
  s_lshl_b32 s12, s24, 12
  s_add_u32 s10, s10, s12
  s_add_u32 s14, s6, s10
  s_addc_u32 s15, s7, 0""")
    for i in range(8):
        for jp in range(2):
            a0 = 4*(i*4+2*jp); a1 = a0+4
            for r in range(4):
                a(f"  v_accvgpr_read_b32 v{8+r}, a{a0+r}\n  v_accvgpr_read_b32 v{12+r}, a{a1+r}")
            a("""  v_cvt_pk_bf16_f32 v16, v8, v9
  v_cvt_pk_bf16_f32 v17, v10, v11
  v_cvt_pk_bf16_f32 v18, v12, v13
  v_cvt_pk_bf16_f32 v19, v14, v15""")
            off = jp*2048 + (i&1)*1024
            a(f"  global_store_dwordx4 v1, v[16:19], s[14:15] offset:{off}")
            a("  s_nop 1")
        if i & 1:
            a("  s_add_u32 s14, s14, 0x40000\n  s_addc_u32 s15, s15, 0")

def emit_q_bulk(a):
    g = Gemm("qbulk", MT=16, NT=8, KT=20, NS=5, WM=2, WN=2, x_off=XN_F, w_off=WQKV_F, nwg=256)
    a("""  s_sub_u32 s98, s10, 5
  s_lshl_b32 s98, s98, 5
  s_add_u32 s98, s98, s9
qbulk_tile:""")
    g.prologue(a, """
  s_and_b32 s20, s98, 7               ; mb
  s_lshr_b32 s21, s98, 3
  s_mov_b32 s19, 0
""", entry=False)
    a("  s_mov_b32 s37, 0\n  s_mov_b32 s38, s21")
    g.mainloop(a, True, "_b")
    qk_epilogue(a)
    a("""  s_barrier
  s_add_u32 s98, s98, 96
  s_cmp_lt_u32 s98, 256
  s_cbranch_scc1 qbulk_tile""")

def gen_qkv(a):
    import os
    g = Gemm("qkv_kernel", MT=16, NT=8, KT=20, NS=int(os.environ.get("QNS","3")), WM=2, WN=2, x_off=XN_F, w_off=WQKV_F, nwg=512)
    khead(a, g.name)
    g.prologue(a, """
  s_and_b32 s10, s2, 7
  s_lshr_b32 s11, s2, 3
  s_lshr_b32 s20, s11, 3
  s_and_b32 s13, s11, 7
  s_lshl_b32 s21, s10, 3
  s_add_u32 s21, s21, s13
  s_add_u32 s21, s21, 32              ; K,V only
  s_mov_b32 s19, 0
""")
    a("""  s_lshr_b32 s37, s21, 5
  s_and_b32 s38, s21, 31
  s_cmp_eq_u32 s37, 2
  s_cbranch_scc1 qkv_v""")
    g.mainloop(a, True, "_t")
    qk_epilogue(a)
    a("  s_branch qkv_kernel_done\nqkv_v:")
    g.mainloop(a, False, "_n")
    a(f"""  s_lshl_b32 s11, s20, 3
  s_lshl_b32 s12, s23, 2
  s_add_u32 s11, s11, s12
  s_lshl_b32 s11, s11, 5
  s_add_u32 s11, s11, s38
  s_lshl_b32 s11, s11, 13
  s_add_u32 s10, s11, 0x{V_F:x}
  s_lshl_b32 s12, s24, 12
  s_add_u32 s10, s10, s12
  s_add_u32 s14, s6, s10
  s_addc_u32 s15, s7, 0""")
    for ip in range(4):
        for j in range(4):
            a0 = 4*((2*ip)*4+j); a1 = 4*((2*ip+1)*4+j)
            for r in range(4):
                a(f"  v_accvgpr_read_b32 v{8+r}, a{a0+r}\n  v_accvgpr_read_b32 v{12+r}, a{a1+r}")
            a("""  v_cvt_pk_bf16_f32 v16, v8, v9
  v_cvt_pk_bf16_f32 v17, v10, v11
  v_cvt_pk_bf16_f32 v18, v12, v13
  v_cvt_pk_bf16_f32 v19, v14, v15""")
            a(f"  global_store_dwordx4 v1, v[16:19], s[14:15] offset:{j*1024}")
            a("  s_nop 1")
        a("  s_add_u32 s14, s14, 0x40000\n  s_addc_u32 s15, s15, 0")
    a("qkv_kernel_done:\n  s_endpgm")
    return kd(g.name, g.vgprs()+128, 64, g.vgprs()), g

def main():
    a = A()
    kds = []
    launches = []
    body = A()
    kds.append(gen_prep(body)); launches.append(("prep_kernel", PREP_WGS, 256, PREP_LDS))
    k, g = gen_qkv(body); kds.append(k); launches.append(("qkv_kernel", g.nwg, 256, g.lds))
    import gen_chain
    import os
    kds.append(gen_chain.gen_chain(body, RS=int(os.environ.get('RS','2')), CS=int(os.environ.get('CS','6')), CS2=int(os.environ.get('CS2','2')), DIAG=bool(int(os.environ.get('DIAG','0'))), EMU=bool(int(os.environ.get('EMU','0'))), LOC=bool(int(os.environ.get('LOC','0'))), RC=int(os.environ.get('RC','22')), FORCE_SLOW=bool(int(os.environ.get('FSLOW','0'))), LD=int(os.environ.get('LD','1')))); launches.append(("chain_kernel", 256, 256, gen_chain.L_END))
    import gen_post
    import gen_awl
    kds.append(gen_awl.gen_awl(body)); launches.append(("awl_kernel", 256, 256, 65536))
    k, g = gen_post.gen_ffn1(body); kds.append(k); launches.append((g.name, g.nwg, 256, g.lds))
    k, g = gen_post.gen_ffn2(body); kds.append(k); launches.append((g.name, g.nwg, 256, g.lds))
    hdr = open('cdna_kernels/'+KNAME+'.s.ref').read().split('; Override launch')[0]
    out = hdr
    for (n, gx, bx, lds) in launches:
        out += f"; @launch kernel={n} grid=({gx},1,1) block=({bx},1,1) lds={lds}\n"
    out += '.amdgcn_target "amdgcn-amd-amdhsa--gfx950"\n.text\n' + body.text()
    out += '.section .rodata,"a"\n'
    for k in kds: out += ".p2align 6\n" + k
    path = sys.argv[1] if len(sys.argv) > 1 else 'cdna_kernels/'+KNAME+'.s'
    open(path, 'w').write(out)
    print("wrote", path, len(out))
if __name__ == '__main__':
    main()
```

```python
from common import *
from gen import A, kd, khead

PART2 = 0xD000000
CNT2 = CNT_OFF + 896
L_OA = 0

def attn_loads(a, R):
    a(f"""
  s_lshl_b32 s9, s40, 5
  s_add_u32 s9, s9, s41
  s_lshl_b32 s10, s9, 13
  s_add_u32 s11, s10, 0x{Q_F:x}
  s_add_u32 s12, s6, s11
  s_addc_u32 s13, s7, 0
  s_add_u32 s11, s10, 0x{K_F:x}
  s_add_u32 s14, s6, s11
  s_addc_u32 s15, s7, 0
  s_add_u32 s11, s10, 0x{V_F:x}
  s_add_u32 s16, s6, s11
  s_addc_u32 s17, s7, 0
  s_lshl_b32 s10, s9, 12
  s_add_u32 s11, s10, 0x{KM_F:x}
  s_add_u32 s18, s6, s11
  s_addc_u32 s19, s7, 0
  s_add_u32 s11, s10, 0x{VM_F:x}
  s_add_u32 s20, s6, s11
  s_addc_u32 s21, s7, 0
""")
    for f in range(8):
        vo = "v1" if f < 4 else "v6"
        a(f"  global_load_dwordx4 {R(16+4*f,4)}, {vo}, s[12:13] offset:{(f%4)*1024}")
        a(f"  global_load_dwordx4 {R(48+4*f,4)}, {vo}, s[14:15] offset:{(f%4)*1024}")
    for w in range(4):
        a(f"  global_load_dwordx4 {R(80+4*w,4)}, v1, s[18:19] offset:{w*1024}")
    for f in range(8):
        vo = "v1" if f < 4 else "v6"
        a(f"  global_load_dwordx4 {R(96+4*f,4)}, {vo}, s[16:17] offset:{(f%4)*1024}")
    for f in range(8):
        a(f"  global_load_dwordx2 {R(128+2*f,2)}, v7, s[20:21] offset:{f*512}")

RV = lambda r, n: f"v[{r}:{r+n-1}]"
RA = lambda r, n: f"a[{r-16}:{r-16+n-1}]"

def attn_pair(a, R, vm1, vm2):
    a(f"  s_waitcnt vmcnt({vm1})")
    tiles = [(0,'M',144),(0,0,148),(1,'M',152),(1,0,156),(1,1,160)]
    for w in range(4):
        for (tt, kt, acc) in tiles:
            Kf = R(80+4*w,4) if kt == 'M' else R(48+4*(w*2+kt),4)
            Qf = R(16+4*(w*2+tt),4)
            c = f"v[{acc}:{acc+3}]" if w > 0 else "0"
            a(f"  v_mfma_f32_16x16x32_bf16 v[{acc}:{acc+3}], {Kf}, {Qf}, {c}")
    a("  s_nop 7")
    for i in range(144, 164, 2):
        a(f"""  v_cvt_pk_bf16_f32 v10, v{i}, v{i+1}
  v_lshlrev_b32 v{i}, 16, v10
  v_and_b32 v{i+1}, s54, v10
  v_mul_f32 v{i}, s52, v{i}
  v_mul_f32 v{i+1}, s52, v{i+1}
  v_cvt_pk_bf16_f32 v10, v{i}, v{i+1}
  v_lshlrev_b32 v{i}, 16, v10
  v_and_b32 v{i+1}, s54, v10""")
    a("  v_cmp_lt_u32 vcc, 31, v3\n  s_nop 1")
    for b in (144, 152):
        for r in range(4): a(f"  v_cndmask_b32 v{b+r}, v{b+r}, v8, vcc")
    for r in range(4):
        a(f"  v_add_u32 v10, {r}, v9\n  v_cmp_gt_u32 vcc, v10, v4\n  s_nop 1")
        a(f"  v_cndmask_b32 v{148+r}, v{148+r}, v8, vcc\n  v_cndmask_b32 v{160+r}, v{160+r}, v8, vcc")
    def softmax(regs, tmp):
        n = len(regs)
        a(f"  v_max3_f32 v{tmp}, v{regs[0]}, v{regs[1]}, v{regs[2]}")
        i = 3
        while i < n:
            if i+1 < n: a(f"  v_max3_f32 v{tmp}, v{tmp}, v{regs[i]}, v{regs[i+1]}"); i += 2
            else: a(f"  v_max_f32 v{tmp}, v{tmp}, v{regs[i]}"); i += 1
        for sw in ("16", "32"):
            a(f"""  s_nop 1
  v_mov_b32 v{tmp+1}, v{tmp}
  s_nop 1
  v_permlane{sw}_swap_b32 v{tmp}, v{tmp+1}
  v_max_f32 v{tmp}, v{tmp}, v{tmp+1}""")
        for r in regs: a(f"  v_sub_f32 v{r}, v{r}, v{tmp}\n  v_mul_f32 v{r}, s53, v{r}")
        for r in regs: a(f"  v_exp_f32 v{r}, v{r}")
        a(f"  s_nop 0\n  v_add_f32 v{tmp}, v{regs[0]}, v{regs[1]}")
        for r in regs[2:]: a(f"  v_add_f32 v{tmp}, v{tmp}, v{r}")
        for sw in ("16", "32"):
            a(f"""  s_nop 1
  v_mov_b32 v{tmp+1}, v{tmp}
  s_nop 1
  v_permlane{sw}_swap_b32 v{tmp}, v{tmp+1}
  v_add_f32 v{tmp}, v{tmp}, v{tmp+1}""")
        a(f"""  v_rcp_f32 v{tmp+1}, v{tmp}
  s_nop 0
  v_fma_f32 v{tmp+2}, -v{tmp}, v{tmp+1}, 1.0
  v_fma_f32 v{tmp+1}, v{tmp+2}, v{tmp+1}, v{tmp+1}""")
        for r in regs: a(f"  v_mul_f32 v{r}, v{r}, v{tmp+1}")
    softmax(list(range(144, 152)), 10)
    softmax(list(range(152, 164)), 10)
    a("""  v_cvt_pk_bf16_f32 v164, v144, v145
  v_cvt_pk_bf16_f32 v165, v146, v147
  v_cvt_pk_bf16_f32 v166, v148, v149
  v_cvt_pk_bf16_f32 v167, v150, v151
  v_mov_b32 v168, 0
  v_mov_b32 v169, 0
  v_cvt_pk_bf16_f32 v170, v152, v153
  v_cvt_pk_bf16_f32 v171, v154, v155
  v_cvt_pk_bf16_f32 v172, v156, v157
  v_cvt_pk_bf16_f32 v173, v158, v159
  v_cvt_pk_bf16_f32 v174, v160, v161
  v_cvt_pk_bf16_f32 v175, v162, v163""")
    a(f"  s_waitcnt vmcnt({vm2})")
    for tt in range(2):
        pm = "v[164:165]" if tt == 0 else "v[170:171]"
        for et in range(8):
            acc = 16+4*(tt*8+et)
            a(f"  v_mfma_f32_16x16x16_bf16 v[{acc}:{acc+3}], {R(128+2*et,2)}, {pm}, 0")
    for tt in range(2):
        px = "v[166:169]" if tt == 0 else "v[172:175]"
        for et in range(8):
            acc = 16+4*(tt*8+et)
            a(f"  v_mfma_f32_16x16x32_bf16 v[{acc}:{acc+3}], {R(96+4*et,4)}, {px}, v[{acc}:{acc+3}]")
    a("  v_add_u32 v11, s42, v1\n  s_nop 6")
    for tt in range(2):
        for wp in range(4):
            b = 16+4*(tt*8+2*wp)
            a(f"""  v_cvt_pk_bf16_f32 v{80+4*wp}, v{b}, v{b+1}
  v_cvt_pk_bf16_f32 v{81+4*wp}, v{b+2}, v{b+3}
  v_cvt_pk_bf16_f32 v{82+4*wp}, v{b+4}, v{b+5}
  v_cvt_pk_bf16_f32 v{83+4*wp}, v{b+6}, v{b+7}
  ds_write_b128 v11, v[{80+4*wp}:{83+4*wp}] offset:{tt*16384 + wp*1024}""")
        a("  s_waitcnt lgkmcnt(0)")

import os
def gen_awl(a, LIMIT=100000):
    name = "awl_kernel"
    khead(a, name)
    a(f"""
  s_cmp_ge_u32 s2, {(32-RBK)*8}
  s_cbranch_scc1 awl_done
  s_and_b32 s44, s2, 7                ; hg
  s_lshr_b32 s45, s2, 3
  s_add_u32 s45, s45, {RBK}           ; rb""")
    awl_body(a, "awl", "", LIMIT)
    a("awl_done:\n  s_endpgm")
    return kd(name, 192+160, 96, 192)

def awl_body(a, P, SC, LIMIT=100000):
    DIAG = False
    def st(k): pass
    a(f"""
  s_load_dwordx2 s[6:7], s[0:1], 104
  s_load_dwordx2 s[4:5], s[0:1], 0
  v_lshrrev_b32 v2, 6, v0
  v_and_b32 v3, 63, v0
  s_nop 0
  v_readfirstlane_b32 s8, v2          ; wave
  v_lshlrev_b32 v1, 4, v3
  v_lshlrev_b32 v7, 3, v3
  v_and_b32 v4, 15, v3
  v_lshrrev_b32 v5, 4, v3
  v_add_u32 v6, 0x1000, v1
  s_mov_b32 s52, 0x3db504f3
  s_mov_b32 s53, 0x3fb8aa3b
  s_mov_b32 s54, 0xffff0000
  v_mov_b32 v8, 0xff800000
  v_lshlrev_b32 v9, 2, v5
  s_waitcnt lgkmcnt(0)
  s_mul_i32 s10, s8, {10*OSTR}
  s_lshl_b32 s11, s44, 4
  s_add_u32 s10, s10, s11
  s_lshl_b32 s10, s10, 10
  s_add_u32 s10, s10, 0x{WO_F:x}
  s_add_u32 s60, s6, s10
  s_addc_u32 s61, s7, 0""")
    for j in range(1, 10):
        a(f"  s_add_u32 s{60+2*j}, s{58+2*j}, {OSTR*1024}\n  s_addc_u32 s{61+2*j}, s{59+2*j}, 0")
    st(0)
    a("""  s_lshl_b32 s41, s44, 2
  s_add_u32 s41, s41, s8              ; head
  s_lshl_b32 s40, s45, 1              ; seg
  s_lshl_b32 s42, s8, 12""")
    attn_loads(a, RV)
    a("  s_add_u32 s40, s40, 1")
    attn_loads(a, RA)
    attn_pair(a, RV, 36+16, 36)
    a("  s_add_u32 s42, s42, 32768")
    attn_pair(a, RA, 16, 0)
    st(1)
    a(f"""  s_lshl_b32 s10, s45, 3
  s_add_u32 s10, s10, s44
  s_mul_i32 s10, s10, {64*2560}
  s_mul_i32 s11, s8, 640
  s_add_u32 s10, s10, s11
  s_add_u32 s10, s10, 0x{PART2:x}
  s_add_u32 s12, s6, s10
  s_addc_u32 s13, s7, 0
  v_mul_u32_u24 v176, 2560, v4
  v_lshl_add_u32 v176, v5, 4, v176
  v_add_u32 v177, {16*2560}, v176
  v_add_u32 v178, {32*2560}, v176
  v_add_u32 v179, {48*2560}, v176
  v_add_u32 v180, 0x1000, v1
  v_add_u32 v181, 0x2000, v1
  v_add_u32 v182, 0x3000, v1""")
    PD = 10
    NB = PD + 1
    BB = lambda st, j: f"v[{16+8*(st%NB)+4*j}:{19+8*(st%NB)+4*j}]"
    AA = lambda st, i: f"v[{112+16*(st%3)+4*i}:{115+16*(st%3)+4*i}]"
    steps = [(jg, kt) for jg in range(5) for kt in range(16)]
    vmq = []
    def loadB(n):
        jg, kt = steps[n]
        vo = ["v1", "v180", "v181", "v182"][kt//4]
        for j in range(2):
            a(f"  global_load_dwordx4 {BB(n,j)}, {vo}, s[{60+2*(2*jg+j)}:{61+2*(2*jg+j)}] offset:{(kt%4)*1024}")
            vmq.append(('B', n))
    def readA(n):
        jg, kt = steps[n]
        for i in range(4):
            a(f"  ds_read_b128 {AA(n,i)}, v1 offset:{i*16384 + kt*1024}")
    for n in range(PD): loadB(n)
    a("  s_barrier")
    readA(0); readA(1)
    for n, (jg, kt) in enumerate(steps):
        if n+PD < len(steps): loadB(n+PD)
        if n+2 < len(steps): readA(n+2)
        idx = max(i for i, t in enumerate(vmq) if t == ('B', n))
        vm = len(vmq) - 1 - idx
        lg = 8 if n+2 < len(steps) else (4 if n+1 < len(steps) else 0)
        a(f"  s_waitcnt vmcnt({min(vm,63)}) lgkmcnt({lg})")
        ab = 32*(jg % 2)
        for j in range(2):
            for i in range(4):
                acc = ab + 4*(j*4+i)
                c = f"a[{acc}:{acc+3}]" if kt > 0 else "0"
                a(f"  v_mfma_f32_16x16x32_bf16 a[{acc}:{acc+3}], {BB(n,j)}, {AA(n,i)}, {c}")
        if (kt == 2 and jg > 0) or n == len(steps)-1:
            gs = [jg-1] if kt == 2 else [jg]
            if n == len(steps)-1: a("  s_nop 7\n  s_nop 1")
            for g_ in gs:
                ab2 = 32*(g_ % 2)
                for j in range(2):
                    for i in range(4):
                        acc = ab2 + 4*(j*4+i)
                        a(f"  global_store_dwordx4 v{176+i}, a[{acc}:{acc+3}], s[12:13] offset:{(2*g_+j)*64} sc1")
                        vmq.append(('S', g_))
    st(2)
    a("  s_waitcnt vmcnt(0)")
    st(3)
    a(f"""  s_barrier
  s_lshl_b32 s10, s45, 2
  s_add_u32 s10, s10, 0x{CNT2:x}
  s_add_u32 s14, s6, s10
  s_addc_u32 s15, s7, 0
  v_mov_b32 v12, 0
  s_cmp_lg_u32 s8, 0
  s_cbranch_scc1 {P}_wait
  v_mov_b32 v13, 1
  s_mov_b64 s[56:57], exec
  s_mov_b64 exec, 1
  global_atomic_add v12, v13, s[14:15]
  s_mov_b32 s58, 0
{P}_poll:
  s_sleep 2
  global_load_dword v14, v12, s[14:15] sc1
  s_waitcnt vmcnt(0)
  v_readfirstlane_b32 s10, v14
  s_add_u32 s58, s58, 1
  s_cmp_gt_u32 s58, {LIMIT}
  s_cbranch_scc1 {P}_pdone
  s_cmp_lt_u32 s10, 8
  s_cbranch_scc1 {P}_poll
{P}_pdone:
  s_mov_b64 exec, s[56:57]
{P}_wait:
  s_barrier
""")
    st(4)
    a(f"""
  v_lshrrev_b32 v10, 5, v0
  v_and_b32 v11, 31, v0
  s_lshl_b32 s10, s44, 3
  v_add_u32 v10, s10, v10
  v_mul_u32_u24 v12, 2560, v10
  v_lshl_add_u32 v12, v11, 4, v12
  s_mul_i32 s10, s45, {8*64*2560}
  s_add_u32 s10, s10, 0x{PART2:x}
  s_add_u32 s12, s6, s10
  s_addc_u32 s13, s7, 0
  s_lshl_b32 s10, s45, 6
  v_add_u32 v13, s10, v10
  v_mul_u32_u24 v14, 0x500, v13
  v_lshl_add_u32 v14, v11, 3, v14""")
    for k in range(5):
        a(f"  global_load_dwordx2 v[{180+2*k}:{181+2*k}], v14, s[4:5] offset:{k*256}")
    for p in range(8):
        for k in range(5):
            r = 16+20*p+4*k
            a(f"  global_load_dwordx4 v[{r}:{r+3}], v12, s[12:13] offset:{k*512} sc1")
        a(f"  s_add_u32 s12, s12, {64*2560}\n  s_addc_u32 s13, s13, 0")
    for p in range(1, 8):
        a(f"  s_waitcnt vmcnt({5*(7-p)})")
        for i in range(0, 20, 2):
            a(f"  v_pk_add_f32 v[{16+i}:{17+i}], v[{16+i}:{17+i}], v[{16+20*p+i}:{17+20*p+i}]")
    a(f"  s_add_u32 s16, s6, 0x{H_RM:x}\n  s_addc_u32 s17, s7, 0")
    for k in range(5):
        b = 16+4*k
        a(f"""  v_cvt_pk_bf16_f32 v40, v{b}, v{b+1}
  v_cvt_pk_bf16_f32 v41, v{b+2}, v{b+3}
  v_lshlrev_b32 v{b}, 16, v40
  v_and_b32 v{b+1}, s54, v40
  v_lshlrev_b32 v{b+2}, 16, v41
  v_and_b32 v{b+3}, s54, v41
  v_lshlrev_b32 v42, 16, v{180+2*k}
  v_and_b32 v43, s54, v{180+2*k}
  v_lshlrev_b32 v44, 16, v{181+2*k}
  v_and_b32 v45, s54, v{181+2*k}
  v_add_f32 v{b}, v{b}, v42
  v_add_f32 v{b+1}, v{b+1}, v43
  v_add_f32 v{b+2}, v{b+2}, v44
  v_add_f32 v{b+3}, v{b+3}, v45
  v_cvt_pk_bf16_f32 v{50+2*k}, v{b}, v{b+1}
  v_cvt_pk_bf16_f32 v{51+2*k}, v{b+2}, v{b+3}
  v_lshlrev_b32 v{b}, 16, v{50+2*k}
  v_and_b32 v{b+1}, s54, v{50+2*k}
  v_lshlrev_b32 v{b+2}, 16, v{51+2*k}
  v_and_b32 v{b+3}, s54, v{51+2*k}
  global_store_dwordx2 v14, v[{50+2*k}:{51+2*k}], s[16:17] offset:{k*256}{SC}""")
    def red32(r, t):
        a(f"""  s_nop 1
  v_add_f32_dpp v{r}, v{r}, v{r} quad_perm:[1,0,3,2] row_mask:0xf bank_mask:0xf
  s_nop 1
  v_add_f32_dpp v{r}, v{r}, v{r} quad_perm:[2,3,0,1] row_mask:0xf bank_mask:0xf
  s_nop 1
  v_add_f32_dpp v{r}, v{r}, v{r} row_ror:4 row_mask:0xf bank_mask:0xf
  s_nop 1
  v_add_f32_dpp v{r}, v{r}, v{r} row_ror:8 row_mask:0xf bank_mask:0xf
  s_nop 1
  v_mov_b32 v{t}, v{r}
  s_nop 1
  v_permlane16_swap_b32 v{r}, v{t}
  v_add_f32 v{r}, v{r}, v{t}""")
    a("  v_add_f32 v60, v16, v17")
    for i in range(18, 36): a(f"  v_add_f32 v60, v60, v{i}")
    red32(60, 61)
    a("  v_mul_f32 v60, 0x3acccccd, v60\n  v_mov_b32 v62, 0")
    for i in range(16, 36): a(f"  v_sub_f32 v63, v{i}, v60\n  v_fmac_f32 v62, v63, v63")
    red32(62, 61)
    a(f"""  v_mul_f32 v62, 0x3acccccd, v62
  v_cvt_pk_bf16_f32 v64, v60, v62
  v_lshlrev_b32 v60, 16, v64
  v_and_b32 v62, s54, v64
  v_add_f32 v62, 0x3727c5ac, v62
  v_cvt_pk_bf16_f32 v64, v62, v62
  v_lshlrev_b32 v62, 16, v64
  v_sqrt_f32 v62, v62
  s_nop 0
  v_cvt_pk_bf16_f32 v64, v62, v62
  v_lshlrev_b32 v62, 16, v64
  v_rcp_f32 v63, v62
  s_nop 0
  v_fma_f32 v64, -v62, v63, 1.0
  v_fma_f32 v63, v64, v63, v63
  v_lshrrev_b32 v65, 4, v13
  v_mul_u32_u24 v65, 20480, v65
  v_and_b32 v66, 15, v13
  v_lshl_add_u32 v65, v66, 4, v65
  v_lshrrev_b32 v66, 3, v11
  v_lshl_add_u32 v65, v66, 10, v65
  v_bfe_u32 v66, v11, 1, 2
  v_lshl_add_u32 v65, v66, 8, v65
  v_and_b32 v66, 1, v11
  v_lshl_add_u32 v65, v66, 3, v65
  s_add_u32 s18, s6, 0x{HN_F:x}
  s_addc_u32 s19, s7, 0""")
    for k in range(5):
        b = 16+4*k
        a(f"""  v_sub_f32 v{b}, v{b}, v60
  v_sub_f32 v{b+1}, v{b+1}, v60
  v_sub_f32 v{b+2}, v{b+2}, v60
  v_sub_f32 v{b+3}, v{b+3}, v60
  v_cvt_pk_bf16_f32 v40, v{b}, v{b+1}
  v_cvt_pk_bf16_f32 v41, v{b+2}, v{b+3}
  v_lshlrev_b32 v{b}, 16, v40
  v_and_b32 v{b+1}, s54, v40
  v_lshlrev_b32 v{b+2}, 16, v41
  v_and_b32 v{b+3}, s54, v41
  v_mul_f32 v{b}, v{b}, v63
  v_mul_f32 v{b+1}, v{b+1}, v63
  v_mul_f32 v{b+2}, v{b+2}, v63
  v_mul_f32 v{b+3}, v{b+3}, v63
  v_cvt_pk_bf16_f32 v{70+2*k}, v{b}, v{b+1}
  v_cvt_pk_bf16_f32 v{71+2*k}, v{b+2}, v{b+3}
  global_store_dwordx2 v65, v[{70+2*k}:{71+2*k}], s[18:19]{SC}
  v_add_u32 v65, 0x1000, v65""")
```

```python
from common import *
from gen import A, kd, khead

L_WV   = 0
L_WO   = 81920
L_MEM  = 114688
L_SC   = 124928
L_O    = 137216
L_KV   = 141312
L_END  = 157696

class LK:
    def __init__(s, a): s.a = a; s.n = 0; s.done = 0
    def op(s, txt): s.a("  " + txt); s.n += 1; return s.n
    def wait(s, idn):
        if idn <= s.done: return
        c = s.n - idn
        s.a(f"  s_waitcnt lgkmcnt({min(c,15)})")
        s.done = idn if c <= 15 else s.n - 15
    def waitall(s):
        s.a("  s_waitcnt lgkmcnt(0)"); s.done = s.n

def wreg(n):
    return f"a[{4*n}:{4*n+3}]" if n < 64 else f"v[{112+4*(n-64)}:{112+4*(n-64)+3}]"

DBG_OFF = 0x9000000
def gen_chain(a, RS=10, CS=40, CS2=2, LIMIT=30000, DIAG=False, EMU=True, LOC=False, RC=15, FORCE_SLOW=False, LD=10):
    PSC = '' if LOC else ' sc1'
    name = "chain_kernel"
    def cyc(k):
        if DIAG: a(f"  s_memtime s[{72+2*k}:{73+2*k}]")
    def cycdump():
        if not DIAG: return
        a(f"""  s_lshl_b32 s64, s49, 8
  s_add_u32 s64, s64, s2
  s_lshl_b32 s64, s64, 2
  s_add_u32 s64, s64, s8
  s_lshl_b32 s64, s64, 6
  s_add_u32 s64, s64, 0x{DBG_OFF + 0x1000000:x}
  s_add_u32 s66, s6, s64
  s_addc_u32 s67, s7, 0
  s_waitcnt lgkmcnt(0)
  v_mov_b32 v97, 0
  s_mov_b64 s[68:69], exec
  s_mov_b64 exec, 1""")
        for k in range(10):
            a(f"  v_mov_b32 v110, s{72+2*k}\n  global_store_dword v97, v110, s[66:67] offset:{4*k}\n  s_nop 1")
        a("  s_mov_b64 exec, s[68:69]")
    def stamp(k, extra=None):
        if not DIAG: return
        a(f"""  s_memrealtime s[62:63]
  s_lshl_b32 s64, s49, 8
  s_add_u32 s64, s64, s2
  s_lshl_b32 s64, s64, 2
  s_add_u32 s64, s64, s8
  s_lshl_b32 s64, s64, 6
  s_add_u32 s64, s64, 0x{DBG_OFF + 0:x}
  s_add_u32 s66, s6, s64
  s_addc_u32 s67, s7, 0
  s_waitcnt lgkmcnt(0)
  v_mov_b32 v110, s62
  v_mov_b32 v111, {'s60' if extra else 's63'}
  v_mov_b32 v97, 0
  s_mov_b64 s[68:69], exec
  s_mov_b64 exec, 1
  global_store_dwordx2 v97, v[110:111], s[66:67] offset:{8*k}
  s_mov_b64 exec, s[68:69]""")
    khead(a, name)
    a(f"""
  s_cmp_ge_u32 s2, 256
  s_cbranch_scc1 chain_done
  s_load_dwordx2 s[4:5], s[0:1], 8       ; mem0
  s_load_dwordx2 s[6:7], s[0:1], 104     ; ws
  v_lshrrev_b32 v2, 6, v0
  v_and_b32 v3, 63, v0                   ; lane
  s_nop 0
  v_readfirstlane_b32 s8, v2             ; wave
  v_lshlrev_b32 v1, 4, v3                ; lane*16
  v_and_b32 v4, 15, v3                   ; m
  v_lshrrev_b32 v5, 4, v3                ; g
  s_load_dwordx2 s[70:71], s[0:1], 96
  s_getreg_b32 s61, hwreg(HW_REG_XCC_ID)
  s_and_b32 s61, s61, 15
  s_mov_b32 s94, 0
  s_mov_b32 s95, 0
  s_waitcnt lgkmcnt(0)
  s_mov_b64 s[12:13], s[6:7]
  s_mov_b64 s[14:15], s[6:7]
  s_mov_b64 s[16:17], s[6:7]
  s_mov_b64 s[18:19], s[6:7]
  s_mov_b64 s[20:21], s[6:7]
  s_mov_b64 s[22:23], s[6:7]
  s_mov_b64 s[24:25], s[6:7]
  s_mov_b64 s[26:27], s[6:7]
  s_mov_b64 s[28:29], s[6:7]
  s_mov_b64 s[30:31], s[6:7]
  s_mov_b64 s[32:33], s[6:7]
  s_mov_b64 s[34:35], s[6:7]
  s_mov_b64 s[36:37], s[6:7]
  s_mov_b64 s[38:39], s[6:7]
  s_mov_b64 s[40:41], s[6:7]
  s_mov_b64 s[42:43], s[6:7]
  s_mov_b64 s[44:45], s[6:7]
  s_mov_b64 s[58:59], s[6:7]
  s_mov_b64 s[92:93], s[6:7]
  s_mov_b64 s[96:97], s[6:7]
  v_mov_b32 v2, 0
  v_mov_b32 v6, 0
  v_mov_b32 v7, 0
  v_mov_b32 v8, 0
  v_mov_b32 v9, 0
  v_mov_b32 v10, 0
  v_mov_b32 v11, 0
  v_mov_b32 v12, 0
  v_mov_b32 v13, 0
  v_mov_b32 v14, 0
  v_mov_b32 v15, 0
  s_cmp_lg_u32 s8, 0
  s_cbranch_scc1 chain_tk_wait
  s_min_u32 s11, s61, 8
  s_lshl_b32 s11, s11, 2
  v_mov_b32 v16, s11
  v_mov_b32 v17, 1
  v_mov_b32 v19, 64
  s_mov_b64 s[56:57], exec
  s_mov_b64 exec, 1
  global_atomic_add v18, v16, v17, s[70:71] sc0
  s_waitcnt vmcnt(0)
  global_atomic_add v19, v17, s[70:71]
  v_mov_b32 v16, {L_O}
  ds_write_b32 v16, v18
  s_waitcnt vmcnt(0) lgkmcnt(0)
  s_mov_b64 exec, s[56:57]
chain_tk_wait:
  s_barrier
  v_mov_b32 v16, {L_O}
  ds_read_b32 v18, v16
  s_waitcnt lgkmcnt(0)
  s_nop 0
  v_readfirstlane_b32 s9, v18            ; h = ticket
  s_mov_b32 s10, s61                     ; j = xcc
  s_mov_b32 s65, 0
  s_mov_b32 s51, 1
  s_cmp_lt_u32 s9, 32
  s_cselect_b32 s11, 1, 0
  s_cmp_lt_u32 s10, 8
  s_cselect_b32 s11, s11, 0
  s_cmp_eq_u32 s11, 1
  s_cbranch_scc1 chain_setup
chain_slow:
  s_mov_b32 s11, 0x33333334
  s_mul_hi_u32 s9, s2, s11
  s_mul_i32 s11, s9, 5
  s_sub_u32 s10, s2, s11                 ; j = wg%5
  s_mov_b32 s51, 0
  s_cmp_lt_u32 s2, 160
  s_cbranch_scc1 chain_setup
  s_sub_u32 s11, s2, 160
  s_lshr_b32 s10, s11, 5
  s_add_u32 s10, s10, 5
  s_and_b32 s9, s11, 31
chain_setup:
  s_cmp_ge_u32 s10, 5
  s_cbranch_scc1 chain_verify
  s_lshl_b32 s11, s9, 3
  s_lshl_b32 s12, s8, 1
  s_add_u32 s11, s11, s12
  s_mul_i32 s11, s11, 20480
  s_add_u32 s11, s11, 0x{WQKV_F:x}
  s_add_u32 s14, s6, s11
  s_addc_u32 s15, s7, 0                  ; q t0
  s_add_u32 s16, s14, 20480
  s_addc_u32 s17, s15, 0                 ; q t1
  s_add_u32 s18, s14, {256*20480}
  s_addc_u32 s19, s15, 0                 ; k t0
  s_add_u32 s20, s18, 20480
  s_addc_u32 s21, s19, 0
  s_add_u32 s22, s18, {256*20480}
  s_addc_u32 s23, s19, 0                 ; v t0
  s_add_u32 s24, s22, 20480
  s_addc_u32 s25, s23, 0
  v_mov_b32 v6, v1
""")
    for kt in range(20):
        for q in range(4):
            a(f"  global_load_dwordx4 {wreg(kt*4+q)}, v6, s[{14+2*q}:{15+2*q}]")
        if kt < 10:
            for t in range(2):
                a(f"  global_load_dwordx4 {wreg(80+kt*2+t)}, v6, s[{22+2*t}:{23+2*t}]")
        else:
            for t in range(2):
                a(f"""  s_mul_i32 s26, s8, 20480
  s_add_u32 m0, s26, {L_WV + ((kt-10)*2+t)*1024}
  s_nop 0
  global_load_lds_dwordx4 v6, s[{22+2*t}:{23+2*t}]""")
        a("  v_add_u32 v6, 0x400, v6")
    a(f"""
  s_mul_i32 s11, s10, {8*OSTR}
  s_lshl_b32 s12, s9, 2
  s_add_u32 s11, s11, s12
  s_add_u32 s11, s11, s8
  s_lshl_b32 s11, s11, 10
  s_add_u32 s11, s11, 0x{WO_F:x}
  s_add_u32 s26, s6, s11
  s_addc_u32 s27, s7, 0
  s_lshl_b32 s12, s8, 10""")
    for c in range(8):
        a(f"""  s_add_u32 m0, s12, {L_WO + c*4096}
  s_nop 0
  global_load_lds_dwordx4 v1, s[26:27]
  s_add_u32 s26, s26, {OSTR*1024}
  s_addc_u32 s27, s27, 0""")
    a(f"""
  s_mul_i32 s11, s8, 160
  v_add_u32 v8, s11, v3                  ; c0
  v_lshlrev_b32 v9, 4, v8
  v_add_u32 v10, {L_MEM}, v9
  v_and_b32 v11, 7, v8
  v_mul_u32_u24 v11, 0x500, v11
  v_lshrrev_b32 v12, 5, v8
  v_lshl_add_u32 v11, v12, 6, v11
  v_bfe_u32 v12, v8, 3, 2
  v_lshl_add_u32 v11, v12, 4, v11
  v_lshrrev_b32 v12, 1, v5
  v_lshlrev_b32 v12, 13, v12
  v_lshrrev_b32 v13, 2, v4
  v_lshl_add_u32 v12, v13, 12, v12
  v_and_b32 v13, 3, v4
  v_lshl_add_u32 v12, v13, 5, v12
  v_and_b32 v13, 1, v5
  v_lshl_add_u32 v12, v13, 4, v12
  v_lshlrev_b32 v13, 3, v3               ; lane*8
  s_lshl_b32 s11, s10, 17
  s_lshl_b32 s12, s9, 7
  s_add_u32 s11, s11, s12
  s_lshl_b32 s12, s8, 15
  s_add_u32 s11, s11, s12
  s_add_u32 s11, s11, 0x{P_OFF:x}
  s_add_u32 s28, s6, s11
  s_addc_u32 s29, s7, 0
  s_lshl_b32 s11, s10, 5
  s_add_u32 s11, s11, s9                 ; r = 32*j + h
  s_lshl_b32 s12, s11, 12
  s_add_u32 s12, s12, 0x{P_OFF:x}
  s_add_u32 s30, s6, s12
  s_addc_u32 s31, s7, 0
  s_lshl_b32 s12, s11, 6
  s_add_u32 s12, s12, 0x{MB_OFF + 10240:x}
  s_add_u32 s32, s6, s12
  s_addc_u32 s33, s7, 0
  s_mul_i32 s12, s10, {MB_STRIDE}
  s_add_u32 s12, s12, 0x{MB_OFF + 10240:x}
  s_add_u32 s34, s6, s12
  s_addc_u32 s35, s7, 0
  v_lshrrev_b32 v2, 3, v3
  v_mul_u32_u24 v2, {MB_STRIDE}, v2
  v_and_b32 v7, 7, v3
  v_lshl_add_u32 v2, v7, 3, v2
  s_lshl_b32 s12, s10, 7
  s_add_u32 s12, s12, 0x{LF_OFF:x}
  s_add_u32 s92, s6, s12
  s_addc_u32 s93, s7, 0
  s_lshl_b32 s94, s9, 2
  s_mov_b32 s36, 1
  s_cmp_eq_u32 s8, 3
  s_cselect_b32 s36, s36, 0
  s_lshl_b32 s11, s9, 13
  s_lshl_b32 s12, s8, 11
  s_add_u32 s11, s11, s12
  s_add_u32 s12, s11, 0x{K_F:x}
  s_add_u32 s38, s6, s12
  s_addc_u32 s39, s7, 0
  s_add_u32 s12, s11, 0x{V_F:x}
  s_add_u32 s40, s6, s12
  s_addc_u32 s41, s7, 0
  s_lshl_b32 s11, s9, 12
  s_lshl_b32 s12, s8, 10
  s_add_u32 s11, s11, s12
  s_add_u32 s12, s11, 0x{KM_F:x}
  s_add_u32 s42, s6, s12
  s_addc_u32 s43, s7, 0
  s_add_u32 s12, s11, 0x{VM_F:x}
  s_add_u32 s44, s6, s12
  s_addc_u32 s45, s7, 0
  v_lshrrev_b32 v7, 3, v4
  v_mul_u32_u24 v7, 6144, v7
  v_and_b32 v14, 7, v4
  v_lshl_add_u32 v7, v14, 4, v7
  v_lshl_add_u32 v7, v5, 8, v7
  v_add_u32 v7, {L_SC}, v7
  v_and_b32 v14, 7, v4
  v_lshlrev_b32 v14, 4, v14
  v_lshl_add_u32 v14, v5, 7, v14
  v_add_u32 v14, {L_MEM}, v14
  s_mul_i32 s11, s8, 20480
  v_add_u32 v15, s11, v1
  s_mul_i32 s46, s8, 3072
  s_add_u32 s46, s46, {L_SC}
  s_lshl_b32 s47, s8, 10
  s_add_u32 s47, s47, {L_O}
  s_lshl_b32 s48, s8, 13
  s_add_u32 s48, s48, {L_WO}
  s_mov_b32 s49, 0                       ; step
  s_mov_b32 s50, 0
  s_mov_b32 s52, 0x3db504f3              ; scale
  s_mov_b32 s53, {0x3fb8aa3b if EMU else 0x3e0293ee}
  s_mov_b32 s54, 0xffff0000
  s_lshl_b32 s95, s8, 12
  s_add_u32 s95, s95, {L_KV}
  v_add_u32 v6, s95, v1
  s_mov_b32 m0, s95
  s_nop 0
  global_load_lds_dwordx4 v1, s[38:39]
  global_load_lds_dwordx4 v1, s[38:39] offset:1024
  s_add_u32 m0, s95, 2048
  s_nop 0
  global_load_lds_dwordx4 v1, s[40:41]
  global_load_lds_dwordx4 v1, s[40:41] offset:1024
  v_mov_b32 v24, 0
  v_mov_b32 v25, 0
  v_mov_b32 v26, 0
  v_mov_b32 v27, 0
  global_load_dwordx4 v[16:19], v11, s[4:5]
  global_load_dwordx4 v[20:23], v11, s[4:5] offset:128
  v_cmp_gt_u32 vcc, 32, v3
  s_and_saveexec_b64 s[56:57], vcc
  global_load_dwordx4 v[24:27], v11, s[4:5] offset:256
  s_mov_b64 exec, s[56:57]
chain_verify:
  s_waitcnt vmcnt(0) lgkmcnt(0)
  s_cmp_eq_u32 s65, 1
  s_cbranch_scc1 chain_verified
  s_mov_b32 s60, 0
  v_lshlrev_b32 v28, 2, v3
  s_cmp_lg_u32 s8, 0
  s_cbranch_scc1 chain_vwait
chain_vpoll:
  s_sleep 4
  v_mov_b32 v29, 32
  v_cmp_gt_u32 vcc, 17, v3
  s_and_saveexec_b64 s[56:57], vcc
  global_load_dword v29, v28, s[70:71] sc1
  s_mov_b64 exec, s[56:57]
  s_waitcnt vmcnt(0)
  v_readlane_b32 s11, v29, 16
  s_add_u32 s60, s60, 1
  s_cmp_gt_u32 s60, {LIMIT}
  s_cbranch_scc1 chain_vdone
  s_cmp_lt_u32 s11, 256
  s_cbranch_scc1 chain_vpoll
chain_vdone:
  v_mov_b32 v29, {33 if FORCE_SLOW else 32}
  v_cmp_gt_u32 vcc, 8, v3
  s_and_saveexec_b64 s[56:57], vcc
  global_load_dword v29, v28, s[70:71] sc1
  s_mov_b64 exec, s[56:57]
  s_waitcnt vmcnt(0)
  v_cmp_ne_u32 vcc, 32, v29
  s_mov_b32 s11, 0
  s_cbranch_vccz chain_vok
  s_mov_b32 s11, 1
chain_vok:
  v_mov_b32 v29, s11
  v_mov_b32 v30, {L_O + 64}
  ds_write_b32 v30, v29
  s_waitcnt lgkmcnt(0)
chain_vwait:
  s_barrier
  v_mov_b32 v30, {L_O + 64}
  ds_read_b32 v29, v30
  s_waitcnt lgkmcnt(0)
  s_nop 0
  v_readfirstlane_b32 s11, v29
  s_mov_b32 s65, 1
  s_nop 2
  s_cmp_eq_u32 s11, 0
  s_cbranch_scc1 chain_verified
  s_barrier
  s_branch chain_slow
chain_verified:
  s_barrier
  s_cmp_ge_u32 s10, 5
  s_cbranch_scc1 chain_bulk
chain_step:
""")
    stamp(0)
    a("""
  ds_read_b128 v[72:75], v6
  ds_read_b128 v[76:79], v6 offset:1024
  ds_read_b128 v[80:83], v6 offset:2048
  ds_read_b128 v[84:87], v6 offset:3072
  ds_write_b128 v10, v[16:19]
  ds_write_b128 v10, v[20:23] offset:1024
  v_cmp_gt_u32 vcc, 32, v3
  s_and_saveexec_b64 s[56:57], vcc
  ds_write_b128 v10, v[24:27] offset:2048
  s_mov_b64 exec, s[56:57]
  s_add_u32 s38, s38, 0x40000
  s_addc_u32 s39, s39, 0
  s_add_u32 s40, s40, 0x40000
  s_addc_u32 s41, s41, 0
  s_waitcnt lgkmcnt(0)
  s_barrier
  s_cmp_eq_u32 s49, 63
  s_cbranch_scc1 chain_nokv
  s_mov_b32 m0, s95
  s_nop 0
  global_load_lds_dwordx4 v1, s[38:39]
  global_load_lds_dwordx4 v1, s[38:39] offset:1024
  s_add_u32 m0, s95, 2048
  s_nop 0
  global_load_lds_dwordx4 v1, s[40:41]
  global_load_lds_dwordx4 v1, s[40:41] offset:1024
chain_nokv:
""")
    cyc(0)
    lk = LK(a)
    MB = lambda b: f"v[{16+4*b}:{19+4*b}]"
    QA = ["v[48:51]", "v[52:55]", "v[56:59]", "v[60:63]"]
    VA = ["v[64:67]", "v[68:71]"]
    WB = lambda b, t: f"v[{32+8*b+4*t}:{35+8*b+4*t}]"
    ids = {}; wid = {}
    for kt in range(3): ids[kt] = lk.op(f"ds_read_b128 {MB(kt%4)}, v14 offset:{kt*512}")
    for kt in range(20):
        if kt+3 < 20: ids[kt+3] = lk.op(f"ds_read_b128 {MB((kt+3)%4)}, v14 offset:{(kt+3)*512}")
        if kt in (8, 9):
            for t in range(2): wid[(kt+2,t)] = lk.op(f"ds_read_b128 {WB((kt+2)%2,t)}, v15 offset:{((kt+2-10)*2+t)*1024}")
        lk.wait(ids[kt])
        for q in range(4):
            c = QA[q] if kt > 0 else "0"
            a(f"  v_mfma_f32_16x16x32_bf16 {QA[q]}, {wreg(kt*4+q)}, {MB(kt%4)}, {c}")
        if kt >= 10:
            lk.wait(wid[(kt,1)])
            for t in range(2):
                c = VA[t] if kt > 10 else "0"
                a(f"  v_mfma_f32_16x16x32_bf16 {VA[t]}, {MB(kt%4)}, {WB(kt%2,t)}, {c}")
            if kt+2 < 20:
                for t in range(2): wid[(kt+2,t)] = lk.op(f"ds_read_b128 {WB((kt+2)%2,t)}, v15 offset:{((kt+2-10)*2+t)*1024}")
        if kt >= 17:
            pass
    cyc(1)
    ids2 = {}
    MB2 = lambda kt: f"v[{32+4*(kt%4)}:{35+4*(kt%4)}]"
    def issue2(kt):
        if kt >= 10: return
        ids2[kt] = lk.op(f"ds_read_b128 {MB2(kt)}, v14 offset:{kt*512}")
    state = {'k': 0}
    def fill(n=1):
        for _ in range(n):
            k = state['k']
            if k >= 20: return
            kt, t = k//2, k%2
            lk.wait(ids2[kt])
            a(f"  v_mfma_f32_16x16x32_bf16 {VA[t]}, {MB2(kt)}, {wreg(80+kt*2+t)}, {VA[t]}")
            if t == 1: issue2(kt+3)
            state['k'] += 1
    def crit(txt, every=4):
        n = 0
        for ln in txt.strip('\n').split('\n'):
            a(ln); n += 1
            if n % every == 0: fill(1)
    issue2(0); issue2(1); issue2(2)
    a("  s_nop 4")
    a("""  v_cvt_pk_bf16_f32 v88, v48, v49
  v_cvt_pk_bf16_f32 v89, v50, v51
  v_cvt_pk_bf16_f32 v90, v52, v53
  v_cvt_pk_bf16_f32 v91, v54, v55
  v_cvt_pk_bf16_f32 v92, v56, v57
  v_cvt_pk_bf16_f32 v93, v58, v59
  v_cvt_pk_bf16_f32 v94, v60, v61
  v_cvt_pk_bf16_f32 v95, v62, v63
  s_cmp_eq_u32 s49, 63
  s_cbranch_scc1 chain_last
  v_mfma_f32_16x16x32_bf16 v[48:51], v[92:95], v[88:91], 0
  v_mfma_f32_16x16x32_bf16 v[52:55], v[72:75], v[88:91], 0
  v_mfma_f32_16x16x32_bf16 v[56:59], v[76:79], v[88:91], 0""")
    fill(2)
    a(f"""  v_add_u32 v96, s46, v1
  v_add_u32 v97, {L_SC}, v1
  v_mov_b32 v98, s52
  v_mov_b32 v99, s52
  s_nop 1""")
    lk.op("ds_write_b128 v96, v[48:51]")
    lk.op("ds_write_b128 v96, v[52:55] offset:1024")
    lk.op("ds_write_b128 v96, v[56:59] offset:2048")
    fill(2)
    cyc(2)
    lk.waitall()
    a("  s_barrier")
    cyc(3)
    r0 = [lk.op(f"ds_read_b128 v[{48+4*t}:{51+4*t}], v7 offset:{t*1024}") for t in range(3)]
    r1 = [lk.op(f"ds_read_b128 v[{100+4*t}:{103+4*t}], v7 offset:{3072+t*1024}") for t in range(3)]
    fill(3)
    lk.wait(r1[2])
    crit("\n".join(f"  v_pk_add_f32 v[{48+i}:{49+i}], v[{48+i}:{49+i}], v[{100+i}:{101+i}]" for i in range(0, 12, 2)), 3)
    crit("\n".join(f"  v_add_f32_dpp v{48+i}, v{48+i}, v{48+i} row_ror:8 row_mask:0xf bank_mask:0xf" for i in range(12)), 4)
    cyc(4)
    t = ""
    if EMU:
        for i in range(0, 12, 2): t += f"  v_cvt_pk_bf16_f32 v{100+i//2}, v{48+i}, v{49+i}\n"
        for i in range(0, 12, 2): t += f"  v_lshlrev_b32 v{48+i}, 16, v{100+i//2}\n  v_and_b32 v{49+i}, s54, v{100+i//2}\n"
        for i in range(0, 12, 2): t += f"  v_pk_mul_f32 v[{48+i}:{49+i}], v[{48+i}:{49+i}], v[98:99]\n"
        for i in range(0, 12, 2): t += f"  v_cvt_pk_bf16_f32 v{100+i//2}, v{48+i}, v{49+i}\n"
        for i in range(0, 12, 2): t += f"  v_lshlrev_b32 v{48+i}, 16, v{100+i//2}\n  v_and_b32 v{49+i}, s54, v{100+i//2}\n"
    t += """  v_mov_b32 v101, 0xff800000
  v_cmp_lt_u32 vcc, 31, v3
  v_max3_f32 v100, v52, v53, v54
  v_max3_f32 v102, v55, v56, v57
  v_cndmask_b32 v48, v48, v101, vcc
  v_cndmask_b32 v49, v49, v101, vcc
  v_cndmask_b32 v50, v50, v101, vcc
  v_cndmask_b32 v51, v51, v101, vcc
  v_max3_f32 v100, v100, v58, v59
  v_max3_f32 v102, v102, v48, v49
  v_max3_f32 v100, v100, v50, v51
  v_max_f32 v100, v100, v102
  s_nop 0
  v_mov_b32 v101, v100
  s_nop 1
  v_permlane16_swap_b32 v100, v101
  v_max_f32 v100, v100, v101
  s_nop 0
  v_mov_b32 v101, v100
  s_nop 1
  v_permlane32_swap_b32 v100, v101
  v_max_f32 v100, v100, v101
  v_mul_f32 v100, s53, v100
  v_mov_b32 v102, s53
"""
    for i in range(12): t += f"  v_fma_f32 v{48+i}, v{48+i}, v102, -v100\n"
    for i in range(12): t += f"  v_exp_f32 v{48+i}, v{48+i}\n"
    t += """  v_pk_add_f32 v[100:101], v[48:49], v[50:51]
  v_pk_add_f32 v[102:103], v[52:53], v[54:55]
  v_pk_add_f32 v[104:105], v[56:57], v[58:59]
  v_pk_add_f32 v[100:101], v[100:101], v[102:103]
  v_pk_add_f32 v[100:101], v[100:101], v[104:105]
  v_add_f32 v100, v100, v101
  s_nop 0
  v_mov_b32 v101, v100
  s_nop 1
  v_permlane16_swap_b32 v100, v101
  v_add_f32 v100, v100, v101
  s_nop 0
  v_mov_b32 v101, v100
  s_nop 1
  v_permlane32_swap_b32 v100, v101
  v_add_f32 v100, v100, v101
  v_rcp_f32 v102, v100
  s_nop 0
  v_fma_f32 v103, -v100, v102, 1.0
  v_fma_f32 v102, v103, v102, v102
  v_mov_b32 v103, v102
"""
    crit(t, 4)
    cyc(5)
    fill(40)
    cyc(6)
    t = ""
    for i in range(0, 12, 2): t += f"  v_pk_mul_f32 v[{48+i}:{49+i}], v[{48+i}:{49+i}], v[102:103]\n"
    a(t)
    a("""  v_cvt_pk_bf16_f32 v100, v48, v49
  v_cvt_pk_bf16_f32 v101, v50, v51
  v_cvt_pk_bf16_f32 v104, v52, v53
  v_cvt_pk_bf16_f32 v105, v54, v55
  v_cvt_pk_bf16_f32 v106, v56, v57
  v_cvt_pk_bf16_f32 v107, v58, v59
  v_add_u32 v108, s47, v1
  v_add_u32 v109, s48, v1
  ds_read_b128 v[16:19], v109
  ds_read_b128 v[20:23], v109 offset:1024
  v_mfma_f32_16x16x32_bf16 v[48:51], v[80:83], v[104:107], 0
  v_mfma_f32_16x16x32_bf16 v[52:55], v[84:87], v[104:107], 0
  ds_read_b128 v[24:27], v109 offset:2048
  ds_read_b128 v[28:31], v109 offset:3072
  v_cvt_pk_bf16_f32 v96, v64, v65
  v_cvt_pk_bf16_f32 v97, v66, v67
  v_cvt_pk_bf16_f32 v98, v68, v69
  v_cvt_pk_bf16_f32 v99, v70, v71
  s_nop 3
  v_mfma_f32_16x16x16_bf16 v[48:51], v[96:97], v[100:101], v[48:51]
  v_mfma_f32_16x16x16_bf16 v[52:55], v[98:99], v[100:101], v[52:55]
  s_nop 7
  v_cvt_pk_bf16_f32 v56, v48, v49
  v_cvt_pk_bf16_f32 v57, v50, v51
  v_cvt_pk_bf16_f32 v58, v52, v53
  v_cvt_pk_bf16_f32 v59, v54, v55
  ds_write_b128 v108, v[56:59]
""")
    cyc(7)
    a("""  s_waitcnt lgkmcnt(0)
  s_barrier
""")
    cyc(8)
    a(f"""  v_add_u32 v108, {L_O}, v1
  ds_read_b128 v[32:35], v108
  ds_read_b128 v[36:39], v108 offset:1024
  ds_read_b128 v[40:43], v108 offset:2048
  ds_read_b128 v[44:47], v108 offset:3072
  ds_read_b128 v[48:51], v109 offset:4096
  ds_read_b128 v[52:55], v109 offset:5120
  ds_read_b128 v[56:59], v109 offset:6144
  ds_read_b128 v[60:63], v109 offset:7168
  s_waitcnt lgkmcnt(4)
  v_mfma_f32_16x16x32_bf16 v[100:103], v[16:19], v[32:35], 0
  v_mfma_f32_16x16x32_bf16 v[100:103], v[20:23], v[36:39], v[100:103]
  v_mfma_f32_16x16x32_bf16 v[100:103], v[24:27], v[40:43], v[100:103]
  v_mfma_f32_16x16x32_bf16 v[100:103], v[28:31], v[44:47], v[100:103]
  s_waitcnt lgkmcnt(0)
  v_mfma_f32_16x16x32_bf16 v[104:107], v[48:51], v[32:35], 0
  v_mfma_f32_16x16x32_bf16 v[104:107], v[52:55], v[36:39], v[104:107]
  v_mfma_f32_16x16x32_bf16 v[104:107], v[56:59], v[40:43], v[104:107]
  v_mfma_f32_16x16x32_bf16 v[104:107], v[60:63], v[44:47], v[104:107]
chain_wo1:
  s_add_u32 s58, s28, s50
  s_addc_u32 s59, s29, 0
  v_cmp_gt_u32 vcc, 8, v4
  s_and_saveexec_b64 s[56:57], vcc
  s_nop 7
  s_add_u32 s96, s58, 16384
  s_addc_u32 s97, s59, 0
  s_cmp_eq_u32 s51, 0
  s_cbranch_scc1 chain_st_slow
  global_store_dwordx4 v12, v[100:103], s[58:59]
  global_store_dwordx4 v12, v[104:107], s[96:97]
  s_branch chain_st1
chain_st_slow:
  global_store_dwordx4 v12, v[100:103], s[58:59] sc1
  global_store_dwordx4 v12, v[104:107], s[96:97] sc1
chain_st1:
  s_mov_b64 exec, s[56:57]
""")
    cyc(9)
    stamp(3)
    cycdump()
    a(f"""
  s_add_u32 s11, s49, 2
  s_and_b32 s12, s11, 7
  s_cmp_lg_u32 s12, 0
  s_cbranch_scc1 chain_kvok
  s_cmp_ge_u32 s11, 64
  s_cbranch_scc1 chain_kvok
  s_lshr_b32 s11, s11, 3
  s_lshl_b32 s11, s11, 2
  s_add_u32 s11, s11, 128
  v_mov_b32 v28, s11
  s_mov_b32 s60, 0
chain_kvpoll:
  global_load_dword v29, v28, s[70:71] sc1
  s_waitcnt vmcnt(0)
  v_readfirstlane_b32 s12, v29
  s_add_u32 s60, s60, 1
  s_cmp_gt_u32 s60, {LIMIT}
  s_cbranch_scc1 chain_kvok
  s_cmp_ge_u32 s12, 64
  s_cbranch_scc1 chain_kvok
  s_sleep 8
  s_branch chain_kvpoll
chain_kvok:
  ; ---- reducer
  s_cmp_eq_u32 s36, 0
  s_cbranch_scc1 chain_cons
  s_add_u32 s58, s30, s50
  s_addc_u32 s59, s31, 0
  s_mov_b32 s60, 0
  s_cmp_eq_u32 s51, 1
  s_cbranch_scc1 chain_rpoll
  s_sleep 16
chain_rpoll:
  s_sleep {RS}
  global_load_dwordx4 v[16:19], v1, s[58:59] sc1
  global_load_dwordx4 v[20:23], v1, s[58:59] offset:1024 sc1
  global_load_dwordx4 v[24:27], v1, s[58:59] offset:2048 sc1
  global_load_dwordx4 v[28:31], v1, s[58:59] offset:3072 sc1
  s_waitcnt vmcnt(0)
  v_max3_u32 v32, v16, v17, v18
  v_max3_u32 v33, v19, v20, v21
  v_max3_u32 v34, v22, v23, v24
  v_max3_u32 v35, v25, v26, v27
  v_max3_u32 v32, v32, v28, v29
  v_max3_u32 v33, v33, v30, v31
  v_max3_u32 v32, v32, v34, v35
  v_max_u32 v32, v32, v33
  v_cmp_eq_u32 vcc, -1, v32
  s_add_u32 s60, s60, 1
  s_cmp_gt_u32 s60, {LIMIT}
  s_cbranch_scc1 chain_rdone
  s_cbranch_vccnz chain_rpoll
chain_rdone:
  v_add_f32 v16, v16, v20
  v_add_f32 v17, v17, v21
  v_add_f32 v18, v18, v22
  v_add_f32 v19, v19, v23
  v_add_f32 v24, v24, v28
  v_add_f32 v25, v25, v29
  v_add_f32 v26, v26, v30
  v_add_f32 v27, v27, v31
  v_add_f32 v16, v16, v24
  v_add_f32 v17, v17, v25
  v_add_f32 v18, v18, v26
  v_add_f32 v19, v19, v27
  s_nop 1
  v_add_f32_dpp v16, v16, v16 row_ror:8 row_mask:0xf bank_mask:0xf
  v_add_f32_dpp v17, v17, v17 row_ror:8 row_mask:0xf bank_mask:0xf
  v_add_f32_dpp v18, v18, v18 row_ror:8 row_mask:0xf bank_mask:0xf
  v_add_f32_dpp v19, v19, v19 row_ror:8 row_mask:0xf bank_mask:0xf
  v_mov_b32 v20, v16
  v_mov_b32 v21, v17
  v_mov_b32 v22, v18
  v_mov_b32 v23, v19
  s_nop 1
  v_permlane16_swap_b32 v16, v20
  v_permlane16_swap_b32 v17, v21
  v_permlane16_swap_b32 v18, v22
  v_permlane16_swap_b32 v19, v23
  v_add_f32 v16, v16, v20
  v_add_f32 v17, v17, v21
  v_add_f32 v18, v18, v22
  v_add_f32 v19, v19, v23
  v_mov_b32 v20, v16
  v_mov_b32 v21, v17
  v_mov_b32 v22, v18
  v_mov_b32 v23, v19
  s_nop 1
  v_permlane32_swap_b32 v16, v20
  v_permlane32_swap_b32 v17, v21
  v_permlane32_swap_b32 v18, v22
  v_permlane32_swap_b32 v19, v23
  v_add_f32 v16, v16, v20
  v_add_f32 v17, v17, v21
  v_add_f32 v18, v18, v22
  v_add_f32 v19, v19, v23
  v_cvt_pk_bf16_f32 v20, v16, v17
  v_cvt_pk_bf16_f32 v21, v18, v19
  global_store_dwordx2 v2, v[20:21], s[32:33] sc1
  v_mov_b32 v24, -1
  v_mov_b32 v25, -1
  v_mov_b32 v26, -1
  v_mov_b32 v27, -1
  s_cmp_eq_u32 s51, 0
  s_cbranch_scc1 chain_rc_slow
  v_mov_b32 v28, s94
  v_mov_b32 v29, 1
  s_mov_b64 s[56:57], exec
  s_mov_b64 exec, 1
  global_store_dword v28, v29, s[92:93]
  s_mov_b64 exec, s[56:57]
  global_store_dwordx4 v1, v[24:27], s[58:59]
  global_store_dwordx4 v1, v[24:27], s[58:59] offset:1024
  global_store_dwordx4 v1, v[24:27], s[58:59] offset:2048
  global_store_dwordx4 v1, v[24:27], s[58:59] offset:3072
  s_branch chain_rc_done
chain_rc_slow:
  global_store_dwordx4 v1, v[24:27], s[58:59] sc1
  global_store_dwordx4 v1, v[24:27], s[58:59] offset:1024 sc1
  global_store_dwordx4 v1, v[24:27], s[58:59] offset:2048 sc1
  global_store_dwordx4 v1, v[24:27], s[58:59] offset:3072 sc1
chain_rc_done:
  s_add_u32 s32, s32, 10240
  s_addc_u32 s33, s33, 0
""")
    stamp(4, True)
    a(f"""
  s_mov_b32 s60, 0
  s_cmp_eq_u32 s51, 1
  s_cbranch_scc1 chain_lf
  s_sleep 22
  s_branch chain_cpoll2
chain_cons:
  s_mov_b32 s60, 0
  s_cmp_eq_u32 s51, 1
  s_cbranch_scc1 chain_lf0
  s_sleep 58
  s_branch chain_cpoll2
chain_lf0:
  s_sleep {CS}
chain_lf:
  v_lshlrev_b32 v28, 2, v3
chain_lfpoll:
  s_sleep 1
  v_mov_b32 v29, 0
  v_cmp_gt_u32 vcc, 32, v3
  s_and_saveexec_b64 s[56:57], vcc
  global_load_dword v29, v28, s[92:93] sc1
  s_mov_b64 exec, s[56:57]
  s_waitcnt vmcnt(0)
  v_cmp_eq_u32 vcc, -1, v29
  s_add_u32 s60, s60, 1
  s_cmp_gt_u32 s60, {LIMIT}
  s_cbranch_scc1 chain_lfdone
  s_cbranch_vccnz chain_lfpoll
chain_lfdone:
  s_mov_b32 s60, 0
  s_sleep {LD}
chain_cpoll2:
  v_mov_b32 v24, 0
  v_mov_b32 v25, 0
  v_mov_b32 v26, 0
  v_mov_b32 v27, 0
chain_cpoll:
  s_sleep {CS2}
  global_load_dwordx4 v[16:19], v9, s[34:35] sc1
  global_load_dwordx4 v[20:23], v9, s[34:35] offset:1024 sc1
  v_cmp_gt_u32 vcc, 32, v3
  s_and_saveexec_b64 s[56:57], vcc
  global_load_dwordx4 v[24:27], v9, s[34:35] offset:2048 sc1
  s_mov_b64 exec, s[56:57]
  s_waitcnt vmcnt(0)
  v_max3_u32 v32, v16, v17, v18
  v_max3_u32 v33, v19, v20, v21
  v_max3_u32 v34, v22, v23, v24
  v_max3_u32 v32, v32, v25, v26
  v_max3_u32 v33, v33, v27, v34
  v_max_u32 v32, v32, v33
  v_cmp_eq_u32 vcc, -1, v32
  s_add_u32 s60, s60, 1
  s_cmp_gt_u32 s60, {LIMIT}
  s_cbranch_scc1 chain_cdone
  s_cbranch_vccnz chain_cpoll
chain_cdone:
""")
    stamp(5, True)
    a(f"""
  s_cmp_lg_u32 s10, 0
  s_cbranch_scc1 chain_nosig
  s_cmp_eq_u32 s49, 0
  s_cbranch_scc1 chain_nosig0
  s_sub_u32 s11, s49, 1
  s_lshr_b32 s11, s11, 1
  s_lshl_b32 s11, s11, 2
  s_add_u32 s12, s6, 0x{CNT3:x}
  s_addc_u32 s13, s7, 0
  v_mov_b32 v28, s11
  v_mov_b32 v29, 1
  s_mov_b64 s[56:57], exec
  s_mov_b64 exec, 1
  global_atomic_add v28, v29, s[12:13]
  s_mov_b64 exec, s[56:57]
chain_nosig0:
  global_store_dwordx4 v1, v[92:95], s[42:43] sc1
  global_store_dwordx2 v13, v[96:97], s[44:45] sc1
  global_store_dwordx2 v13, v[98:99], s[44:45] offset:512 sc1
chain_nosig:
  s_add_u32 s42, s42, 0x20000
  s_addc_u32 s43, s43, 0
  s_add_u32 s44, s44, 0x20000
  s_addc_u32 s45, s45, 0
  s_add_u32 s34, s34, 10240
  s_addc_u32 s35, s35, 0
  s_add_u32 s92, s92, 1024
  s_addc_u32 s93, s93, 0
  s_xor_b32 s50, s50, 655360
  s_add_u32 s49, s49, 1
  s_branch chain_step
chain_last:
""")
    lk2 = lk
    a("  s_waitcnt lgkmcnt(0)")
    for kt in range(0, 10):
        a(f"  ds_read_b128 {MB(0)}, v14 offset:{kt*512}")
        a("  s_waitcnt lgkmcnt(0)")
        for t in range(2):
            a(f"  v_mfma_f32_16x16x32_bf16 {VA[t]}, {MB(0)}, {wreg(80+kt*2+t)}, {VA[t]}")
        a("  s_nop 7")
    a("""  s_nop 7
  v_cvt_pk_bf16_f32 v96, v64, v65
  v_cvt_pk_bf16_f32 v97, v66, v67
  v_cvt_pk_bf16_f32 v98, v68, v69
  v_cvt_pk_bf16_f32 v99, v70, v71
  s_cmp_lg_u32 s10, 0
  s_cbranch_scc1 chain_done
  global_store_dwordx4 v1, v[92:95], s[42:43]
  global_store_dwordx2 v13, v[96:97], s[44:45]
  global_store_dwordx2 v13, v[98:99], s[44:45] offset:512
  s_branch chain_done
chain_bulk:""")
    from gen import emit_q_bulk
    emit_q_bulk(a)
    a("""chain_done:
  s_endpgm""")
    return kd(name, 512, 100, 256)
```

```python
from common import *
from gen import A, kd, khead, Gemm, emit_ln

def gen_attn(a):
    name = "attn_kernel"
    khead(a, name)
    a(f"""
  s_cmp_ge_u32 s2, 512
  s_cbranch_scc1 attn_done
  s_load_dwordx2 s[6:7], s[0:1], 104
  v_lshrrev_b32 v2, 6, v0
  v_and_b32 v3, 63, v0
  s_nop 0
  v_readfirstlane_b32 s8, v2
  v_lshlrev_b32 v1, 4, v3
  v_lshlrev_b32 v7, 3, v3
  v_and_b32 v4, 15, v3                ; q local
  v_lshrrev_b32 v5, 4, v3             ; g
  s_lshl_b32 s9, s2, 2
  s_add_u32 s9, s9, s8
  s_waitcnt lgkmcnt(0)
  s_lshl_b32 s10, s9, 13
  s_add_u32 s11, s10, 0x{Q_F:x}
  s_add_u32 s12, s6, s11
  s_addc_u32 s13, s7, 0
  s_add_u32 s11, s10, 0x{K_F:x}
  s_add_u32 s14, s6, s11
  s_addc_u32 s15, s7, 0
  s_add_u32 s11, s10, 0x{V_F:x}
  s_add_u32 s16, s6, s11
  s_addc_u32 s17, s7, 0
  s_lshl_b32 s10, s9, 12
  s_add_u32 s11, s10, 0x{KM_F:x}
  s_add_u32 s18, s6, s11
  s_addc_u32 s19, s7, 0
  s_add_u32 s11, s10, 0x{VM_F:x}
  s_add_u32 s20, s6, s11
  s_addc_u32 s21, s7, 0
  v_add_u32 v6, 0x1000, v1
""")
    for f in range(8):
        vo = "v1" if f < 4 else "v6"
        a(f"  global_load_dwordx4 v[{16+4*f}:{19+4*f}], {vo}, s[12:13] offset:{(f%4)*1024}")
        a(f"  global_load_dwordx4 v[{48+4*f}:{51+4*f}], {vo}, s[14:15] offset:{(f%4)*1024}")
    for w in range(4):
        a(f"  global_load_dwordx4 v[{80+4*w}:{83+4*w}], v1, s[18:19] offset:{w*1024}")
    for f in range(8):
        vo = "v1" if f < 4 else "v6"
        a(f"  global_load_dwordx4 v[{96+4*f}:{99+4*f}], {vo}, s[16:17] offset:{(f%4)*1024}")
    for f in range(8):
        a(f"  global_load_dwordx2 v[{128+2*f}:{129+2*f}], v7, s[20:21] offset:{f*512}")
    a("  s_waitcnt vmcnt(16)")
    tiles = [(0,'M',144),(0,0,148),(1,'M',152),(1,0,156),(1,1,160)]
    for w in range(4):
        for (tt, kt, acc) in tiles:
            Kf = f"v[{80+4*w}:{83+4*w}]" if kt == 'M' else f"v[{48+4*(w*2+kt)}:{51+4*(w*2+kt)}]"
            Qf = f"v[{16+4*(w*2+tt)}:{19+4*(w*2+tt)}]"
            c = f"v[{acc}:{acc+3}]" if w > 0 else "0"
            a(f"  v_mfma_f32_16x16x32_bf16 v[{acc}:{acc+3}], {Kf}, {Qf}, {c}")
    a("""  s_mov_b32 s52, 0x3db504f3
  s_mov_b32 s53, 0x3fb8aa3b
  s_mov_b32 s54, 0xffff0000
  v_mov_b32 v8, 0xff800000
  v_lshlrev_b32 v9, 2, v5             ; 4g
  s_nop 4""")
    for i in range(144, 164, 2):
        a(f"""  v_cvt_pk_bf16_f32 v10, v{i}, v{i+1}
  v_lshlrev_b32 v{i}, 16, v10
  v_and_b32 v{i+1}, s54, v10
  v_mul_f32 v{i}, s52, v{i}
  v_mul_f32 v{i+1}, s52, v{i+1}
  v_cvt_pk_bf16_f32 v10, v{i}, v{i+1}
  v_lshlrev_b32 v{i}, 16, v10
  v_and_b32 v{i+1}, s54, v10""")
    a("  v_cmp_lt_u32 vcc, 31, v3\n  s_nop 1")
    for b in (144, 152):
        for r in range(4): a(f"  v_cndmask_b32 v{b+r}, v{b+r}, v8, vcc")
    for r in range(4):
        a(f"  v_add_u32 v10, {r}, v9\n  v_cmp_gt_u32 vcc, v10, v4\n  s_nop 1")
        a(f"  v_cndmask_b32 v{148+r}, v{148+r}, v8, vcc\n  v_cndmask_b32 v{160+r}, v{160+r}, v8, vcc")
    def softmax(regs, tmp):
        n = len(regs)
        a(f"  v_max3_f32 v{tmp}, v{regs[0]}, v{regs[1]}, v{regs[2]}")
        i = 3
        while i < n:
            if i+1 < n: a(f"  v_max3_f32 v{tmp}, v{tmp}, v{regs[i]}, v{regs[i+1]}"); i += 2
            else: a(f"  v_max_f32 v{tmp}, v{tmp}, v{regs[i]}"); i += 1
        for sw in ("16", "32"):
            a(f"""  s_nop 1
  v_mov_b32 v{tmp+1}, v{tmp}
  s_nop 1
  v_permlane{sw}_swap_b32 v{tmp}, v{tmp+1}
  v_max_f32 v{tmp}, v{tmp}, v{tmp+1}""")
        for r in regs: a(f"  v_sub_f32 v{r}, v{r}, v{tmp}\n  v_mul_f32 v{r}, s53, v{r}")
        for r in regs: a(f"  v_exp_f32 v{r}, v{r}")
        a(f"  s_nop 0\n  v_add_f32 v{tmp}, v{regs[0]}, v{regs[1]}")
        for r in regs[2:]: a(f"  v_add_f32 v{tmp}, v{tmp}, v{r}")
        for sw in ("16", "32"):
            a(f"""  s_nop 1
  v_mov_b32 v{tmp+1}, v{tmp}
  s_nop 1
  v_permlane{sw}_swap_b32 v{tmp}, v{tmp+1}
  v_add_f32 v{tmp}, v{tmp}, v{tmp+1}""")
        a(f"""  v_rcp_f32 v{tmp+1}, v{tmp}
  s_nop 0
  v_fma_f32 v{tmp+2}, -v{tmp}, v{tmp+1}, 1.0
  v_fma_f32 v{tmp+1}, v{tmp+2}, v{tmp+1}, v{tmp+1}""")
        for r in regs: a(f"  v_mul_f32 v{r}, v{r}, v{tmp+1}")
    softmax(list(range(144, 152)), 10)
    softmax(list(range(152, 164)), 10)
    a("""  v_cvt_pk_bf16_f32 v164, v144, v145
  v_cvt_pk_bf16_f32 v165, v146, v147
  v_cvt_pk_bf16_f32 v166, v148, v149
  v_cvt_pk_bf16_f32 v167, v150, v151
  v_mov_b32 v168, 0
  v_mov_b32 v169, 0
  v_cvt_pk_bf16_f32 v170, v152, v153
  v_cvt_pk_bf16_f32 v171, v154, v155
  v_cvt_pk_bf16_f32 v172, v156, v157
  v_cvt_pk_bf16_f32 v173, v158, v159
  v_cvt_pk_bf16_f32 v174, v160, v161
  v_cvt_pk_bf16_f32 v175, v162, v163
  s_waitcnt vmcnt(0)""")
    for tt in range(2):
        pm = "v[164:165]" if tt == 0 else "v[170:171]"
        for et in range(8):
            acc = 16+4*(tt*8+et)
            a(f"  v_mfma_f32_16x16x16_bf16 v[{acc}:{acc+3}], v[{128+2*et}:{129+2*et}], {pm}, 0")
    for tt in range(2):
        px = "v[166:169]" if tt == 0 else "v[172:175]"
        for et in range(8):
            acc = 16+4*(tt*8+et)
            a(f"  v_mfma_f32_16x16x32_bf16 v[{acc}:{acc+3}], v[{96+4*et}:{99+4*et}], {px}, v[{acc}:{acc+3}]")
    a(f"""  s_lshr_b32 s10, s9, 5
  s_and_b32 s11, s9, 31
  s_mul_i32 s10, s10, {2*OSTR*1024}
  s_lshl_b32 s11, s11, 12
  s_add_u32 s10, s10, s11
  s_add_u32 s10, s10, 0x{O_F:x}
  s_add_u32 s22, s6, s10
  s_addc_u32 s23, s7, 0
  s_add_u32 s24, s22, {OSTR*1024}
  s_addc_u32 s25, s23, 0
  s_nop 4""")
    for tt in range(2):
        for wp in range(4):
            b = 16+4*(tt*8+2*wp)
            a(f"""  v_cvt_pk_bf16_f32 v{80+4*wp}, v{b}, v{b+1}
  v_cvt_pk_bf16_f32 v{81+4*wp}, v{b+2}, v{b+3}
  v_cvt_pk_bf16_f32 v{82+4*wp}, v{b+4}, v{b+5}
  v_cvt_pk_bf16_f32 v{83+4*wp}, v{b+6}, v{b+7}
  global_store_dwordx4 v1, v[{80+4*wp}:{83+4*wp}], s[{22+2*tt}:{23+2*tt}] offset:{wp*1024}""")
        a("  s_nop 1")
    a("attn_done:\n  s_endpgm")
    return kd(name, 176, 64, 176)

def resid_epilogue(a, g, s_res, s_dst):
    a(f"""  v_and_b32 v5, 15, v0
  v_bfe_u32 v6, v0, 4, 2              ; g
  s_mul_i32 s10, s20, {g.MT}
  s_mul_i32 s11, s23, {g.mt}
  s_add_u32 s10, s10, s11
  s_lshl_b32 s10, s10, 4              ; token0
  v_add_u32 v5, s10, v5
  v_mul_u32_u24 v5, 0x500, v5
  s_mul_i32 s10, s21, {g.NT}
  s_mul_i32 s11, s24, {g.nt}
  s_add_u32 s10, s10, s11
  s_lshl_b32 s10, s10, 5
  v_lshl_add_u32 v5, v6, 3, v5
  v_add_u32 v5, s10, v5
  s_mov_b32 s54, 0xffff0000""")
    k = 0
    for i in range(g.mt):
        for j in range(g.nt):
            a(f"  global_load_dwordx2 v[{32+2*k}:{33+2*k}], v5, s[{s_res}:{s_res+1}] offset:{j*32}")
            k += 1
        if i+1 < g.mt: a(f"  v_add_u32 v5, {16*1280}, v5")
    a(f"  v_subrev_u32 v5, {16*1280*(g.mt-1)}, v5")
    k = 0; n = g.mt*g.nt
    for i in range(g.mt):
        for j in range(g.nt):
            acc = 4*(i*g.nt+j)
            for r in range(4): a(f"  v_accvgpr_read_b32 v{8+r}, a{acc+r}")
            a(f"""  v_cvt_pk_bf16_f32 v12, v8, v9
  v_cvt_pk_bf16_f32 v13, v10, v11
  v_lshlrev_b32 v8, 16, v12
  v_and_b32 v9, s54, v12
  v_lshlrev_b32 v10, 16, v13
  v_and_b32 v11, s54, v13
  s_waitcnt vmcnt({n-1-k})
  v_lshlrev_b32 v14, 16, v{32+2*k}
  v_and_b32 v15, s54, v{32+2*k}
  v_lshlrev_b32 v16, 16, v{33+2*k}
  v_and_b32 v17, s54, v{33+2*k}
  v_add_f32 v8, v8, v14
  v_add_f32 v9, v9, v15
  v_add_f32 v10, v10, v16
  v_add_f32 v11, v11, v17
  v_cvt_pk_bf16_f32 v{20+2*(k%4)}, v8, v9
  v_cvt_pk_bf16_f32 v{21+2*(k%4)}, v10, v11
  global_store_dwordx2 v5, v[{20+2*(k%4)}:{21+2*(k%4)}], s[{s_dst}:{s_dst+1}] offset:{j*32}""")
            k += 1; n += 1
        if i+1 < g.mt: a(f"  v_add_u32 v5, {16*1280}, v5")

MAP64 = """
  s_and_b32 s10, s2, 7
  s_lshr_b32 s11, s2, 3
  s_and_b32 s12, s11, 1
  s_lshl_b32 s20, s10, 1
  s_add_u32 s20, s20, s12
  s_lshr_b32 s21, s11, 1
  s_mov_b32 s19, 0
"""
MAPSK = """
  s_and_b32 s10, s2, 7
  s_lshr_b32 s11, s2, 3
  s_and_b32 s12, s11, 1
  s_lshl_b32 s20, s10, 1
  s_add_u32 s20, s20, s12
  s_lshr_b32 s13, s11, 1              ; rest
  s_mul_i32 s19, s13, 52429
  s_lshr_b32 s19, s19, 18
  s_mul_i32 s14, s19, 5
  s_sub_u32 s21, s13, s14             ; nb = rest%5
"""
def splitk_reduce(a, g, cnt_base):
    n = g.name; nacc = g.mt*g.nt
    a(f"""  s_mul_i32 s10, s20, 5
  s_add_u32 s10, s10, s21             ; tile
  s_mul_i32 s11, s10, {g.NSPLIT*4*nacc*1024}
  s_mul_i32 s12, s22, {nacc*1024}
  s_add_u32 s11, s11, s12
  s_add_u32 s11, s11, 0x{PART_OFF:x}
  s_add_u32 s14, s6, s11
  s_addc_u32 s15, s7, 0
  s_mul_i32 s12, s19, {4*nacc*1024}
  s_add_u32 s16, s14, s12
  s_addc_u32 s17, s15, 0
  v_mov_b32 v5, v1""")
    for t in range(nacc):
        a(f"  global_store_dwordx4 v5, a[{4*t}:{4*t+3}], s[16:17] offset:{(t%4)*1024} sc1")
        if t % 4 == 3: a("  v_add_u32 v5, 0x1000, v5")
    a(f"""  s_waitcnt vmcnt(0)
  s_barrier
  s_cmp_lg_u32 s22, 0
  s_cbranch_scc1 {n}_skw
  s_lshl_b32 s12, s10, 2
  s_add_u32 s12, s12, 0x{CNT_OFF + cnt_base:x}
  s_add_u32 s16, s6, s12
  s_addc_u32 s17, s7, 0
  v_mov_b32 v8, 0
  v_mov_b32 v9, 1
  s_mov_b64 s[56:57], exec
  s_mov_b64 exec, 1
  global_atomic_add v10, v8, v9, s[16:17] sc0
  s_waitcnt vmcnt(0)
  ds_write_b32 v8, v10
  s_waitcnt lgkmcnt(0)
  s_mov_b64 exec, s[56:57]
{n}_skw:
  s_barrier
  v_mov_b32 v8, 0
  ds_read_b32 v10, v8
  s_waitcnt lgkmcnt(0)
  s_nop 0
  v_readfirstlane_b32 s12, v10
  s_nop 3
  s_cmp_lg_u32 s12, {g.NSPLIT-1}
  s_cbranch_scc1 {n}_done""")
    for t0 in range(0, nacc, 4):
        a(f"  v_add_u32 v5, {t0*1024}, v1")
        for sp in range(g.NSPLIT):
            a(f"  s_add_u32 s16, s14, {sp*4*nacc*1024}\n  s_addc_u32 s17, s15, 0")
            for t in range(4):
                r = 8 + 16*sp + 4*t
                a(f"  global_load_dwordx4 v[{r}:{r+3}], v5, s[16:17] offset:{t*1024} sc1")
        a("  s_waitcnt vmcnt(0)")
        for sp in range(1, g.NSPLIT):
            for i in range(0, 16, 2):
                a(f"  v_pk_add_f32 v[{8+i}:{9+i}], v[{8+i}:{9+i}], v[{8+16*sp+i}:{9+16*sp+i}]")
        for i in range(16):
            a(f"  v_accvgpr_write_b32 a{4*t0+i}, v{8+i}")
    a("  s_nop 1")

def gen_wo(a):
    g = Gemm("wo_kernel", MT=8, NT=8, KT=128, NS=4, WM=2, WN=2, x_off=O_F, w_off=WO_F, nwg=320, KS=1, NSPLIT=4, KSTR=OSTR)
    khead(a, g.name); g.prologue(a, MAPSK)
    g.mainloop(a, True, "")
    splitk_reduce(a, g, 0)
    a(f"  s_add_u32 s14, s6, 0x{H_RM:x}\n  s_addc_u32 s15, s7, 0")
    resid_epilogue(a, g, 4, 14)
    a("wo_kernel_done:\n  s_endpgm")
    return kd(g.name, 80+64, 64, 80), g

def ffn2_gemm(name, nwg):
    return Gemm(name, MT=8, NT=8, KT=54, NS=4, WM=2, WN=2, x_off=ACT_F, w_off=WD_F, nwg=nwg, KS=1, NSPLIT=3)
def ffn2_body(a, g):
    g.mainloop(a, True, "")
    splitk_reduce(a, g, 512)
    a(f"  s_add_u32 s14, s6, 0x{H_RM:x}\n  s_addc_u32 s15, s7, 0")
    resid_epilogue(a, g, 14, 8)
    a(f"{g.name}_done:")
def gen_ffn2(a):
    nm = 16 - RBK//2
    g = ffn2_gemm("ffn2_kernel", nm*15)
    khead(a, g.name); g.prologue(a, f"""
  s_mul_i32 s13, s2, {(65536 + nm - 1)//nm}
  s_lshr_b32 s13, s13, 16
  s_mul_i32 s14, s13, {nm}
  s_sub_u32 s20, s2, s14
  s_add_u32 s20, s20, {RBK//2}        ; mb
  s_mul_i32 s19, s13, 52429
  s_lshr_b32 s19, s19, 18
  s_mul_i32 s14, s19, 5
  s_sub_u32 s21, s13, s14             ; nb = rest%5
""")
    ffn2_body(a, g)
    a("  s_endpgm")
    return kd(g.name, 80+64, 64, 80), g

def gen_ln2(a):
    name = "ln2_kernel"
    khead(a, name)
    a(f"""
  s_cmp_ge_u32 s2, 32
  s_cbranch_scc1 ln2_done
  s_load_dwordx2 s[6:7], s[0:1], 104
  v_lshrrev_b32 v1, 6, v0
  v_and_b32 v2, 63, v0
  s_nop 0
  v_readfirstlane_b32 s22, v1
  s_lshl_b32 s23, s2, 2
  s_nop 2
  s_add_u32 s23, s23, s22
  s_waitcnt lgkmcnt(0)
  s_add_u32 s4, s6, 0x{H_RM:x}
  s_addc_u32 s5, s7, 0""")
    emit_ln(a, "l", 4, 23, 6, HN_F, 2)
    a("ln2_done:\n  s_endpgm")
    return kd(name, 128, 64, 128)

def ffn1_gemm(name, nwg):
    return Gemm(name, MT=8, NT=8, KT=20, NS=4, WM=2, WN=2, x_off=HN_F, w_off=WGU_F, nwg=nwg)
def ffn1_body(a, g, SC=""):
    g.mainloop(a, True, "")
    a(f"""  s_lshl_b32 s10, s20, 3
  s_lshl_b32 s11, s23, 2
  s_add_u32 s10, s10, s11
  s_mul_i32 s10, s10, 54
  s_lshl_b32 s11, s21, 1
  s_add_u32 s10, s10, s11
  s_add_u32 s10, s10, s24
  s_lshl_b32 s10, s10, 10
  s_add_u32 s10, s10, 0x{ACT_F:x}
  s_add_u32 s14, s6, s10
  s_addc_u32 s15, s7, 0
  s_mov_b32 s54, 0xffff0000""")
    for i in range(4):
        for t in range(2):
            ag = 4*(i*4+t); au = 4*(i*4+2+t)
            for r in range(4): a(f"  v_accvgpr_read_b32 v{8+r}, a{ag+r}\n  v_accvgpr_read_b32 v{12+r}, a{au+r}")
            a(f"""  v_cvt_pk_bf16_f32 v16, v8, v9
  v_cvt_pk_bf16_f32 v17, v10, v11
  v_cvt_pk_bf16_f32 v18, v12, v13
  v_cvt_pk_bf16_f32 v19, v14, v15
  v_lshlrev_b32 v8, 16, v16
  v_and_b32 v9, s54, v16
  v_lshlrev_b32 v10, 16, v17
  v_and_b32 v11, s54, v17
  v_lshlrev_b32 v12, 16, v18
  v_and_b32 v13, s54, v18
  v_lshlrev_b32 v14, 16, v19
  v_and_b32 v15, s54, v19
  v_max_f32 v8, 0, v8
  v_max_f32 v9, 0, v9
  v_max_f32 v10, 0, v10
  v_max_f32 v11, 0, v11
  v_mul_f32 v8, v8, v12
  v_mul_f32 v9, v9, v13
  v_mul_f32 v10, v10, v14
  v_mul_f32 v11, v11, v15
  v_cvt_pk_bf16_f32 v{20+4*(i%2)+2*t}, v8, v9
  v_cvt_pk_bf16_f32 v{21+4*(i%2)+2*t}, v10, v11""")
        a(f"  global_store_dwordx4 v1, v[{20+4*(i%2)}:{23+4*(i%2)}], s[14:15]{SC}")
        a(f"  s_add_u32 s14, s14, {54*1024}\n  s_addc_u32 s15, s15, 0")

def gen_ffn1(a):
    nm = 16 - RBK//2
    g = ffn1_gemm("ffn1_kernel", nm*27)
    khead(a, g.name)
    g.prologue(a, f"""
  s_mul_i32 s21, s2, {(65536 + nm - 1)//nm}
  s_lshr_b32 s21, s21, 16
  s_mul_i32 s14, s21, {nm}
  s_sub_u32 s20, s2, s14
  s_add_u32 s20, s20, {RBK//2}        ; mb
  s_mov_b32 s19, 0
""")
    ffn1_body(a, g)
    a("ffn1_kernel_done:\n  s_endpgm")
    return kd(g.name, g.vgprs()+64, 64, g.vgprs()), g
```

```python
import sys
from common import *

class A:
    def __init__(s): s.l = []
    def __call__(s, t):
        for x in t.strip('\n').split('\n'): s.l.append(x)
    def text(s): return '\n'.join(s.l) + '\n'

def kd(name, vgpr, sgpr, accum):
    return f""".amdhsa_kernel {name}
  .amdhsa_next_free_vgpr {vgpr}
  .amdhsa_next_free_sgpr {sgpr}
  .amdhsa_accum_offset {accum}
  .amdhsa_group_segment_fixed_size 0
  .amdhsa_kernarg_size 112
  .amdhsa_user_sgpr_count 2
  .amdhsa_user_sgpr_kernarg_segment_ptr 1
  .amdhsa_system_sgpr_workgroup_id_x 1
.end_amdhsa_kernel
"""

def khead(a, name):
    a(f""".globl {name}
.p2align 8
.type {name},@function
{name}:""")

def emit_ln(a, tag, s_src, s_rt, s_ws, dst_off, v_lane):
    a(f"""
  v_and_b32 v4, 15, v{v_lane}          ; r
  v_lshrrev_b32 v5, 4, v{v_lane}       ; g
  s_lshl_b32 s40, s{s_rt}, 4
  v_add_u32 v4, s40, v4                ; row
  v_mul_u32_u24 v4, 0x500, v4          ; row*1280
  v_lshl_add_u32 v4, v5, 4, v4         ; + g*16
""")
    for kt in range(20):
        a(f"  global_load_dwordx4 v[{16+4*kt}:{19+4*kt}], v4, s[{s_src}:{s_src+1}] offset:{kt*64}")
    a("  v_mov_b32 v6, 0\n  v_mov_b32 v7, 0")
    a("  s_mov_b32 s41, 0xffff0000")
    for kt in range(20):
        a(f"  s_waitcnt vmcnt({19-kt})")
        for j in range(4):
            r = 16+4*kt+j
            a(f"""  v_lshlrev_b32 v8, 16, v{r}
  v_and_b32 v9, s41, v{r}
  v_add_f32 v6, v6, v8
  v_add_f32 v7, v7, v9""")
    a("""  v_add_f32 v6, v6, v7
  s_nop 1
  v_mov_b32 v7, v6
  s_nop 1
  v_permlane16_swap_b32 v6, v7
  v_add_f32 v6, v6, v7
  s_nop 1
  v_mov_b32 v7, v6
  s_nop 1
  v_permlane32_swap_b32 v6, v7
  v_add_f32 v6, v6, v7
  v_mul_f32 v6, 0x3acccccd, v6
  v_mov_b32 v10, 0
  v_mov_b32 v11, 0""")
    for kt in range(20):
        for j in range(4):
            r = 16+4*kt+j
            a(f"""  v_lshlrev_b32 v8, 16, v{r}
  v_and_b32 v9, s41, v{r}
  v_sub_f32 v8, v8, v6
  v_sub_f32 v9, v9, v6
  v_fmac_f32 v10, v8, v8
  v_fmac_f32 v11, v9, v9""")
    a("""  v_add_f32 v10, v10, v11
  s_nop 1
  v_mov_b32 v11, v10
  s_nop 1
  v_permlane16_swap_b32 v10, v11
  v_add_f32 v10, v10, v11
  s_nop 1
  v_mov_b32 v11, v10
  s_nop 1
  v_permlane32_swap_b32 v10, v11
  v_add_f32 v10, v10, v11
  v_mul_f32 v10, 0x3acccccd, v10       ; var
  v_cvt_pk_bf16_f32 v12, v6, v10
  v_lshlrev_b32 v6, 16, v12            ; mean_b
  v_and_b32 v10, s41, v12              ; var_b
  v_add_f32 v10, 0x3727c5ac, v10       ; + 1e-5
  v_cvt_pk_bf16_f32 v12, v10, v10
  v_lshlrev_b32 v10, 16, v12
  v_sqrt_f32 v10, v10
  s_nop 0
  v_cvt_pk_bf16_f32 v12, v10, v10
  v_lshlrev_b32 v10, 16, v12
  v_rcp_f32 v11, v10
  s_nop 0
  v_fma_f32 v12, -v10, v11, 1.0
  v_fma_f32 v11, v12, v11, v11         ; 1/den
""")
    a(f"""  s_mul_i32 s42, s{s_rt}, 20480
  s_add_u32 s42, s42, 0x{dst_off:x}
  s_add_u32 s44, s{s_ws}, s42
  s_addc_u32 s45, s{s_ws+1}, 0
  v_lshlrev_b32 v13, 4, v{v_lane}""")
    for kt in range(20):
        for j in range(4):
            r = 16+4*kt+j
            a(f"""  v_lshlrev_b32 v8, 16, v{r}
  v_and_b32 v9, s41, v{r}
  v_sub_f32 v8, v8, v6
  v_sub_f32 v9, v9, v6
  v_cvt_pk_bf16_f32 v14, v8, v9
  v_lshlrev_b32 v8, 16, v14
  v_and_b32 v9, s41, v14
  v_mul_f32 v8, v8, v11
  v_mul_f32 v9, v9, v11
  v_cvt_pk_bf16_f32 v{r}, v8, v9""")
        off = kt*1024
        if off < 4096:
            a(f"  global_store_dwordx4 v13, v[{16+4*kt}:{19+4*kt}], s[44:45] offset:{off}")
        else:
            if off % 4096 == 0:
                a("  s_add_u32 s44, s44, 0x1000\n  s_addc_u32 s45, s45, 0")
            a(f"  global_store_dwordx4 v13, v[{16+4*kt}:{19+4*kt}], s[44:45] offset:{off % 4096}")

NJ_LN, NJ_QKV, NJ_WO, NJ_GU, NJ_WD = 128, 192*4, 160, 54*4, 90
CLR_BYTES = P_BYTES + 8*MB_STRIDE + LF_BYTES
NJ_CLR = (CLR_BYTES + 16383)//16384
PREP_WAVES = NJ_LN+NJ_QKV+NJ_WO+NJ_GU+NJ_WD+NJ_CLR
PREP_WGS = (PREP_WAVES+3)//4
PREP_LDS = 4*2*4608

def gen_prep(a):
    name = "prep_kernel"
    khead(a, name)
    b0 = NJ_LN; b1 = b0+NJ_QKV; b2 = b1+NJ_WO; b3 = b2+NJ_GU; b4 = b3+NJ_WD; b5 = b4+NJ_CLR
    a(f"""
  s_load_dwordx2 s[4:5], s[0:1], 0
  s_load_dwordx2 s[6:7], s[0:1], 104
  s_load_dwordx4 s[8:11], s[0:1], 16
  s_load_dwordx4 s[12:15], s[0:1], 32
  s_load_dwordx4 s[16:19], s[0:1], 64
  s_load_dwordx2 s[20:21], s[0:1], 80
  v_lshrrev_b32 v1, 6, v0
  v_and_b32 v2, 63, v0
  s_nop 0
  v_readfirstlane_b32 s22, v1
  s_lshl_b32 s23, s2, 2
  s_nop 2
  s_add_u32 s23, s23, s22
  s_waitcnt lgkmcnt(0)
  s_cmp_ge_u32 s23, {b5}
  s_cbranch_scc1 prep_done
  s_cmp_lt_u32 s23, {b0}
  s_cbranch_scc1 prep_ln
  s_cmp_ge_u32 s23, {b4}
  s_cbranch_scc1 prep_clr
  s_cmp_lt_u32 s23, {b1}
  s_cbranch_scc1 prep_qkv
  s_cmp_lt_u32 s23, {b2}
  s_cbranch_scc1 prep_wo
  s_cmp_lt_u32 s23, {b3}
  s_cbranch_scc1 prep_gu
  ; Wd: j: cg=j/3 chunk=j%3
  s_sub_u32 s24, s23, {b3}
  s_mov_b32 s25, 0x1c71c71d
  s_mul_hi_u32 s26, s24, s25
  s_mul_i32 s27, s26, 9
  s_sub_u32 s27, s24, s27
  s_mul_i32 s27, s27, 6
  s_mov_b32 s28, s20
  s_mov_b32 s29, s21
  s_mov_b32 s30, 1280
  s_lshl_b32 s31, s26, 6
  s_mov_b32 s32, 6
  s_mul_i32 s33, s26, {4*54}
  s_add_u32 s33, s33, s27
  s_lshl_b32 s33, s33, 10
  s_add_u32 s33, s33, 0x{WD_F:x}
  s_mov_b32 s44, {54*1024}
  s_mov_b32 s45, {2*54*1024}
  s_mov_b32 s46, {3*54*1024}
  s_mov_b32 s34, 4
  s_mov_b32 s35, 16
  s_branch prep_rl
prep_gu:
  s_sub_u32 s24, s23, {b2}
  s_and_b32 s27, s24, 3
  s_mul_i32 s27, s27, 5
  s_lshr_b32 s26, s24, 3
  s_bitcmp1_b32 s24, 2
  s_cselect_b32 s28, s18, s16
  s_cselect_b32 s29, s19, s17
  s_cselect_b32 s25, 2, 0
  s_mov_b32 s30, {F*2}
  s_lshl_b32 s31, s26, 6
  s_mov_b32 s32, 5
  s_lshl_b32 s33, s26, 3
  s_add_u32 s33, s33, s25
  s_mul_i32 s33, s33, 20
  s_add_u32 s33, s33, s27
  s_lshl_b32 s33, s33, 10
  s_add_u32 s33, s33, 0x{WGU_F:x}
  s_mov_b32 s44, {20480}
  s_mov_b32 s45, {4*20480}
  s_mov_b32 s46, {5*20480}
  s_mov_b32 s34, 8
  s_mov_b32 s35, 4
  s_branch prep_rl
prep_wo:
  s_sub_u32 s24, s23, {b1}
  s_lshr_b32 s26, s24, 4              ; cg
  s_and_b32 s27, s24, 15
  s_lshl_b32 s27, s27, 3
  s_mov_b32 s28, s14
  s_mov_b32 s29, s15
  s_mov_b32 s30, 1280
  s_lshl_b32 s31, s26, 6
  s_mov_b32 s32, 8
  s_mul_i32 s33, s26, {4*OSTR}
  s_add_u32 s33, s33, s27
  s_lshl_b32 s33, s33, 10
  s_add_u32 s33, s33, 0x{WO_F:x}
  s_mov_b32 s44, {OSTR*1024}
  s_mov_b32 s45, {2*OSTR*1024}
  s_mov_b32 s46, {3*OSTR*1024}
  s_mov_b32 s34, 4
  s_mov_b32 s35, 16
  s_branch prep_rl
prep_qkv:
  s_sub_u32 s24, s23, {b0}
  s_and_b32 s27, s24, 3
  s_mul_i32 s27, s27, 5
  s_lshr_b32 s24, s24, 2
  s_lshr_b32 s26, s24, 6
  s_and_b32 s25, s24, 63
  s_mov_b32 s28, s8
  s_mov_b32 s29, s9
  s_cmp_eq_u32 s26, 1
  s_cselect_b32 s28, s10, s28
  s_cselect_b32 s29, s11, s29
  s_cmp_eq_u32 s26, 2
  s_cselect_b32 s28, s12, s28
  s_cselect_b32 s29, s13, s29
  s_mov_b32 s30, 8192
  s_lshl_b32 s31, s25, 6
  s_mov_b32 s32, 5
  s_mul_i32 s33, s24, 80
  s_add_u32 s33, s33, s27
  s_lshl_b32 s33, s33, 10
  s_add_u32 s33, s33, 0x{WQKV_F:x}
  s_mov_b32 s44, {20480}
  s_mov_b32 s45, {2*20480}
  s_mov_b32 s46, {3*20480}
  s_mov_b32 s34, 8
  s_mov_b32 s35, 4
prep_rl:
  v_lshrrev_b32 v4, 3, v2
  v_and_b32 v5, 7, v2
  s_lshl_b32 s36, s27, 5
  v_add_u32 v6, s36, v4
  v_mul_lo_u32 v6, v6, s30
  s_lshl_b32 s37, s31, 1
  v_lshl_add_u32 v6, v5, 4, v6
  v_add_u32 v8, s37, v6
  s_lshl_b32 s38, s30, 3
  v_add_u32 v9, s38, v8
  v_add_u32 v10, s38, v9
  v_add_u32 v11, s38, v10
  s_lshl_b32 s38, s30, 5
  s_mul_i32 s39, s22, 9216
  v_mul_u32_u24 v12, 144, v4
  v_lshl_add_u32 v12, v5, 4, v12
  v_add_u32 v12, s39, v12
  v_lshrrev_b32 v13, 4, v2
  v_mul_lo_u32 v13, v13, s34
  v_bfe_u32 v14, v2, 2, 2
  v_add_u32 v13, v13, v14
  v_mul_u32_u24 v13, 144, v13
  v_and_b32 v14, 3, v2
  v_lshl_add_u32 v13, v14, 3, v13
  v_add_u32 v13, s39, v13
  s_mul_i32 s40, s35, 144
  v_add_u32 v14, s40, v13
  v_lshlrev_b32 v16, 4, v2
  v_add_u32 v17, s44, v16
  v_add_u32 v18, s45, v16
  v_add_u32 v19, s46, v16
  s_add_u32 s40, s6, s33
  s_addc_u32 s41, s7, 0
  global_load_dwordx4 v[20:23], v8, s[28:29]
  global_load_dwordx4 v[24:27], v9, s[28:29]
  global_load_dwordx4 v[28:31], v10, s[28:29]
  global_load_dwordx4 v[32:35], v11, s[28:29]
  s_mov_b32 s42, 0
prep_rl_loop:
  s_add_u32 s28, s28, s38
  s_addc_u32 s29, s29, 0
  s_waitcnt vmcnt(0)
  ds_write_b128 v12, v[20:23]
  ds_write_b128 v12, v[24:27] offset:1152
  ds_write_b128 v12, v[28:31] offset:2304
  ds_write_b128 v12, v[32:35] offset:3456
  s_add_u32 s43, s42, 1
  s_cmp_ge_u32 s43, s32
  s_cbranch_scc1 prep_rl_nold
  global_load_dwordx4 v[20:23], v8, s[28:29]
  global_load_dwordx4 v[24:27], v9, s[28:29]
  global_load_dwordx4 v[28:31], v10, s[28:29]
  global_load_dwordx4 v[32:35], v11, s[28:29]
prep_rl_nold:
  s_waitcnt lgkmcnt(0)
""")
    for t in range(4):
        a(f"  ds_read_b64_tr_b16 v[{40+4*t}:{41+4*t}], v13 offset:{32*t}\n  ds_read_b64_tr_b16 v[{42+4*t}:{43+4*t}], v14 offset:{32*t}")
    a("""  s_waitcnt lgkmcnt(6)
  global_store_dwordx4 v16, v[40:43], s[40:41]
  s_waitcnt lgkmcnt(4)
  global_store_dwordx4 v17, v[44:47], s[40:41]
  s_waitcnt lgkmcnt(2)
  global_store_dwordx4 v18, v[48:51], s[40:41]
  s_waitcnt lgkmcnt(0)
  global_store_dwordx4 v19, v[52:55], s[40:41]
  s_add_u32 s40, s40, 0x400
  s_addc_u32 s41, s41, 0
  s_add_u32 s42, s42, 1
  s_cmp_lt_u32 s42, s32
  s_cbranch_scc1 prep_rl_loop
  s_branch prep_done""")
    a(f"""
prep_clr:
  s_sub_u32 s24, s23, {b4}
  s_cmp_lg_u32 s24, 0
  s_cbranch_scc1 prep_clr2
  v_lshlrev_b32 v16, 4, v2
  v_mov_b32 v20, 0
  v_mov_b32 v21, 0
  v_mov_b32 v22, 0
  v_mov_b32 v23, 0
  s_add_u32 s40, s6, 0x{CNT_OFF:x}
  s_addc_u32 s41, s7, 0
  global_store_dwordx4 v16, v[20:23], s[40:41]
  global_store_dwordx4 v16, v[20:23], s[40:41] offset:1024
  s_nop 1
prep_clr2:
  s_lshl_b32 s24, s24, 14
  v_lshlrev_b32 v16, 4, v2
  v_mov_b32 v20, -1
  v_mov_b32 v21, -1
  v_mov_b32 v22, -1
  v_mov_b32 v23, -1
  s_mov_b32 s39, 0
prep_clr_loop:
  s_add_u32 s25, s24, s39
  s_cmp_ge_u32 s25, {CLR_BYTES}
  s_cbranch_scc1 prep_done
  s_mov_b32 s27, 0x{P_OFF:x}
  s_cmp_lt_u32 s25, {P_BYTES}
  s_cselect_b32 s26, s27, 0x{MB_OFF - P_BYTES:x}
  s_add_u32 s25, s25, s26
  s_add_u32 s40, s6, s25
  s_addc_u32 s41, s7, 0
  global_store_dwordx4 v16, v[20:23], s[40:41]
  s_add_u32 s39, s39, 1024
  s_cmp_lt_u32 s39, 16384
  s_cbranch_scc1 prep_clr_loop
  s_branch prep_done
prep_ln:
""")
    emit_ln(a, "p", 4, 23, 6, XN_F, 2)
    a("prep_done:\n  s_endpgm")
    return kd(name, 128, 64, 128)

class Gemm:
    def __init__(s, name, MT, NT, KT, NS, WM, WN, x_off, w_off, nwg, KS=1, NSPLIT=1, KSTR=None):
        s.name, s.MT, s.NT, s.KT, s.NS, s.WM, s.WN = name, MT, NT, KT, NS, WM, WN
        s.x_off, s.w_off, s.nwg, s.KS = x_off, w_off, nwg, KS
        s.mt, s.nt = MT//WM, NT//WN
        s.T = MT+NT
        s.KSTR = KSTR or KT
        s.NSPLIT = NSPLIT; s.KTC = KT//NSPLIT
        assert s.T % 4 == 0 and KS == 1 and KT % NSPLIT == 0
        s.nd = s.T//4
        s.stage = s.T*1024*KS
        s.lds = s.stage*NS
        s.NSTEP = s.KTC//KS
    def prologue(s, a, map_code, entry=True):
        n = s.name
        if entry: a(f"""
  s_cmp_ge_u32 s2, {s.nwg}
  s_cbranch_scc1 {n}_done""")
        a(f"""
  s_load_dwordx2 s[6:7], s[0:1], 104
  s_load_dwordx2 s[4:5], s[0:1], 0
  s_load_dwordx2 s[8:9], s[0:1], 88
  v_lshrrev_b32 v5, 6, v0
  v_and_b32 v6, 63, v0
  s_nop 0
  v_readfirstlane_b32 s22, v5         ; wave
  v_lshlrev_b32 v1, 4, v6             ; lane*16
""")
        a(map_code)
        a(f"""
  s_waitcnt lgkmcnt(0)
  s_lshr_b32 s23, s22, {1 if s.WN==2 else (2 if s.WN==4 else 0)}   ; wm
  s_and_b32 s24, s22, {s.WN-1}        ; wn
""")
        for j in range(s.nd):
            sb = 40+2*j
            a(f"""  s_add_u32 s25, s22, {4*j}
  s_mul_i32 s26, s20, {s.MT}
  s_add_u32 s26, s26, s25
  s_mul_i32 s26, s26, {s.KSTR*1024}
  s_add_u32 s26, s26, 0x{s.x_off:x}
  s_mul_i32 s27, s21, {s.NT}
  s_add_u32 s27, s27, s25
  s_sub_u32 s27, s27, {s.MT}
  s_mul_i32 s27, s27, {s.KSTR*1024}
  s_add_u32 s27, s27, 0x{s.w_off:x}
  s_cmp_lt_u32 s25, {s.MT}
  s_cselect_b32 s26, s26, s27
  s_add_u32 s{sb}, s6, s26
  s_addc_u32 s{sb+1}, s7, 0""")
        a(f"""  s_mul_i32 s28, s22, {1024*s.KS}
  s_mul_i32 s25, s19, {s.KTC*1024 if s.NSPLIT > 1 else 0}
  v_add_u32 v2, s25, v1
  s_mul_i32 s29, s23, {s.mt*1024*s.KS}
  s_mul_i32 s30, s24, {s.nt*1024*s.KS}
  s_add_u32 s30, s30, {s.MT*1024*s.KS}
  s_mov_b32 s31, 0
  s_mov_b32 s32, 0
""")
        for st in range(s.NS):
            s.dma(a)
        for i in range(s.mt*s.nt*4):
            a(f"  v_accvgpr_write_b32 a{i}, 0")
    def dma_list(s):
        L = ["  s_add_u32 s33, s32, s28"]
        for j in range(s.nd):
            L.append(f"  s_add_u32 m0, s33, {4096*j}\n  s_nop 0\n  global_load_lds_dwordx4 v2, s[{40+2*j}:{41+2*j}]")
        L.append(f"""  v_add_u32 v2, 1024, v2
  s_add_u32 s32, s32, {s.stage}
  s_cmp_ge_u32 s32, {s.lds}
  s_cselect_b32 s32, 0, s32""")
        return L
    def dma(s, a):
        for x in s.dma_list(): a(x)
    def regs(s, k):
        nf = s.nt + s.mt
        base = 8 + 4*nf*(k % 2)
        return base, base + 4*s.nt
    def read_list(s, k):
        fb, fa = s.regs(k)
        L = [f"""  s_add_u32 s34, s31, s29
  s_add_u32 s35, s31, s30
  v_add_u32 v3, s34, v1
  v_add_u32 v4, s35, v1"""]
        for j in range(s.nt): L.append(f"  ds_read_b128 v[{fb+4*j}:{fb+4*j+3}], v4 offset:{1024*j}")
        for i in range(s.mt): L.append(f"  ds_read_b128 v[{fa+4*i}:{fa+4*i+3}], v3 offset:{1024*i}")
        L.append(f"""  s_add_u32 s31, s31, {s.stage}
  s_cmp_ge_u32 s31, {s.lds}
  s_cselect_b32 s31, 0, s31""")
        return L
    def body(s, a, par, vm, do_dma, do_read, transposed):
        if do_read:
            a(f"  s_waitcnt vmcnt({vm}) lgkmcnt(0)\n  s_barrier")
        else:
            a("  s_waitcnt lgkmcnt(0)")
        side = []
        if do_read: side += s.read_list(par ^ 1)
        if do_dma: side += s.dma_list()
        fb, fa = s.regs(par)
        mf = []
        for i in range(s.mt):
            for j in range(s.nt):
                acc = 4*(i*s.nt+j)
                X = f"v[{fa+4*i}:{fa+4*i+3}]"; W = f"v[{fb+4*j}:{fb+4*j+3}]"
                if transposed: mf.append(f"  v_mfma_f32_16x16x32_bf16 a[{acc}:{acc+3}], {W}, {X}, a[{acc}:{acc+3}]")
                else: mf.append(f"  v_mfma_f32_16x16x32_bf16 a[{acc}:{acc+3}], {X}, {W}, a[{acc}:{acc+3}]")
        n = len(mf); m = len(side); k = 0
        for i, x in enumerate(mf):
            a(x)
            while k < m and k * n < (i+1) * m:
                a(side[k]); k += 1
        while k < m: a(side[k]); k += 1
    def mainloop(s, a, transposed, tag):
        n = s.name + tag
        per = s.nd; N = s.NSTEP; NS = s.NS
        a(f"  s_waitcnt vmcnt({(NS-1)*per})\n  s_barrier")
        for x in s.read_list(0): a(x)
        steady = N - NS
        kt = 0
        if steady % 2 == 1:
            s.body(a, 0, (NS-2)*per, True, True, transposed); kt = 1
        if steady - kt > 0:
            a(f"  s_mov_b32 s36, 0\n{n}_loop:")
            s.body(a, kt % 2, (NS-2)*per, True, True, transposed)
            s.body(a, (kt+1) % 2, (NS-2)*per, True, True, transposed)
            a(f"  s_add_u32 s36, s36, 2\n  s_cmp_lt_u32 s36, {steady-kt}\n  s_cbranch_scc1 {n}_loop")
        kt = steady
        while kt < N:
            rd = kt+1 < N
            s.body(a, kt % 2, max(0, N-2-kt)*per, False, rd, transposed)
            kt += 1
        a("  s_nop 7\n  s_nop 3")
    def vgprs(s):
        nf = s.nt + s.mt
        v = 8 + 4*nf*2
        return max(64, (v+3)//4*4)

def seg0_code(g):
    return f"""  s_mul_i32 s11, s20, {g.MT//2}
  s_mul_i32 s12, s23, {g.mt//2}
  s_add_u32 s11, s11, s12
  s_lshl_b32 s11, s11, 5
  s_add_u32 s11, s11, s38
  s_lshl_b32 s11, s11, 13"""

def qk_epilogue(a, g, sc=""):
    a(f"""  s_lshl_b32 s10, s37, 24             ; type*16MB
  s_add_u32 s10, s10, 0x{Q_F:x}""")
    a(seg0_code(g))
    a("""  s_add_u32 s10, s10, s11
  s_lshl_b32 s12, s24, 12
  s_add_u32 s10, s10, s12
  s_add_u32 s14, s6, s10
  s_addc_u32 s15, s7, 0""")
    for i in range(g.mt):
        for jp in range(2):
            a0 = 4*(i*4+2*jp); a1 = a0+4
            for r in range(4):
                a(f"  v_accvgpr_read_b32 v{8+r}, a{a0+r}\n  v_accvgpr_read_b32 v{12+r}, a{a1+r}")
            a("""  v_cvt_pk_bf16_f32 v16, v8, v9
  v_cvt_pk_bf16_f32 v17, v10, v11
  v_cvt_pk_bf16_f32 v18, v12, v13
  v_cvt_pk_bf16_f32 v19, v14, v15""")
            off = jp*2048 + (i&1)*1024
            a(f"  global_store_dwordx4 v1, v[16:19], s[14:15] offset:{off}{sc}")
            a("  s_nop 1")
        if i & 1:
            a("  s_add_u32 s14, s14, 0x40000\n  s_addc_u32 s15, s15, 0")

def v_epilogue(a, g, sc=""):
    a(seg0_code(g))
    a(f"""  s_add_u32 s10, s11, 0x{V_F:x}
  s_lshl_b32 s12, s24, 12
  s_add_u32 s10, s10, s12
  s_add_u32 s14, s6, s10
  s_addc_u32 s15, s7, 0""")
    for ip in range(g.mt//2):
        for j in range(4):
            a0 = 4*((2*ip)*4+j); a1 = 4*((2*ip+1)*4+j)
            for r in range(4):
                a(f"  v_accvgpr_read_b32 v{8+r}, a{a0+r}\n  v_accvgpr_read_b32 v{12+r}, a{a1+r}")
            a("""  v_cvt_pk_bf16_f32 v16, v8, v9
  v_cvt_pk_bf16_f32 v17, v10, v11
  v_cvt_pk_bf16_f32 v18, v12, v13
  v_cvt_pk_bf16_f32 v19, v14, v15""")
            a(f"  global_store_dwordx4 v1, v[16:19], s[14:15] offset:{j*1024}{sc}")
            a("  s_nop 1")
        a("  s_add_u32 s14, s14, 0x40000\n  s_addc_u32 s15, s15, 0")

def emit_q_bulk(a):
    g = Gemm("qbulk", MT=16, NT=8, KT=20, NS=5, WM=2, WN=2, x_off=XN_F, w_off=WQKV_F, nwg=256)
    a("""  s_sub_u32 s98, s10, 5
  s_lshl_b32 s98, s98, 5
  s_add_u32 s98, s98, s9
qbulk_tile:""")
    g.prologue(a, """
  s_lshr_b32 s20, s98, 6
  s_add_u32 s20, s20, 1               ; mb = 1 + t/64
  s_and_b32 s21, s98, 63
  s_add_u32 s21, s21, 32              ; nb = 32 + t%64
  s_sub_u32 s10, s98, 448
  s_and_b32 s11, s10, 7
  s_lshr_b32 s12, s10, 3
  s_cmp_ge_u32 s98, 448
  s_cselect_b32 s20, s11, s20
  s_cselect_b32 s21, s12, s21
  s_mov_b32 s19, 0
""", entry=False)
    a("""  s_lshr_b32 s37, s21, 5
  s_and_b32 s38, s21, 31
  s_cmp_eq_u32 s37, 2
  s_cbranch_scc1 qbulk_v""")
    g.mainloop(a, True, "_bt")
    qk_epilogue(a, g, " sc1")
    a("  s_branch qbulk_sig\nqbulk_v:")
    g.mainloop(a, False, "_bn")
    v_epilogue(a, g, " sc1")
    a(f"""qbulk_sig:
  s_waitcnt vmcnt(0)
  s_barrier
  s_cmp_lg_u32 s22, 0
  s_cbranch_scc1 qbulk_next
  s_lshl_b32 s10, s20, 2
  s_add_u32 s11, s10, 128
  s_add_u32 s12, s6, 0x{CNT3 + 256:x}
  s_addc_u32 s13, s7, 0
  s_cmp_ge_u32 s98, 448
  s_cselect_b32 s12, s12, s70
  s_cselect_b32 s13, s13, s71
  s_cselect_b32 s10, s10, s11
  v_mov_b32 v8, s10
  v_mov_b32 v9, 1
  s_mov_b64 s[56:57], exec
  s_mov_b64 exec, 1
  global_atomic_add v8, v9, s[12:13]
  s_mov_b64 exec, s[56:57]
qbulk_next:
  s_add_u32 s98, s98, 96
  s_cmp_lt_u32 s98, 704
  s_cbranch_scc1 qbulk_tile""")
    emit_dyn_bulk(a)

LDS_TK = 150016
def emit_dyn_bulk(a, LIMIT=100000):
    import gen_awl, gen_post
    NT = (RBK//2 + 2)*58
    def wait_cnt(tag, base, off_sgpr, target):
        a(f"""  s_cmp_lg_u32 s99, 0
  s_cbranch_scc1 {tag}_w
  v_mov_b32 v8, {off_sgpr}
  s_mov_b32 s58, 0
{tag}_p:
  global_load_dword v9, v8, {base} sc1
  s_waitcnt vmcnt(0)
  v_readfirstlane_b32 s59, v9
  s_add_u32 s58, s58, 1
  s_cmp_gt_u32 s58, {LIMIT}
  s_cbranch_scc1 {tag}_w
  s_cmp_ge_u32 s59, {target}
  s_cbranch_scc1 {tag}_w
  s_sleep {int(__import__('os').environ.get('BSL','40'))}
  s_branch {tag}_p
{tag}_w:
  s_barrier""")
    def signal(off_sgpr):
        a(f"""  s_waitcnt vmcnt(0)
  s_barrier
  s_cmp_lg_u32 s99, 0
  s_cbranch_scc1 dyn_loop
  s_load_dwordx2 s[6:7], s[0:1], 104
  s_waitcnt lgkmcnt(0)
  s_add_u32 s12, s6, 0x{CNT3:x}
  s_addc_u32 s13, s7, 0
  v_mov_b32 v8, {off_sgpr}
  v_mov_b32 v9, 1
  s_mov_b64 s[56:57], exec
  s_mov_b64 exec, 1
  global_atomic_add v8, v9, s[12:13]
  s_mov_b64 exec, s[56:57]
  s_branch dyn_loop""")
    a(f"""  v_lshrrev_b32 v8, 6, v0
  s_nop 0
  v_readfirstlane_b32 s99, v8
dyn_loop:
  s_barrier
  s_load_dwordx2 s[6:7], s[0:1], 104
  s_load_dwordx2 s[70:71], s[0:1], 96
  s_waitcnt lgkmcnt(0)
  s_add_u32 s90, s6, 0x{CNT3:x}
  s_addc_u32 s91, s7, 0
  s_cmp_lg_u32 s99, 0
  s_cbranch_scc1 dyn_tkw
  v_mov_b32 v8, 320
  v_mov_b32 v9, 1
  v_mov_b32 v11, {LDS_TK}
  s_mov_b64 s[56:57], exec
  s_mov_b64 exec, 1
  global_atomic_add v10, v8, v9, s[90:91] sc0
  s_waitcnt vmcnt(0)
  ds_write_b32 v11, v10
  s_waitcnt lgkmcnt(0)
  s_mov_b64 exec, s[56:57]
dyn_tkw:
  s_barrier
  v_mov_b32 v11, {LDS_TK}
  ds_read_b32 v10, v11
  s_waitcnt lgkmcnt(0)
  s_nop 0
  v_readfirstlane_b32 s98, v10           ; task
  s_nop 3
  s_cmp_ge_u32 s98, {NT}
  s_cbranch_scc1 chain_done
  s_mul_i32 s92, s98, 1130
  s_lshr_b32 s92, s92, 16                ; round = t/58
  s_mul_i32 s93, s92, 58
  s_sub_u32 s93, s98, s93                ; k
  s_cmp_lt_u32 s93, 16
  s_cbranch_scc1 dyn_awl
  s_cmp_lt_u32 s93, 43
  s_cbranch_scc1 dyn_f1
  s_sub_u32 s94, s92, 2
  s_cmp_ge_u32 s94, {RBK//2}
  s_cbranch_scc1 dyn_loop
  s_lshl_b32 s95, s94, 2
  s_add_u32 s95, s95, 192""")
    wait_cnt("dw2", "s[90:91]", "s95", 27)
    g2 = gen_post.ffn2_gemm("bf2", 1)
    g2.prologue(a, """
  s_mov_b32 s20, s94
  s_sub_u32 s13, s93, 43
  s_mul_i32 s19, s13, 52429
  s_lshr_b32 s19, s19, 18
  s_mul_i32 s14, s19, 5
  s_sub_u32 s21, s13, s14
""", entry=False)
    gen_post.ffn2_body(a, g2)
    a(f"""  s_waitcnt vmcnt(0)
  s_branch dyn_loop
dyn_f1:
  s_sub_u32 s94, s92, 1
  s_cmp_ge_u32 s94, {RBK//2}
  s_cbranch_scc1 dyn_loop
  s_lshl_b32 s95, s94, 2
  s_add_u32 s95, s95, 128""")
    wait_cnt("dw1", "s[90:91]", "s95", 16)
    g1 = gen_post.ffn1_gemm("bf1", 1)
    g1.prologue(a, """
  s_mov_b32 s20, s94
  s_sub_u32 s21, s93, 16
  s_mov_b32 s19, 0
""", entry=False)
    gen_post.ffn1_body(a, g1, " sc1")
    a("  s_lshl_b32 s95, s94, 2\n  s_add_u32 s95, s95, 192")
    signal("s95")
    a(f"""dyn_awl:
  s_lshl_b32 s45, s92, 1
  s_lshr_b32 s94, s93, 3
  s_add_u32 s45, s45, s94                ; rb
  s_and_b32 s44, s93, 7                  ; hg
  s_cmp_ge_u32 s45, {RBK}
  s_cbranch_scc1 dyn_loop
  s_lshl_b32 s95, s45, 2""")
    wait_cnt("dwa", "s[90:91]", "s95", 256)
    a("""  s_lshr_b32 s94, s45, 2
  s_lshl_b32 s95, s94, 2
  s_add_u32 s95, s95, 256""")
    wait_cnt("dwq", "s[90:91]", "s95", 32)
    a("""  s_cmp_eq_u32 s94, 0
  s_cbranch_scc1 dyn_awl_go
  s_lshl_b32 s95, s94, 2
  s_add_u32 s95, s95, 128""")
    wait_cnt("dwk", "s[70:71]", "s95", 64)
    a("dyn_awl_go:\n  s_mov_b32 s96, s45")
    gen_awl.awl_body(a, "bawl", " sc1")
    a("  s_lshr_b32 s95, s96, 1\n  s_lshl_b32 s95, s95, 2\n  s_add_u32 s95, s95, 128")
    signal("s95")

def gen_qkv(a):
    g = Gemm("qkv_kernel", MT=4, NT=8, KT=20, NS=5, WM=2, WN=2, x_off=XN_F, w_off=WQKV_F, nwg=256)
    khead(a, g.name)
    g.prologue(a, """
  s_and_b32 s10, s2, 7
  s_lshr_b32 s11, s2, 3
  s_lshr_b32 s20, s11, 3
  s_and_b32 s13, s11, 7
  s_lshl_b32 s21, s10, 3
  s_add_u32 s21, s21, s13
  s_add_u32 s21, s21, 32              ; K,V only
  s_mov_b32 s19, 0
""")
    a("""  s_lshr_b32 s37, s21, 5
  s_and_b32 s38, s21, 31
  s_cmp_eq_u32 s37, 2
  s_cbranch_scc1 qkv_v""")
    g.mainloop(a, True, "_t")
    qk_epilogue(a, g)
    a("  s_branch qkv_kernel_done\nqkv_v:")
    g.mainloop(a, False, "_n")
    v_epilogue(a, g)
    a("qkv_kernel_done:\n  s_endpgm")
    return kd(g.name, g.vgprs()+32, 64, g.vgprs()), g

def main():
    a = A()
    kds = []
    launches = []
    body = A()
    kds.append(gen_prep(body)); launches.append(("prep_kernel", PREP_WGS, 256, PREP_LDS))
    k, g = gen_qkv(body); kds.append(k); launches.append(("qkv_kernel", g.nwg, 256, g.lds))
    import gen_chain
    import os
    kds.append(gen_chain.gen_chain(body, RS=int(os.environ.get('RS','2')), CS=int(os.environ.get('CS','6')), CS2=int(os.environ.get('CS2','2')), DIAG=bool(int(os.environ.get('DIAG','0'))), EMU=bool(int(os.environ.get('EMU','0'))), LOC=bool(int(os.environ.get('LOC','0'))), RC=int(os.environ.get('RC','22')), FORCE_SLOW=bool(int(os.environ.get('FSLOW','0'))), LD=int(os.environ.get('LD','1')))); launches.append(("chain_kernel", 256, 256, gen_chain.L_END))
    import gen_post
    import gen_awl
    kds.append(gen_awl.gen_awl(body)); launches.append(("awl_kernel", (32-RBK)*8, 256, 65536))
    k, g = gen_post.gen_ffn1(body); kds.append(k); launches.append((g.name, g.nwg, 256, g.lds))
    k, g = gen_post.gen_ffn2(body); kds.append(k); launches.append((g.name, g.nwg, 256, g.lds))
    hdr = open('cdna_kernels/'+KNAME+'.s.ref').read().split('; Override launch')[0]
    out = hdr
    for (n, gx, bx, lds) in launches:
        out += f"; @launch kernel={n} grid=({gx},1,1) block=({bx},1,1) lds={lds}\n"
    out += '.amdgcn_target "amdgcn-amd-amdhsa--gfx950"\n.text\n' + body.text()
    out += '.section .rodata,"a"\n'
    for k in kds: out += ".p2align 6\n" + k
    path = sys.argv[1] if len(sys.argv) > 1 else 'cdna_kernels/'+KNAME+'.s'
    open(path, 'w').write(out)
    print("wrote", path, len(out))
if __name__ == '__main__':
    main()
```
